```python
import torch

def _softmax(x, axis=-1):
    return torch.softmax(x, dim=axis)

def _gelu(x):
    return torch.nn.functional.gelu(x, approximate='tanh')

def _silu(x):
    return torch.nn.functional.silu(x)

def _sigmoid(x):
    return torch.sigmoid(x)

def _layernorm(x, axis=-1, eps=1e-05):
    m = x.mean(dim=axis, keepdim=True)
    v = x.var(dim=axis, keepdim=True, unbiased=False)
    return (x - m) / torch.sqrt(v + eps)

def _scatter_add(tgt, idx, src, axis=0):
    return tgt.clone().index_add_(axis, idx, src)

def _segment_sum(src, seg, n):
    out = torch.zeros((n,) + src.shape[1:], dtype=src.dtype)
    return out.index_add_(0, seg, src)

def _pad(x, pw):
    flat = tuple((v for pair in reversed(pw) for v in pair))
    return torch.nn.functional.pad(x, flat)
kernel_name = 'recurrent_scan__memory_aug_recurrent_mem_tr__dense_activation_squared_relu__prompt'

def setup_inputs():

    _w = lambda a: (lambda t: t.to(torch.bfloat16) if t.is_floating_point() else t)(torch.as_tensor(a))

    def _A_setup():
        B, S, Dm = (1, 2048, 448)
        H, Dh = (16, 256)
        M, seg = (8, 32)
        seg = min(seg, S)
        S = S // seg * seg
        return {'x': _w((lambda *s: torch.randn(*s, dtype=torch.bfloat16) * 0.05)(B, S, Dm)), 'mem0': _w((lambda *s: torch.randn(*s, dtype=torch.bfloat16) * 0.05)(B, M, Dm)), 'Wq': _w((lambda *s: torch.randn(*s, dtype=torch.bfloat16) * 1.6)(Dm, H, Dh) * Dm ** (-0.5)), 'Wk': _w((lambda *s: torch.randn(*s, dtype=torch.bfloat16) * 1.6)(Dm, H, Dh) * Dm ** (-0.5)), 'Wv': _w((lambda *s: torch.randn(*s, dtype=torch.bfloat16) * 0.05)(Dm, H, Dh) * Dm ** (-0.5)), 'Wo': _w((lambda *s: torch.randn(*s, dtype=torch.bfloat16) * 0.05)(H, Dh, Dm) * (H * Dh) ** (-0.5)), 'seg_len': seg}
    _A_in = _A_setup()

    def _B_setup():
        B, S, D, F = (1, 2048, 448, 1792)
        return {'x': _w((lambda *s: torch.randn(*s, dtype=torch.bfloat16) * 0.05)(B, S, D)), 'w1': _w((lambda *s: torch.randn(*s, dtype=torch.bfloat16) * 0.05)(D, F)), 'b1': _w((lambda *s: torch.randn(*s, dtype=torch.bfloat16) * 0.4)(F)), 'w2': _w((lambda *s: torch.randn(*s, dtype=torch.bfloat16) * 0.05)(F, D)), 'b2': _w((lambda *s: torch.randn(*s, dtype=torch.bfloat16) * 1.6)(D))}
    _B_in = _B_setup()
    return {'A_x': _A_in['x'], 'A_mem0': _A_in['mem0'], 'A_Wq': _A_in['Wq'], 'A_Wk': _A_in['Wk'], 'A_Wv': _A_in['Wv'], 'A_Wo': _A_in['Wo'], 'A_seg_len': _A_in['seg_len'], 'B_x': _B_in['x'], 'B_w1': _B_in['w1'], 'B_b1': _B_in['b1'], 'B_w2': _B_in['w2'], 'B_b2': _B_in['b2']}

def reference(A_x, A_mem0, A_Wq, A_Wk, A_Wv, A_Wo, A_seg_len, B_x, B_w1, B_b1, B_w2, B_b2):

    def _A_ref(x, mem0, Wq, Wk, Wv, Wo, seg_len):
        B, S, Dm = x.shape
        H, Dh = (Wq.shape[1], Wq.shape[2])
        M = mem0.shape[1]
        scale = Dh ** (-0.5)
        n_seg = S // seg_len
        L = M + seg_len
        idx = torch.arange(L)
        mask = (idx[:, None] < M) | (idx[:, None] >= idx[None, :])
        mem = mem0
        outs = []
        for s in range(n_seg):
            xs = x[:, s * seg_len:(s + 1) * seg_len, :].clone()
            h = torch.concatenate([mem, xs], axis=1)
            q = torch.einsum('btd,dhe->bhte', h, Wq)
            k = torch.einsum('btd,dhe->bhte', h, Wk)
            v = torch.einsum('btd,dhe->bhte', h, Wv)
            scores = torch.einsum('bhqe,bhke->bhqk', q, k) * scale
            scores = torch.where(mask[None, None], scores, -1000000000.0)
            p = _softmax(scores, axis=-1)
            o = torch.einsum('bhqk,bhke->bhqe', p, v)
            o = torch.einsum('bhte,hed->btd', o, Wo)
            mem = o[:, :M, :].clone()
            outs.append(o[:, M:, :])
        return torch.concatenate(outs, axis=1)

    def _B_ref(x, w1, b1, w2, b2):
        h = torch.einsum('bsd,df->bsf', x, w1) + b1
        zero = torch.zeros_like(h)
        r = torch.where(h > zero, h, zero)
        h = r * r
        out = torch.einsum('bsf,fd->bsd', h, w2) + b2
        return out
    x = A_x
    xn = _layernorm(x, axis=-1)
    s = _A_ref(xn, A_mem0, A_Wq, A_Wk, A_Wv, A_Wo, A_seg_len)
    g = _silu(_B_ref(xn, B_w1, B_b1, B_w2, B_b2))
    return x + s * g
```

```python
import re

_REG = re.compile(r'^(-?)(?:abs\()?\|?([vas])(\d+)\|?\)?$')
_RNG = re.compile(r'^(-?)([vas])\[(\d+):(\d+)\]$')

def regs_of(tok):
    tok = tok.strip()
    if tok in ('vcc', 'vcc_lo', 'vcc_hi'): return {('s', 106), ('s', 107)}
    if tok in ('exec', 'exec_lo', 'exec_hi'): return {('x', 0)}
    if tok == 'm0': return {('m', 0)}
    m = _REG.match(tok)
    if m: return {(m.group(2), int(m.group(3)))}
    m = _RNG.match(tok)
    if m: return {(m.group(2), i) for i in range(int(m.group(3)), int(m.group(4)) + 1)}
    return set()

TRANS = ('v_exp_', 'v_log_', 'v_rcp_', 'v_rsq_', 'v_sqrt_', 'v_sin_', 'v_cos_')

class Ins:
    __slots__ = ('text', 'op', 'kind', 'dst', 'src', 'srcC', 'srcAB', 'passes', 'label', 'target', 'states',
                 'dpp', 'trans', 'wide_store', 'sdata', 'lds_dma', 'uncond')
    def __init__(self, text):
        self.text = text
        t = text.split(';')[0].strip()
        self.label = None; self.target = None; self.kind = 'other'; self.op = ''
        self.dst = set(); self.src = set(); self.srcC = set(); self.srcAB = set(); self.passes = 0
        self.states = 0; self.dpp = False; self.trans = False; self.wide_store = False; self.sdata = set()
        self.lds_dma = False; self.uncond = False
        if not t: return
        if t.endswith(':'):
            self.label = t[:-1]; self.kind = 'label'; return
        if t.startswith('.'):
            self.kind = 'dir'; return
        parts = t.split(None, 1)
        op = self.op = parts[0]
        ops = []
        if len(parts) > 1:
            depth = 0; cur = ''
            for ch in parts[1]:
                if ch in '[(': depth += 1
                if ch in '])': depth -= 1
                if ch == ',' and depth == 0: ops.append(cur.strip()); cur = ''
                else: cur += ch
            ops.append(cur.strip())
        mods = ''
        if ops:
            last = ops[-1].split(None, 1)
            if len(last) > 1 and not last[0].startswith('hwreg'):
                ops[-1] = last[0]; mods = last[1]
        R = [regs_of(o) for o in ops]
        self.states = 1
        if op == 's_nop':
            self.states = int(ops[0], 0) + 1; self.kind = 'salu'; return
        if op.startswith('v_mfma') or op.startswith('v_smfmac'):
            self.kind = 'mfma'
            self.passes = 8 if '32x32' in op else (2 if '4x4x4' in op else 4)
            self.dst = R[0]
            if op.startswith('v_smfmac'):
                self.srcC = R[0]; self.srcAB = R[1] | R[2] | R[3]
            else:
                self.srcC = R[3]; self.srcAB = R[1] | R[2]
            self.src = self.srcC | self.srcAB
            return
        if op.startswith('v_'):
            self.kind = 'valu'
            self.dpp = '_dpp' in op or 'row_' in mods or 'quad_perm' in mods
            self.trans = op.startswith(TRANS)
            if 'permlane' in op and 'swap' in op:
                self.dst = R[0] | R[1]; self.src = R[0] | R[1]
            elif op.startswith(('v_add_co', 'v_sub_co', 'v_addc_co', 'v_subb_co', 'v_mad_u64')):
                self.dst = R[0] | R[1]; self.src = set().union(*R[2:])
            else:
                self.dst = R[0]; self.src = set().union(*R[1:]) if len(R) > 1 else set()
                if op.startswith(('v_fmac', 'v_pk_fmac', 'v_dot2c', 'v_writelane')) or self.dpp or 'op_sel' in mods or 'sdwa' in op:
                    self.src |= R[0]
                if op.startswith('v_cmpx'): self.dst |= {('x', 0)}
            return
        if op.startswith('ds_'):
            self.kind = 'ds'
            if op.startswith(('ds_read', 'ds_bpermute', 'ds_permute', 'ds_swizzle')) or '_rtn' in op:
                self.dst = R[0]; self.src = set().union(*R[1:])
            else:
                self.src = set().union(*R)
            return
        if op.startswith(('global_', 'buffer_', 'flat_')):
            self.kind = 'vmem'
            allm = mods + ' ' + ' '.join(o for o in ops if not regs_of(o))
            if op in ('buffer_wbl2', 'buffer_inv'): return
            if 'lds' in op or re.search(r'\blds\b', allm):
                self.lds_dma = True; self.src = set().union(*R); return
            if 'load' in op:
                self.dst = R[0]; self.src = set().union(*R[1:])
            elif 'atomic' in op:
                if 'sc0' in allm and op.startswith('global_'):
                    self.dst = R[0]; self.src = set().union(*R[1:])
                else:
                    self.src = set().union(*R)
                    if 'sc0' in allm: self.dst = R[0]
            else:
                self.src = set().union(*R)
                if op.endswith(('x3', 'x4')):
                    self.wide_store = True
                    self.sdata = R[0] if op.startswith('buffer_') else R[1]
            return
        if op.startswith('s_'):
            self.kind = 'salu'
            if op.startswith(('s_branch', 's_cbranch')):
                self.target = ops[0]; self.uncond = op == 's_branch'
                return
            if op == 's_endpgm':
                self.uncond = True; return
            if op.startswith(('s_cmp', 's_bitcmp', 's_waitcnt', 's_barrier', 's_sleep', 's_setprio')):
                self.src = set().union(*R) if R else set(); return
            self.dst = R[0] if R else set()
            self.src = set().union(*R[1:]) if len(R) > 1 else set()
            if 'saveexec' in op: self.dst = self.dst | {('x', 0)}
            return
        raise ValueError('unknown instr: ' + text)

def V(s): return {r for r in s if r[0] in 'va'}
def S(s): return {r for r in s if r[0] == 's'}

def need(p, c):
    n = 0
    if p.kind == 'valu':
        vd = V(p.dst); sd = S(p.dst)
        if c.kind == 'mfma' and vd & c.src: n = max(n, 2)
        if c.kind == 'valu':
            if c.dpp and vd & c.src: n = max(n, 2)
            if 'permlane' in c.op and vd & c.src: n = max(n, 2)
            if c.op.startswith(('v_readlane', 'v_readfirstlane')) and vd & c.src: n = max(n, 1)
            if sd & c.src:
                n = max(n, 4 if c.op.startswith(('v_readlane', 'v_writelane')) else 2)
            if p.trans and not c.trans and vd & c.src: n = max(n, 1)
            if ('op_sel' in p.text or 'sdwa' in p.op) and not p.op.startswith('v_pk') and vd & (c.src | c.dst): n = max(n, 1)
            if c.op.startswith('v_div_fmas') and sd: n = max(n, 4)
        if c.kind == 'vmem' and sd & c.src: n = max(n, 5)
        if ('x', 0) in p.dst:
            if c.kind == 'mfma': n = max(n, 4)
            if c.kind == 'valu' and (c.dpp): n = max(n, 5)
            if c.kind == 'valu' and ('lane' in c.op): n = max(n, 4)
    if p.kind == 'mfma':
        k = {2: 0, 4: 1, 8: 2}[p.passes]
        if c.kind == 'mfma':
            if p.dst & c.srcAB: n = max(n, (5, 8, 12)[k])
            if p.dst & c.srcC:
                if p.dst == c.srcC and p.op == c.op: n = max(n, (2, 0, 0)[k])
                else: n = max(n, (4, 6, 10)[k])
            elif p.dst & c.dst: n = max(n, (4, 6, 10)[k])
        elif c.kind in ('valu', 'ds', 'vmem'):
            if p.dst & (c.src | c.dst): n = max(n, (5, 8, 12)[k])
            if c.kind == 'valu' and p.srcC & c.dst: n = max(n, (1, 3, 7)[k])
    if p.kind == 'vmem' and p.wide_store and p.sdata & c.dst: n = max(n, 2)
    if p.kind == 'salu' and ('m', 0) in p.dst and c.lds_dma: n = max(n, 1)
    return n

class Prog:
    def __init__(self):
        self.lines = []
        self._uid = 0
    def __call__(self, text):
        for l in text.split('\n'):
            if l.strip(): self.lines.append(l.strip())
    def uid(self, base='L'):
        self._uid += 1
        return f'{base}_{self._uid}'
    def finish(self, verbose=False):
        ins = [Ins(l) for l in self.lines]
        out = []
        labels = {}
        for i, x in enumerate(ins):
            if x.label: labels[x.label] = i
        jumpers = {}
        for i, x in enumerate(ins):
            if x.target is not None:
                jumpers.setdefault(labels[x.target], []).append(i)
        pad = [0] * len(ins)
        MAXD = 20
        changed = True
        while changed:
            changed = False
            for i, c in enumerate(ins):
                if c.kind in ('label', 'dir', 'other') or c.op == 's_nop': continue
                if c.kind == 'salu': continue
                req = 0
                stack = [(i, pad[i])]
                seen = {}
                while stack:
                    j, d = stack.pop()
                    preds = []
                    if j > 0 and not ins[j - 1].uncond: preds.append(j - 1)
                    if ins[j].label: preds += jumpers.get(j, [])
                    for p in preds:
                        x = ins[p]
                        if x.states:
                            nn = need(x, c)
                            if nn > d: req = max(req, nn - d)
                        nd = d + x.states + pad[p]
                        if nd < MAXD and seen.get(p, 99) > nd:
                            seen[p] = nd; stack.append((p, nd))
                if req > 0:
                    pad[i] += req; changed = True
        nn = 0
        for i, x in enumerate(ins):
            if pad[i]:
                k = pad[i]; nn += k
                while k > 0:
                    q = min(k, 16); out.append(f's_nop {q - 1}'); k -= q
            out.append(x.text)
        if verbose: print('nop states inserted:', nn)
        return '\n'.join((l if l.endswith(':') else ' ' + l) for l in out) + '\n'
```

```python
KNAME = 'recurrent_scan__memory_aug_recurrent_mem_tr__dense_activation_squared_relu__prompt_kernel'
OFF_A = 0
OFF_B = OFF_A + 16 * 4 * 98 * 1024
OFF_V = OFF_B + 14 * 4 * 112 * 1024
OFF_XN = OFF_V + 64 * 14 * 32768
OFF_XP = OFF_XN + 64 * 28672
OFF_PT = OFF_XP + 64 * 28672
OFF_PM = OFF_PT + 64 * 32768
OFF_G = OFF_PM + 64 * 8192
OFF_MF = OFF_G + 2048 * 896
OFF_INIT = OFF_MF + 8192
OFF_PF = OFF_MF + 64 * 8192
OFF_PS = OFF_PF + 64 * 10240
OFF_VF = OFF_PS + 64 * 10240
OFF_TF = OFF_VF + 64 * 256
OFF_GF = OFF_TF + 64 * 128
OFF_MS1 = OFF_GF + 8192
INIT_END = OFF_MS1 + 63 * 8192
INIT_PER_WAVE = -(-(INIT_END - OFF_INIT) // (128 * 1024)) * 1024
OFF_MS0 = OFF_INIT + 128 * INIT_PER_WAVE
OFF_MS = OFF_MS1 - 8192
OFF_PROF = OFF_MS0 + 8192
WS_END = OFF_PROF + (1 << 20)
NSTEP = 63

SMF = 'v_smfmac_f32_16x16x64_bf16'
MF32 = 'v_mfma_f32_16x16x32_bf16'
MF16 = 'v_mfma_f32_16x16x16_bf16'
DPP = 'row_mask:0xf bank_mask:0xf'
SW32 = 'v_permlane32_swap_b32'
SW16 = 'v_permlane16_swap_b32'
WS = 's[64:67]'; OUT = 's[68:71]'; DBG = 's[72:75]'; XS = 's[76:79]'
R0 = 's[80:83]'; R1 = 's[84:87]'; R2 = 's[88:91]'; R3 = 's[92:95]'
FAIL = 'L_exit'
TMO = 0x80000

def vr(b, n=1): return f'v[{b}:{b + n - 1}]' if n > 1 else f'v{b}'
def ar(b, n=1): return f'a[{b}:{b + n - 1}]' if n > 1 else f'a{b}'
_OPN = {1: 'dword', 2: 'dwordx2', 4: 'dwordx4'}
def ld(dst, va, so, off=0, fl='sc1', n=4, srd=WS):
    assert 0 <= off < 4096
    o = f' offset:{off}' if off else ''
    return f'buffer_load_{_OPN[n]} {dst}, v{va}, {srd}, {so} offen{o} {fl}'.strip()
def lddma(va, so, off=0, fl='sc1', srd=WS):
    assert 0 <= off < 4096
    o = f' offset:{off}' if off else ''
    f = f' {fl}' if fl else ''
    return f'buffer_load_dwordx4 v{va}, {srd}, {so} offen{o}{f} lds'
def st(src, va, so, off=0, fl='', n=1, srd=WS):
    assert 0 <= off < 4096
    o = f' offset:{off}' if off else ''
    return f'buffer_store_{_OPN[n]} {src}, v{va}, {srd}, {so} offen{o} {fl}'.strip()
def dsr(dst, va, off=0, n=4):
    assert 0 <= off < 65536, off
    op = {1: 'b32', 2: 'b64', 4: 'b128'}[n]
    o = f' offset:{off}' if off else ''
    return f'ds_read_{op} {dst}, v{va}{o}'
def dsw(va, src, off=0, n=4):
    assert 0 <= off < 65536, off
    op = {1: 'b32', 2: 'b64', 4: 'b128'}[n]
    o = f' offset:{off}' if off else ''
    return f'ds_write_{op} v{va}, {src}{o}'
def dstr(dst, va, off=0):
    assert 0 <= off < 65536, off
    o = f' offset:{off}' if off else ''
    return f'ds_read_b64_tr_b16 {dst}, v{va}{o}'
def cvt(d, a, b=None):
    return f'v_cvt_pk_bf16_f32 v{d}, v{a}, v{a + 1 if b is None else b}'
def srd(p, reg, ptr, nbytes):
    p(f's_mov_b32 s{reg}, s{ptr}\ns_mov_b32 s{reg + 1}, s{ptr + 1}\ns_mov_b32 s{reg + 2}, {nbytes}\ns_mov_b32 s{reg + 3}, 0x20000')

def chk_instrs(chk, tmp):
    out = []
    regs = list(chk); cur = regs.pop(0)
    while regs:
        if len(regs) >= 2:
            out.append(f'v_max3_u32 v{tmp}, v{cur}, v{regs[0]}, v{regs[1]}'); regs = regs[2:]
        else:
            out.append(f'v_max_u32 v{tmp}, v{cur}, v{regs[0]}'); regs = regs[1:]
        cur = tmp
    out.append(f'v_cmp_eq_u32 vcc, -1, v{cur}')
    return out

def slow_poll(p, loads, chk, tmp, sleep=4, drain=True):
    lab = p.uid('L_sp')
    p(f's_mov_b32 s31, 0\ns_branch {lab}_go\n{lab}:')
    p(f's_sleep {sleep}\ns_add_u32 s31, s31, 1\ns_cmp_gt_u32 s31, {TMO}\ns_cbranch_scc1 {FAIL}')
    p(f'{lab}_go:')
    for l in loads: p(l)
    p('s_waitcnt vmcnt(0)')
    for x in chk_instrs(chk, tmp): p(x)
    p(f's_cbranch_vccnz {lab}')

def wait_dbg(p, mlo, mhi, sleep=2):
    lab = p.uid('L_wd')
    p(f's_cmp_lg_u32 s12, 0\ns_cbranch_scc1 {lab}_done')
    p('v_lshlrev_b32 v1, 2, v0\nv_and_b32 v2, 7, v0\nv_mov_b32 v3, 7\nv_cmp_eq_u32 vcc, 5, v2\nv_cndmask_b32 v3, v3, 4, vcc')
    p(f's_mov_b32 s31, 0\n{lab}:')
    p(ld('v2', 1, '0', n=1, srd=DBG))
    p(f's_add_u32 s31, s31, 1\ns_cmp_gt_u32 s31, {TMO}\ns_cbranch_scc1 {FAIL}')
    p(f's_waitcnt vmcnt(0)\nv_cmp_ne_u32 vcc, v2, v3\ns_and_b32 s14, vcc_lo, s{mlo}\ns_and_b32 s15, vcc_hi, s{mhi}\ns_or_b32 s14, s14, s15')
    p(f's_cbranch_scc0 {lab}_done\ns_sleep {sleep}\ns_branch {lab}')
    p(f'{lab}_done:\ns_barrier')

def prof(p, cfg, k):
    if not cfg.get('prof'): return
    lab = p.uid('L_pr')
    p(f's_cmp_lg_u32 s12, 0\ns_cbranch_scc1 {lab}')
    p(f's_memrealtime s[96:97]\ns_lshl_b32 s98, s99, 7\ns_add_u32 s98, s98, {OFF_PROF + 4 * k}\ns_waitcnt lgkmcnt(0)')
    p('v_mov_b32 v6, 0\nv_mov_b32 v7, s96\n' + st('v7', 6, 's98') + f'\n{lab}:')

def pos_of(tok):
    return ((tok & 1) << 4) | (((tok >> 3) & 1) << 3) | (((tok >> 1) & 1) << 2) | (((tok >> 2) & 1) << 1) | (tok >> 4)

def emit_pos(p, dst, tok, t1, t2):
    p(f'v_and_b32 v{t1}, 1, v{tok}\nv_lshlrev_b32 v{dst}, 4, v{t1}\nv_and_b32 v{t1}, 8, v{tok}\nv_or_b32 v{dst}, v{dst}, v{t1}')
    p(f'v_and_b32 v{t1}, 2, v{tok}\nv_lshlrev_b32 v{t1}, 1, v{t1}\nv_and_b32 v{t2}, 4, v{tok}\nv_lshrrev_b32 v{t2}, 1, v{t2}')
    p(f'v_or_b32 v{t1}, v{t1}, v{t2}\nv_lshrrev_b32 v{t2}, 4, v{tok}\nv_or3_b32 v{dst}, v{dst}, v{t1}, v{t2}')
```

```python
import numpy as np
D = 448; H = 16; NSEG = 64; SEG = 32; M = 8

def phys_k(gB, p):
    p3, p2, p1, p0 = (p >> 3) & 1, (p >> 2) & 1, (p >> 1) & 1, p & 1
    return 32 * p3 + 16 * (gB >> 1) + 8 * p1 + 4 * (gB & 1) + 2 * p2 + p0

def piece(w, blk, gB, p3):
    P, b = w >> 1, w & 1
    if blk == 0: pc = 8 * b + 4 * p3 + gB
    elif gB & 1: pc = 24 + 2 * p3 + (gB >> 1)
    else: pc = 16 + 4 * b + 2 * p3 + (gB >> 1)
    return 28 * P + pc

def phi(w, T, n):
    b = w & 1
    blk = 0 if T < 4 else 1
    tt = T - 4 * blk
    if T == 6: n5, n4 = 1, b
    else: n5, n4 = tt >> 1, tt & 1
    n3, n2, n1, n0 = (n >> 3) & 1, (n >> 2) & 1, (n >> 1) & 1, n & 1
    pc = piece(w, blk, 2 * n2 + n5, n3)
    return 8 * pc + 4 * n1 + 2 * n4 + n0

def slot_chunk(w, sg): return (2 * w + sg) % 7

def check():
    cols = sorted(phi(w, T, n) for w in range(4) for T in range(7) for n in range(16))
    assert cols == list(range(448))
    ks = sorted(phys_k(g, p) for g in range(4) for p in range(16))
    assert ks == list(range(64))
check()

lane = np.arange(64); gB_ = lane >> 4; n_ = lane & 15

def img_A(A):
    out = np.zeros((16, 4, 7, 7, 2, 64, 8), dtype=A.dtype)
    kk = np.array([[phys_k(g, p) for p in range(16)] for g in gB_])
    for w in range(4):
        for T in range(7):
            cols = np.array([phi(w, T, n) for n in n_])
            for sg in range(7):
                t = slot_chunk(w, sg)
                blk = A[:, 64 * t + kk, cols[:, None]]
                out[:, w, T, sg, 0] = blk[:, :, :8]; out[:, w, T, sg, 1] = blk[:, :, 8:]
    return out

def img_B(B):
    out = np.zeros((14, 4, 4, 2, 7, 2, 64, 8), dtype=B.dtype)
    kk = np.array([[phys_k(g, p) for p in range(16)] for g in gB_])
    for c in range(14):
        for w in range(4):
            for nt in range(2):
                cols = 32 * c + 16 * nt + n_
                for sg in range(7):
                    t = slot_chunk(w, sg)
                    blk = B[4 * w:4 * w + 4, 64 * t + kk, cols[:, None]]
                    out[c, w, :, nt, sg, 0] = blk[:, :, :8]; out[c, w, :, nt, sg, 1] = blk[:, :, 8:]
    return out

def img_V(Vp):
    out = np.zeros((64, 14, 4, 2, 2, 2, 64, 8), dtype=Vp.dtype)
    for p in range(16):
        p3, p2, p1, p0 = (p >> 3) & 1, (p >> 2) & 1, (p >> 1) & 1, p & 1
        tok = 16 * p3 + 4 * gB_ + 2 * p2 + p0
        for w in range(4):
            for u in range(2):
                for nt in range(2):
                    for c in range(14):
                        out[:, c, w, u, nt, p3, :, p & 7] = Vp[:, 4 * w + 2 * u + p1, tok, 32 * c + 16 * nt + n_]
    return out

def img_X(xn):
    out = np.zeros((64, 4, 2, 2, 2, 64, 8), dtype=xn.dtype)
    x = xn.reshape(64, 32, 448)
    for w in range(4):
        for blk in range(2):
            for tile in range(2):
                for p3 in range(2):
                    pc = np.array([piece(w, blk, g, p3) for g in gB_])
                    out[:, w, blk, tile, p3] = x[:, (2 * n_ + tile)[:, None], 8 * pc[:, None] + np.arange(8)[None, :]]
    return out

def img_M(m):
    return m.reshape(8, 56, 8).transpose(1, 0, 2).copy()
def unimg_M(im):
    return im.reshape(56, 8, 8).transpose(1, 0, 2).reshape(8, 448)


def pos_of(tok):
    return ((tok & 1) << 4) | (((tok >> 3) & 1) << 3) | (((tok >> 1) & 1) << 2) | (((tok >> 2) & 1) << 1) | (tok >> 4)

def img_A2(A):
    out = np.zeros((16, 4, 7, 7, 2, 64, 8), dtype=A.dtype)
    kk = np.array([[phys_k(g, p) for p in range(16)] for g in gB_])
    for w in range(4):
        for T in range(7):
            cols = np.array([phi(w, T, n) for n in n_])
            for t in range(7):
                blk = A[:, 64 * t + kk, cols[:, None]]
                out[:, w, T, t, 0] = blk[:, :, :8]; out[:, w, T, t, 1] = blk[:, :, 8:]
    return out

def img_B2(B):
    out = np.zeros((14, 4, 4, 2, 7, 2, 64, 8), dtype=B.dtype)
    kk = np.array([[phys_k(g, p) for p in range(16)] for g in gB_])
    for c in range(14):
        for w in range(4):
            for nt in range(2):
                cols = 32 * c + 16 * nt + n_
                for t in range(7):
                    blk = B[4 * w:4 * w + 4, 64 * t + kk, cols[:, None]]
                    out[c, w, :, nt, t, 0] = blk[:, :, :8]; out[c, w, :, nt, t, 1] = blk[:, :, 8:]
    return out

def img_V2(Vp):
    out = np.zeros((64, 14, 4, 2, 2, 2, 64, 8), dtype=Vp.dtype)
    for p in range(16):
        p3, p2, p1, p0 = (p >> 3) & 1, (p >> 2) & 1, (p >> 1) & 1, p & 1
        tok = 16 * p2 + 4 * gB_ + 2 * p1 + p0
        for w in range(4):
            for u in range(2):
                for nt in range(2):
                    for c in range(14):
                        out[:, c, w, u, nt, p3, :, p & 7] = Vp[:, 4 * w + 2 * u + p3, tok, 32 * c + 16 * nt + n_]
    return out

def img_XN(xn):
    x = xn.reshape(64, 32, 56, 8)
    out = np.zeros((64, 56, 32, 8), dtype=xn.dtype)
    for t in range(32): out[:, :, pos_of(t)] = x[:, t]
    return out

def img_XP(xn):
    x = xn.reshape(64, 2, 16, 14, 32)
    out = np.zeros((64, 14, 2, 4, 16, 8), dtype=xn.dtype)
    for g in range(4):
        for e in range(8):
            out[:, :, :, g, :, e] = x[:, :, :, :, phys_k(g, e)].transpose(0, 3, 1, 2)
    return out

def img_PT(P):
    pt = np.zeros((64, 16, 2, 64, 8), dtype=P.dtype); pm = np.zeros((64, 8, 2, 32, 8), dtype=P.dtype)
    for qt in range(2):
        for x in range(8):
            key = 16 * (x >> 2) + 4 * gB_ + (x & 3)
            pt[:, :, qt, :, x] = P[:, :, 16 * qt + n_, 8 + key]
            pm[:, :, qt, :, x] = P[:, (x >> 2)::2, (16 * qt + n_)[:32], (4 * gB_ + (x & 3))[:32]]
    return pt, pm
```

```python
from common import *

def gen_ln(p, cfg):
    LN_, LP_ = 0, 57344
    p('v_lshlrev_b32 v1, 4, v0\nv_mov_b32 v4, -1\nv_mov_b32 v5, -1\nv_mov_b32 v6, -1\nv_mov_b32 v7, -1')
    p(f'v_lshrrev_b32 v2, 2, v0\nv_and_b32 v3, 3, v0')
    p(f's_lshl_b32 s14, s13, 6\ns_lshl_b32 s15, s12, 4\ns_add_u32 s14, s14, s15\ns_mul_i32 s20, s14, 896')
    p('v_mul_u32_u24 v176, 896, v2\nv_lshlrev_b32 v177, 4, v3\nv_add_u32 v176, v176, v177')
    for k in range(14): p(ld(vr(8 + 4 * k, 4), 176, 's20', 64 * k, fl='', srd=XS))
    p(f's_lshl_b32 s14, s13, 2\ns_add_u32 s14, s14, s12\ns_mul_i32 s21, s14, {INIT_PER_WAVE}\ns_add_u32 s21, s21, {OFF_INIT}')
    for k in range(INIT_PER_WAVE // 1024):
        p(st('v[4:7]', 1, 's21', (k & 3) * 1024, 'sc1', n=4))
        if (k & 3) == 3: p('s_add_u32 s21, s21, 4096')
    ns = INIT_PER_WAVE // 1024
    lab = p.uid('L_m0')
    p(f's_cmp_lg_u32 s13, 0\ns_cbranch_scc1 {lab}\ns_cmp_gt_u32 s12, 1\ns_cbranch_scc1 {lab}')
    srd(p, 80, 42, 7168)
    p(f's_mov_b32 s22, {OFF_MS0}\ns_cmp_eq_u32 s12, 0\ns_cselect_b32 s22, {OFF_MF}, s22')
    p('v_and_b32 v178, 7, v0\nv_mul_u32_u24 v178, 896, v178\nv_lshrrev_b32 v179, 3, v0\nv_lshlrev_b32 v179, 4, v179\nv_add_u32 v178, v178, v179')
    for k in range(7): p(ld(vr(180 + 4 * k, 4), 178, '0', 128 * k, fl='', srd=R0))
    p('s_mov_b32 s34, 0xfffffffe\ns_waitcnt vmcnt(0)')
    for k in range(28): p(f'v_min_u32 v{180 + k}, s34, v{180 + k}')
    for k in range(7):
        p(st(vr(180 + 4 * k, 4), 1, 's22', (k & 3) * 1024, 'sc1', n=4))
        if k == 3: p('s_add_u32 s22, s22, 4096')
    p(f's_waitcnt vmcnt(0)\n{lab}:')
    p(f's_waitcnt vmcnt({min(ns, 63)})')
    F = 64
    p('s_mov_b32 s34, 0xffff0000')
    for r in range(56):
        p(f'v_lshlrev_b32 v{F + 2 * r}, 16, v{8 + r}\nv_and_b32 v{F + 2 * r + 1}, s34, v{8 + r}')
    p(f'v_pk_add_f32 v[8:9], v[{F}:{F + 1}], v[{F + 2}:{F + 3}]\nv_pk_add_f32 v[10:11], v[{F + 4}:{F + 5}], v[{F + 6}:{F + 7}]')
    for r in range(4, 56, 2):
        p(f'v_pk_add_f32 v[8:9], v[8:9], v[{F + 2 * r}:{F + 2 * r + 1}]\nv_pk_add_f32 v[10:11], v[10:11], v[{F + 2 * r + 2}:{F + 2 * r + 3}]')
    def quad_sum():
        p('v_pk_add_f32 v[8:9], v[8:9], v[10:11]\nv_add_f32 v8, v8, v9')
        p(f'v_add_f32_dpp v8, v8, v8 quad_perm:[1,0,3,2] {DPP}\nv_add_f32_dpp v8, v8, v8 quad_perm:[2,3,0,1] {DPP}')
        p(f'v_mul_f32 v8, 0x{0x3b124925:x}, v8')
    quad_sum()
    p('v_mov_b32 v12, v8\nv_mov_b32 v13, v8')
    p('v_cvt_pk_bf16_f32 v14, v8, v8\nv_and_b32 v14, s34, v14\nv_mov_b32 v15, v14')
    p('v_mov_b32 v8, 0\nv_mov_b32 v9, 0\nv_mov_b32 v10, 0\nv_mov_b32 v11, 0')
    for r in range(0, 56, 2):
        p(f'v_pk_add_f32 v[16:17], v[{F + 2 * r}:{F + 2 * r + 1}], v[12:13] neg_lo:[0,1] neg_hi:[0,1]')
        p(f'v_pk_add_f32 v[18:19], v[{F + 2 * r + 2}:{F + 2 * r + 3}], v[12:13] neg_lo:[0,1] neg_hi:[0,1]')
        p('v_pk_fma_f32 v[8:9], v[16:17], v[16:17], v[8:9]\nv_pk_fma_f32 v[10:11], v[18:19], v[18:19], v[10:11]')
    quad_sum()
    p('v_cvt_pk_bf16_f32 v8, v8, v8\nv_and_b32 v8, s34, v8\nv_add_f32 v8, 0x3727c5ac, v8')
    p('v_cvt_pk_bf16_f32 v8, v8, v8\nv_and_b32 v8, s34, v8\nv_sqrt_f32 v8, v8')
    p('v_cvt_pk_bf16_f32 v8, v8, v8\nv_and_b32 v8, s34, v8\nv_rcp_f32 v12, v8\nv_mov_b32 v13, v12')
    p('s_and_b32 s14, s12, 1\ns_lshl_b32 s14, s14, 4\nv_add_u32 v4, s14, v2')
    emit_pos(p, 5, 4, 6, 7)
    p(f's_lshr_b32 s14, s12, 1\ns_mul_i32 s14, s14, 28672')
    p('v_lshlrev_b32 v5, 4, v5\nv_lshlrev_b32 v6, 9, v3\nv_add3_u32 v178, v5, v6, s14')
    p('s_and_b32 s15, s12, 1\ns_lshl_b32 s15, s15, 10\ns_add_u32 s14, s14, s15')
    p(f's_add_u32 s14, s14, {LP_}')
    p('v_lshrrev_b32 v5, 1, v3\nv_lshlrev_b32 v5, 9, v5\nv_and_b32 v6, 1, v3\nv_lshlrev_b32 v6, 2, v6\nv_lshlrev_b32 v7, 4, v2')
    p('v_add3_u32 v5, v5, v6, v7\nv_add_u32 v179, s14, v5')
    for k in range(14):
        d = 16 + 4 * (k & 1)
        for q in range(4):
            a = F + 8 * k + 2 * q
            p(f'v_pk_add_f32 v[{a}:{a + 1}], v[{a}:{a + 1}], v[14:15] neg_lo:[0,1] neg_hi:[0,1]')
            p(f'v_cvt_pk_bf16_f32 v24, v{a}, v{a + 1}\nv_lshlrev_b32 v{a}, 16, v24\nv_and_b32 v{a + 1}, s34, v24')
            p(f'v_pk_mul_f32 v[{a}:{a + 1}], v[{a}:{a + 1}], v[12:13]')
            p(cvt(d + q, a))
        p(dsw(178, vr(d, 4), 2048 * k))
        p(f'v_add_u32 v25, {2048 * k}, v179')
        p(f'ds_write2_b32 v25, v{d}, v{d + 1} offset0:0 offset1:2\nds_write2_b32 v25, v{d + 2}, v{d + 3} offset0:64 offset1:66')
    p('s_waitcnt lgkmcnt(0)\ns_barrier')
    p(f's_mul_i32 s14, s12, 28672\nv_add_u32 v2, s14, v1')
    p(f's_mul_i32 s20, s13, 57344\ns_add_u32 s20, s20, s14\ns_mov_b32 s15, {OFF_XP - 57344}\ns_cmp_lt_u32 s12, 2\ns_cselect_b32 s15, {OFF_XN}, s15\ns_add_u32 s20, s20, s15')
    for k in range(28): p(dsr(vr(8 + 4 * k, 4), 2, 1024 * k))
    for k in range(28):
        if k % 7 == 0: p(f's_waitcnt lgkmcnt({min(15, 21 - k)})' if k < 21 else 's_waitcnt lgkmcnt(0)')
        p(st(vr(8 + 4 * k, 4), 1, 's20', (k & 3) * 1024, 'sc1', n=4))
        if (k & 3) == 3: p('s_add_u32 s20, s20, 4096')
    p('s_lshr_b32 s14, s13, 2\ns_lshl_b32 s14, s14, 5\ns_add_u32 s23, s14, 20')

def gen_gemm(p, isB, cfg):
    acc = lambda T, tt: 8 + 16 * T + 4 * tt
    KF = lambda b, tt: 120 + 44 * b + 4 * tt
    NF = lambda b, T: 120 + 44 * b + 16 + 4 * T
    vK0, vK1, vKr0, vKr1, vL16 = 208, 209, 210, 211, 212
    vN = 214
    vR = 230
    flK = cfg.get('flK', ''); flN = cfg.get('flN', '')
    srd(p, 80, 48 if isB else 44, 448 * 8192)
    srd(p, 84, 50 if isB else 46, 448 * 8192)
    p(f'v_lshlrev_b32 v{vL16}, 4, v0')
    p('v_and_b32 v1, 7, v0\nv_lshrrev_b32 v2, 4, v0\nv_xor_b32 v1, v1, v2\nv_lshlrev_b32 v1, 4, v1')
    p('v_bfe_u32 v3, v0, 3, 1\nv_bfe_u32 v4, v0, 4, 1\nv_bfe_u32 v5, v0, 5, 1')
    p(f'v_lshlrev_b32 v6, 3, v4\nv_lshlrev_b32 v7, 2, v5\nv_add3_u32 v6, v6, v7, v3\nv_lshlrev_b32 v6, 13, v6\nv_add_u32 v{vK0}, v6, v1\nv_xor_b32 v{vK1}, 64, v{vK0}')
    p('s_lshr_b32 s20, s12, 1\ns_lshl_b32 s20, s20, 5\ns_and_b32 s21, s12, 1\ns_lshl_b32 s21, s21, 1\ns_add_u32 s20, s20, s21')
    p('s_lshl_b32 s21, s15, 6\ns_add_u32 s20, s20, s21\ns_lshl_b32 s20, s20, 13\ns_lshl_b32 s21, s14, 9\ns_add_u32 s20, s20, s21')
    p('s_lshl_b32 s26, s12, 11\ns_mul_i32 s27, s12, 14336\ns_add_u32 s27, s27, 8192')
    if not isB:
        p(f'v_lshlrev_b32 v6, 4, v5\nv_lshlrev_b32 v7, 2, v4\nv_add3_u32 v6, v6, v7, v3\nv_lshlrev_b32 v6, 13, v6\nv_add_u32 v{vN}, v6, v1\nv_xor_b32 v{vN + 1}, 64, v{vN}')
        p(f'v_lshlrev_b32 v6, 3, v5\nv_add3_u32 v6, v6, v7, v3\nv_lshlrev_b32 v6, 13, v6\nv_add_u32 v{vN + 2}, v6, v1\nv_xor_b32 v{vN + 3}, 64, v{vN + 2}')
        p('s_lshr_b32 s22, s12, 1\ns_mul_i32 s22, s22, 224\ns_and_b32 s25, s12, 1')
        p('s_lshl_b32 s23, s25, 5\ns_add_u32 s23, s23, s22\ns_add_u32 s23, s23, 128')
        p('s_lshl_b32 s24, s25, 1\ns_add_u32 s24, s24, s22\ns_add_u32 s24, s24, 192')
        p('s_lshl_b32 s25, s25, 6\ns_add_u32 s22, s22, s25')
        for r in (22, 23, 24): p(f's_lshl_b32 s{r}, s{r}, 13\ns_add_u32 s{r}, s{r}, s21')
    else:
        p('s_mul_i32 s22, s12, 896\ns_mov_b32 s25, 0x4924925')
        for i in range(14):
            p(f's_add_u32 s23, s22, {64 * i}\nv_add_u32 v6, s23, v0\nv_mul_hi_u32 v7, s25, v6')
            p('v_mul_u32_u24 v8, 56, v7\nv_sub_u32 v6, v6, v8\nv_bfe_u32 v8, v7, 1, 1\nv_bfe_u32 v9, v7, 3, 1\nv_lshlrev_b32 v9, 1, v9\nv_or_b32 v8, v8, v9')
            p(f'v_lshlrev_b32 v8, 1, v8\nv_xor_b32 v6, v6, v8\nv_lshlrev_b32 v6, 4, v6\nv_mul_u32_u24 v7, 896, v7\nv_add_u32 v{vN + i}, v6, v7')
        p('s_mul_i32 s22, s14, 229376')
    def issue(q):
        b = (q & 1) * 65536
        for ii in range(2):
            p(f's_add_u32 m0, s26, {b + ii * 1024}\ns_add_u32 s28, s20, {ii * 16 * 8192 + q * 128}')
            p(lddma(vK0 + ii, 's28', fl=flK, srd=R0))
        for i in range(14):
            p(f's_add_u32 m0, s27, {b + i * 1024}')
            if isB:
                if i == 0: p(f's_add_u32 s28, s22, {q * 64 * 896}')
                p(lddma(vN + i, 's28', fl=flN, srd=R1))
            else:
                T, ii = i >> 1, i & 1
                if T < 4: sb, rc, va = 22, 8 * (4 * ii + (T >> 1)) + 2 * (T & 1), vN + ii
                elif T < 6: sb, rc, va = 23, 16 * ii + 2 * (T & 1), vN + 2 + ii
                else: sb, rc, va = 24, 16 * ii, vN + 2 + ii
                p(f's_add_u32 s28, s{sb}, {rc * 8192 + q * 128}')
                p(lddma(va, 's28', fl=flN, srd=R1))
    issue(0); issue(1)
    p('v_and_b32 v1, 15, v0\nv_lshrrev_b32 v2, 4, v0\nv_lshrrev_b32 v3, 1, v1\nv_xor_b32 v3, v3, v2\nv_lshlrev_b32 v3, 4, v3\nv_lshlrev_b32 v4, 7, v1')
    p(f'v_add_u32 v{vKr0}, v3, v4\nv_xor_b32 v{vKr1}, 64, v{vKr0}')
    if not isB:
        p(f'v_add_u32 v{vR}, s27, v{vKr0}\nv_add_u32 v{vR + 1}, s27, v{vKr1}')
        nR = 2
    else:
        p('v_lshrrev_b32 v3, 2, v1\nv_and_b32 v4, 3, v0\nv_lshlrev_b32 v5, 3, v2\nv_add_u32 v5, v5, v3\nv_mul_u32_u24 v5, 896, v5\nv_lshlrev_b32 v4, 3, v4\nv_add_u32 v5, v5, v4')
        p('v_add_u32 v5, 8192, v5\nv_lshrrev_b32 v3, 1, v3\nv_and_b32 v4, 1, v2\nv_lshlrev_b32 v4, 1, v4\nv_or_b32 v3, v3, v4\ns_mul_i32 s23, s12, 7')
        for T in range(7):
            p(f's_add_u32 s24, s23, {T}\nv_xor_b32 v4, s24, v3\nv_lshlrev_b32 v4, 5, v4\nv_add_u32 v{vR + T}, v4, v5')
        nR = 7
    def reads(b, es):
        r = [dsr(vr(KF(b, tt), 4), vKr0 + es, 2048 * tt) for tt in range(4)]
        for T in range(7):
            if isB:
                r += [dstr(vr(NF(b, T) + 2 * hf, 2), vR + T, (32 * es + 4 * hf) * 896) for hf in range(2)]
            else:
                r.append(dsr(vr(NF(b, T), 4), vR + es, 2048 * T))
        return r
    def mfmas(b, first, extra):
        extra = list(extra)
        for T in range(7):
            for tt in range(4):
                c = '0' if first else vr(acc(T, tt), 4)
                p(f'{MF32} {vr(acc(T, tt), 4)}, {vr(KF(b, tt), 4)}, {vr(NF(b, T), 4)}, {c}')
                if extra: p(extra.pop(0))
        assert not extra
    for q in range(4):
        p(f's_waitcnt vmcnt({16 if q < 3 else 0})\ns_barrier')
        for x in reads(0, 0): p(x)
        p('s_waitcnt lgkmcnt(0)')
        mfmas(0, q == 0, reads(1, 1))
        p('s_waitcnt lgkmcnt(0)')
        if q < 2:
            p('s_barrier'); issue(q + 2)
        mfmas(1, False, [])
        if q < 3:
            for r in [vKr0, vKr1] + [vR + i for i in range(nR)]: p(f'v_xor_b32 v{r}, 0x10000, v{r}')
    if not isB:
        p(f's_mov_b32 s24, 0x{0x3db8aa3b:x}\ns_mov_b32 s25, s24')
        p(f's_lshl_b32 s22, s14, 2\ns_add_u32 s22, s22, s12\ns_mul_i32 s22, s22, {98 * 1024}\ns_lshl_b32 s23, s15, 11\ns_add_u32 s22, s22, s23\ns_add_u32 s22, s22, {OFF_A}')
    else:
        p(f's_mul_i32 s26, s14, 28672\ns_lshl_b32 s23, s15, 11\ns_add_u32 s26, s26, s23\ns_add_u32 s26, s26, {OFF_B}\ns_mul_i32 s23, s12, 7')
    for T in range(7):
        o = 120 + 8 * (T & 1)
        for tt in range(4):
            a = acc(T, tt)
            if not isB:
                p(f'v_pk_mul_f32 v[{a}:{a + 1}], v[{a}:{a + 1}], s[24:25]\nv_pk_mul_f32 v[{a + 2}:{a + 3}], v[{a + 2}:{a + 3}], s[24:25]')
            p(cvt(o + 2 * tt, a)); p(cvt(o + 2 * tt + 1, a + 2))
        if isB:
            p(f's_add_u32 s24, s23, {T}\ns_lshr_b32 s25, s24, 1\ns_mul_i32 s25, s25, {448 * 1024}\ns_and_b32 s24, s24, 1\ns_mul_i32 s24, s24, 14336')
            p('s_add_u32 s22, s26, s25\ns_add_u32 s22, s22, s24')
        p(st(vr(o, 4), vL16, 's22', 0, 'sc1', n=4)); p(st(vr(o + 4, 4), vL16, 's22', 1024, 'sc1', n=4))
        if not isB: p('s_add_u32 s22, s22, 14336')
    p(f's_lshr_b32 s23, s14, 1\ns_lshl_b32 s23, s23, 5\ns_and_b32 s24, s14, 1\ns_lshl_b32 s24, s24, 2\ns_add_u32 s23, s23, s24\ns_add_u32 s23, s23, {12 if isB else 4}')
```

```python
from common import *
import layout as L

def fast_poll(p, loads, chk, tmp, depth, space, spec, undo, switch):
    lab = p.uid('L_fp')
    p('s_mov_b32 s31, 0')
    for d in range(depth - 1):
        for l in loads: p(l)
        if space: p(f's_sleep {space}')
    for l in loads: p(l)
    p(f's_branch {lab}_w')
    p(f'{lab}_sw:')
    p(f's_cmp_gt_u32 s31, {TMO}\ns_cbranch_scc1 {FAIL}\ns_cmp_lg_u32 s31, 48\ns_cbranch_scc1 {lab}_r')
    p('s_waitcnt vmcnt(0)')
    for x in switch: p(x)
    for d in range(depth - 1):
        for l in loads: p(l)
    p(f's_branch {lab}_r')
    p(f'{lab}:')
    p(f's_add_u32 s31, s31, 1\ns_cmp_ge_u32 s31, 48\ns_cbranch_scc1 {lab}_sw')
    p(f'{lab}_r:')
    for l in loads: p(l)
    for l in undo: p(l)
    p(f'{lab}_w:')
    p(f's_waitcnt vmcnt({len(loads) * (depth - 1)})')
    for x in chk_instrs(chk, tmp): p(x)
    for x in spec: p(x)
    p(f's_cbranch_vccnz {lab}')

def load_A_weights(p, vL16, rot):
    def Wh(i, q): return ar(8 * i + 4 * q, 4) if i < 32 else vr(120 + 8 * (i - 32) + 4 * q, 4)
    for T in range(7):
        for sg in range(7):
            i = T * 7 + sg; o = (T * 7 + rot(sg)) * 2048
            p(f's_add_u32 s14, s13, {o}')
            p(ld(Wh(i, 0), vL16, 's14')); p(ld(Wh(i, 1), vL16, 's14', 1024))

def load_B_weights(p, vL16, rot, lds_base):
    def Wh(i, q): return ar(8 * i + 4 * q, 4) if i < 32 else vr(176 + 8 * (i - 32) + 4 * q, 4)
    for hn in range(6):
        for sg in range(7):
            i = hn * 7 + sg; o = (hn * 7 + rot(sg)) * 2048
            p(f's_add_u32 s14, s13, {o}')
            p(ld(Wh(i, 0), vL16, 's14')); p(ld(Wh(i, 1), vL16, 's14', 1024))
    for k in range(7):
        p(f's_add_u32 m0, {lds_base}, {k * 4096}\ns_add_u32 s14, s13, {84 * 1024 + k * 4096}')
        for j in range(4): p(lddma(vL16, 's14', j * 1024))

def idx_reg(p, IDX):
    p(f'v_bfe_u32 v5, v0, 3, 1\nv_mov_b32 v6, 0x4444\nv_mov_b32 v7, 0xeeee\nv_cmp_eq_u32 vcc, 1, v5\nv_cndmask_b32 v{IDX}, v6, v7, vcc')

def gen_A(p, w, cfg):
    LM, LT, LMm, LX = 0, 7168, 11264, 14336
    mA = lambda sg: 8 + 4 * sg
    acc = lambda T: 36 + 4 * T
    Sa = lambda t: 64 + 4 * t
    Hh = lambda t: 76 + 8 * t
    SEL2, SEL1, IDX = 100, 104, 106
    vL16, vH1, vH2, vSadd, vSrd, vPt, vX1, vT0, vT1, vMadd, vX2, vMrd, vNI = range(107, 120)
    def W(T, sg):
        i = T * 7 + sg
        return ar(8 * i, 8) if i < 32 else vr(120 + 8 * (i - 32), 8)
    P_, b = w >> 1, w & 1
    rot = lambda sg: L.slot_chunk(w, sg)
    p(f'v_lshlrev_b32 v{vL16}, 4, v0')
    p(f's_mul_i32 s13, s11, {4 * 98 * 1024}\ns_add_u32 s13, s13, {OFF_A + w * 98 * 1024}')
    load_A_weights(p, vL16, rot)
    p(f'v_lshrrev_b32 v1, 4, v0\nv_and_b32 v2, 15, v0\nv_and_b32 v3, 7, v0')
    p(f'v_and_b32 v4, 1, v1\nv_lshlrev_b32 v4, 2, v4\nv_sub_u32 v4, v3, v4\nv_lshrrev_b32 v5, 3, v2')
    p(f'v_mov_b32 v6, 0x3f80\nv_mov_b32 v7, 0x3f800000')
    for q2 in range(2):
        p(f'v_cmp_eq_u32 vcc, {2 * q2}, v4\nv_cndmask_b32 v{vT0 + q2}, 0, v6, vcc')
        p(f'v_cmp_eq_u32 vcc, {2 * q2 + 1}, v4\nv_cndmask_b32 v{vT0 + q2}, v{vT0 + q2}, v7, vcc')
    for hh in range(2):
        p(f'v_cmp_eq_u32 vcc, {hh}, v5')
        for q2 in range(2): p(f'v_cndmask_b32 v{SEL2 + 2 * hh + q2}, 0, v{vT0 + q2}, vcc')
    for q2 in range(2): p(f'v_mov_b32 v{SEL1 + q2}, v{SEL2 + 2 * b + q2}')
    idx_reg(p, IDX)
    p(f'v_add_u32 v4, {28 * P_ + 8 * b}, v1')
    p(f'v_and_b32 v5, 1, v1\nv_mul_u32_u24 v5, {24 - 16 - 4 * b}, v5\nv_lshrrev_b32 v7, 1, v1\nv_add_u32 v5, v5, v7\nv_add_u32 v5, {28 * P_ + 16 + 4 * b}, v5')
    p(f'v_lshlrev_b32 v6, 4, v3\nv_lshl_add_u32 v{vH1}, v4, 7, v6\nv_lshl_add_u32 v{vH2}, v5, 7, v6')
    p(f'v_lshlrev_b32 v6, 4, v2\nv_add_u32 v6, {LX}, v6\nv_lshl_add_u32 v{vX1}, v4, 9, v6\nv_lshl_add_u32 v{vX2}, v5, 9, v6')
    p(f'v_and_b32 v4, 1, v1\nv_lshrrev_b32 v5, 1, v1')
    p(f'v_lshlrev_b32 v6, 2, v4\nv_add_u32 v6, v6, v5')
    p(f'v_lshlrev_b32 v7, 7, v6\nv_lshlrev_b32 v3, 3, v2\nv_add_u32 v7, v7, v3\nv_add_u32 v{vSadd}, {LT + w * 1024}, v7')
    p(f'v_mul_u32_u24 v7, 80, v6\nv_lshlrev_b32 v3, 2, v2\nv_add_u32 v7, v7, v3\nv_add_u32 v{vMadd}, {LMm + w * 640}, v7')
    p(f'v_lshlrev_b32 v7, 7, v4\nv_lshlrev_b32 v3, 3, v2\nv_add_u32 v7, v7, v3\nv_add_u32 v{vSrd}, {LT + 2 * w * 128}, v7')
    p(f'v_mul_u32_u24 v7, 80, v4\nv_lshlrev_b32 v3, 2, v2\nv_add_u32 v7, v7, v3\nv_add_u32 v{vMrd}, {LMm + 2 * w * 80}, v7')
    p(f's_mul_i32 s13, s11, 640\ns_add_u32 s13, s13, {2 * w * 16}')
    p(f'v_lshlrev_b32 v6, 4, v4\nv_add_u32 v6, s13, v6')
    p(f'v_lshrrev_b32 v7, 2, v2\nv_lshlrev_b32 v7, 7, v7\nv_add_u32 v7, v6, v7\nv_and_b32 v3, 3, v2\nv_lshlrev_b32 v3, 2, v3')
    p(f'v_add3_u32 v{vPt}, v7, v3, 64\nv_add_u32 v{vPt}, 64, v{vPt}')
    p(f'v_lshrrev_b32 v3, 1, v2\nv_lshlrev_b32 v3, 2, v3\nv_add_u32 v6, v6, v3')
    p(f'v_and_b32 v3, 9, v2\nv_mov_b32 v7, 0x7ffffff0\nv_cmp_eq_u32 vcc, 0, v3\nv_cndmask_b32 v6, v7, v6, vcc')
    p(f'v_cmp_eq_u32 vcc, 1, v5\nv_cndmask_b32 v{vPt}, v{vPt}, v6, vcc')
    p(f'v_mov_b32 v{vNI}, 0xff800000')
    p('s_mov_b32 s16, 0xff00ff00\ns_mov_b32 s17, 0xff00ff00')
    p('s_mov_b32 s18, 0\ns_mov_b32 s19, -1\ns_mov_b32 s35, 0x42800000\ns_mov_b32 s34, 0xfffffffe')
    t0, t1 = rot(0), rot(1)
    p(f's_mov_b32 s25, {OFF_MF}\ns_mov_b32 s26, {OFF_MS0}\ns_mov_b32 s22, {OFF_PF}\ns_mov_b32 s24, {OFF_XN + w * 7168}')
    def xgroups(sbuf):
        g = []
        for k in range(7):
            cur = []
            if (k & 3) == 0: cur.append(f's_add_u32 m0, {sbuf}, {LX + w * 7168 + (k >> 2) * 4096}')
            cur.append(lddma(vL16, 's24', (k & 3) * 1024))
            if k == 3: cur.append('s_add_u32 s24, s24, 4096')
            if k == 6: cur.append(f's_add_u32 s24, s24, {28672 - 4096}')
            g.append(cur)
        return g
    p('s_mov_b32 s32, 0\ns_mov_b32 s33, 28672')
    for g_ in xgroups('s32'):
        for x in g_: p(x)
    for r in range(36, 76): p(f'v_mov_b32 v{r}, 0')
    p('s_mov_b32 s30, 0\ns_waitcnt vmcnt(0) lgkmcnt(0)\ns_barrier')
    prof(p, cfg, 3)
    loop = p.uid('L_Aloop')
    p(f'{loop}:')
    p(f's_add_u32 s20, s25, {t0 * 1024}\ns_add_u32 s21, s25, {t1 * 1024}')
    if cfg.get('a_delay'): p(f's_sleep {cfg["a_delay"]}')
    chk = [mA(0) + i for i in range(8)]
    def qs(T, sg): return f'{SMF} {vr(acc(T), 4)}, {vr(mA(sg), 4)}, {W(T, sg)}, v{IDX}'
    seq = [(T, 0) for T in range(7)] + [(T, 1) for T in range(7)]
    wr = [dsw(vL16, vr(mA(0), 4), LM + t0 * 1024)]
    if w != 3: wr.append(dsw(vL16, vr(mA(1), 4), LM + t1 * 1024))
    loads = [ld(vr(mA(0), 4), vL16, 's20'), ld(vr(mA(1), 4), vL16, 's21')]
    npre = cfg.get('npre', 7); wpos = cfg.get('wpos', 2)
    fast_poll(p, loads, chk, vT0, cfg.get('depth', 2), cfg.get('space', 2), [qs(*seq[0]), wr[0]],
              [f'v_mov_b32 v{r}, 0' for r in range(36, 40)],
              [f's_add_u32 s20, s26, {t0 * 1024}', f's_add_u32 s21, s26, {t1 * 1024}'])
    for i, a in enumerate(seq[1:npre]):
        p(qs(*a))
        if i == wpos - 1 and len(wr) > 1: p(wr[1])
    p('s_waitcnt lgkmcnt(0)\ns_barrier')
    def hreads(blk):
        r = []
        va, st_ = (vH1, 512) if blk == 0 else (vH2, 256)
        vx = vX1 if blk == 0 else vX2
        for p3 in range(2): r.append(dsr(vr(Hh(0) + 4 * p3, 4), va, LM + p3 * st_))
        for tile in range(2):
            for p3 in range(2): r.append(dsr(vr(Hh(1 + tile) + 4 * p3, 4), vx, p3 * st_ * 4 + tile * 256))
        return r
    mr = [dsr(vr(mA(sg), 4), vL16, LM + rot(sg) * 1024) for sg in range(2, 7)]
    p(mr[0]); p(mr[1])
    mi = 2
    for a in seq[npre:]:
        p(qs(*a))
        if mi < 5: p(mr[mi]); mi += 1
    for x in mr[mi:]: p(x)
    p('s_waitcnt lgkmcnt(0)')
    def cvt_pair(T):
        a = acc(T); return [cvt(a, a), cvt(a + 1, a + 2), cvt(a + 2, a + 4), cvt(a + 3, a + 6)]
    def tr_pair(T): return f'{MF32} {vr(acc(T + 1), 4)}, {vr(acc(T), 4)}, {vr(SEL2, 4)}, 0'
    def cvt_D(src, dst): return [cvt(dst, src), cvt(dst + 1, src + 2)]
    A2 = [acc(0), acc(4)]
    def sm(blk, t): return f'{SMF} {vr(Sa(t), 4)}, {vr(A2[blk], 4)}, {vr(Hh(t), 8)}, v{IDX}'
    fill = {k: [] for k in range(36)}
    for i, g_ in enumerate(xgroups('s33')): fill[4 * i + w] += g_
    hr = hreads(0)
    for i in range(6): fill[1 + i].append(hr[i])
    c0, c2, c4 = cvt_pair(0), cvt_pair(2), cvt_pair(4)
    fill[9] += c0[:1]; fill[10] += c0[1:2]; fill[14] += c0[2:3]; fill[15] += c0[3:]
    fill[17] += [tr_pair(0)]
    fill[19] += c2[:1]; fill[20] += c2[1:2]
    fill[22] += cvt_D(acc(1), A2[0])[:1]; fill[23] += cvt_D(acc(1), A2[0])[1:]
    fill[24] += c2[2:3]; fill[25] += c2[3:]
    fill[27] += [tr_pair(2)]
    fill[29] += c4[:1]; fill[30] += c4[1:2]
    fill[32] += cvt_D(acc(3), A2[0] + 2)[:1]; fill[33] += cvt_D(acc(3), A2[0] + 2)[1:]
    k = 0
    for T in range(7):
        for sg in range(2, 7):
            p(qs(T, sg))
            for x in fill[k]: p(x)
            k += 1
    h2 = hreads(1)
    a6 = acc(6)
    p(c4[2]); p(c4[3])
    p('s_waitcnt lgkmcnt(0)')
    p(sm(0, 0)); p(tr_pair(4)); p(h2[0]); p(h2[1])
    p(cvt(a6, a6)); p(cvt(a6 + 1, a6 + 2))
    p(sm(0, 1)); p(h2[2])
    p(f'{MF16} {vr(acc(1), 4)}, {vr(a6, 2)}, {vr(SEL1, 2)}, 0')
    p(h2[3])
    p(sm(0, 2)); p(h2[4]); p(h2[5])
    for x in cvt_D(acc(5), A2[1]): p(x)
    for x in cvt_D(acc(1), A2[1] + 2): p(x)
    p('s_waitcnt lgkmcnt(4)'); p(sm(1, 0))
    p('s_waitcnt lgkmcnt(2)'); p(sm(1, 1))
    p('s_waitcnt lgkmcnt(0)'); p(sm(1, 2))
    m_, t0_, t1_ = Sa(0), Sa(1), Sa(2)
    p(f'{SW32} v{m_}, v{m_ + 1}\n{SW32} v{m_ + 2}, v{m_ + 3}')
    p(f'v_add_f32 v{m_}, v{m_}, v{m_ + 1}\nv_add_f32 v{m_ + 2}, v{m_ + 2}, v{m_ + 3}')
    p(f'ds_write2_b32 v{vMadd}, v{m_}, v{m_ + 2} offset0:0 offset1:40')
    p(f'{SW32} v{t0_}, v{t0_ + 1}\n{SW32} v{t1_}, v{t1_ + 1}')
    p(f'v_add_f32 v36, v{t0_}, v{t0_ + 1}\nv_add_f32 v37, v{t1_}, v{t1_ + 1}')
    p(dsw(vSadd, 'v[36:37]', 0, 2))
    p(f'{SW32} v{t0_ + 2}, v{t0_ + 3}\n{SW32} v{t1_ + 2}, v{t1_ + 3}')
    p(f'v_add_f32 v38, v{t0_ + 2}, v{t0_ + 3}\nv_add_f32 v39, v{t1_ + 2}, v{t1_ + 3}')
    p(dsw(vSadd, 'v[38:39]', 256, 2))
    p('s_waitcnt lgkmcnt(0)\ns_barrier')
    p(f'ds_read2_b32 v[84:85], v{vMrd} offset0:0 offset1:160')
    p(dsr('v86', vMrd, 1280, 1)); p(dsr('v87', vMrd, 1920, 1))
    for wv in range(4): p(dsr(vr(76 + 2 * wv, 2), vSrd, wv * 1024, 2))
    p('s_waitcnt lgkmcnt(4)')
    p('v_pk_add_f32 v[84:85], v[84:85], v[86:87]\nv_add_f32 v84, v84, v85')
    s0, s1, s2 = 84, 76, 77
    e0, e1, e2 = 85, 78, 79
    p(f'v_exp_f32 v{e0}, v{s0}')
    p('s_waitcnt lgkmcnt(2)')
    p('v_pk_add_f32 v[76:77], v[76:77], v[78:79]')
    p(f'v_cndmask_b32 v{e0}, v{e0}, 0, s[16:17]')
    p('s_waitcnt lgkmcnt(0)')
    p('v_pk_add_f32 v[80:81], v[80:81], v[82:83]\nv_pk_add_f32 v[76:77], v[76:77], v[80:81]')
    lab = p.uid('L_sm')
    p(f'v_max3_f32 v{vT0}, abs(v{s0}), abs(v{s1}), abs(v{s2})')
    p(f'v_cmp_nge_f32 vcc, s35, v{vT0}')
    p(f'v_exp_f32 v{e1}, v{s1}\nv_exp_f32 v{e2}, v{s2}')
    p(f's_cbranch_vccnz {lab}_max\n{lab}:')
    p(f'v_add_f32 v{vT0}, v{e0}, v{e1}\nv_add_f32 v{vT0}, v{vT0}, v{e2}')
    p(f'v_mov_b32_dpp v{vT1}, v{e0} quad_perm:[1,0,3,2] {DPP}')
    p(f'v_cndmask_b32 v{e1}, v{e1}, v{e0}, s[18:19]')
    p(f'v_add_f32_dpp v{vT0}, v{vT0}, v{vT0} row_ror:8 {DPP}')
    p(f'v_cndmask_b32 v{e2}, v{e2}, v{vT1}, s[18:19]')
    for sh in (4, 2, 1): p(f'v_add_f32_dpp v{vT0}, v{vT0}, v{vT0} row_ror:{sh} {DPP}')
    p(f'v_rcp_f32 v{vT0}, v{vT0}')
    p(f'v_mul_f32 v{e1}, v{e1}, v{vT0}\nv_mul_f32 v{e2}, v{e2}, v{vT0}')
    p(f'v_cvt_pk_bf16_f32 v{e1}, v{e1}, v{e2}\nv_min_u32 v{e1}, s34, v{e1}')
    p(st(f'v{e1}', vPt, 's22'))
    p(f's_add_u32 s23, s22, {OFF_PS - OFF_PF}')
    p(st(f'v{e1}', vPt, 's23', 0, 'sc1'))
    for r in range(36, 76): p(f'v_mov_b32 v{r}, 0')
    p(f's_sub_u32 s36, s33, s32\nv_add_u32 v{vX1}, s36, v{vX1}\nv_add_u32 v{vX2}, s36, v{vX2}\ns_mov_b32 s36, s32\ns_mov_b32 s32, s33\ns_mov_b32 s33, s36')
    p(f's_add_u32 s25, s25, 8192\ns_add_u32 s26, s25, {OFF_MS - OFF_MF}\ns_add_u32 s22, s22, 10240')
    p(f's_add_u32 s30, s30, 1\ns_cmp_lt_u32 s30, {NSTEP}\ns_cbranch_scc1 {loop}')
    p('s_branch L_exit')
    p(f'{lab}_max:')
    p(f'v_cndmask_b32 v{s0}, v{s0}, v{vNI}, s[16:17]')
    p(f'v_max3_f32 v{vT0}, v{s0}, v{s1}, v{s2}')
    for sh in (8, 4, 2, 1): p(f'v_max_f32_dpp v{vT0}, v{vT0}, v{vT0} row_ror:{sh} {DPP}')
    for s_ in (s0, s1, s2): p(f'v_sub_f32 v{s_}, v{s_}, v{vT0}')
    for e_, s_ in ((e0, s0), (e1, s1), (e2, s2)): p(f'v_exp_f32 v{e_}, v{s_}')
    p(f's_branch {lab}')

def y_phase(p, mA, Ya, Ww, W, IDX, vLW, rot, extra):
    def wread(sg):
        return [dsr(vr(Ww(2 * sg + nt) + 4 * q_, 4), vLW, ((nt * 7 + rot(sg)) * 2 + q_) * 1024) for nt in range(2) for q_ in range(2)]
    vi = iter(extra)
    for sg in range(7):
        if sg >= 2: p('s_waitcnt lgkmcnt(4)' if sg < 6 else 's_waitcnt lgkmcnt(0)')
        for nt in range(2):
            p(f'{SMF} {vr(Ya(3, nt), 4)}, {vr(mA(sg), 4)}, {vr(Ww(2 * sg + nt), 8)}, v{IDX}')
        wrd = wread(sg + 2) if sg + 2 < 7 else []
        for hh in range(3):
            for nt in range(2):
                p(f'{SMF} {vr(Ya(hh, nt), 4)}, {vr(mA(sg), 4)}, {W(hh, nt, sg)}, v{IDX}')
                if wrd: p(wrd.pop(0))
                if (hh, nt) in ((0, 1), (2, 1)):
                    x = next(vi, None)
                    if x: p(x)
    for x in vi: p(x)

def gen_B(p, w, cfg):
    LM, LO, LW = 0, 7168, 12288
    mA = lambda sg: 8 + 4 * sg
    Ya = lambda hh, nt: 36 + 8 * hh + 4 * nt
    Yop = lambda nt: 68 + 8 * nt
    Vi = lambda u, nt: 84 + 16 * u + 8 * nt
    Pt = lambda u: 116 + 4 * u
    Pm = 124
    Oa = lambda nt: 128 + 4 * nt
    Ww = lambda i: 136 + 8 * (i & 3)
    IDX, vL16, vPt, vPm, vOadd, vOrd, vL8, vLW = range(168, 176)
    vT0, vM, vF, vZ = 6, 5, 7, 4
    rot = lambda sg: L.slot_chunk(w, sg)
    def W(hh, nt, sg):
        i = (hh * 2 + nt) * 7 + sg
        return ar(8 * i, 8) if i < 32 else vr(176 + 8 * (i - 32), 8)
    p(f'v_lshlrev_b32 v{vL16}, 4, v0')
    p(f's_mul_i32 s13, s11, {4 * 112 * 1024}\ns_add_u32 s13, s13, {OFF_B + w * 112 * 1024}\ns_mov_b32 s15, {LW + w * 28672}')
    load_B_weights(p, vL16, rot, 's15')
    p(f'v_add_u32 v{vLW}, {LW + w * 28672}, v{vL16}')
    idx_reg(p, IDX)
    p(f'v_lshrrev_b32 v1, 4, v0\nv_and_b32 v2, 15, v0\nv_and_b32 v3, 7, v0')
    p(f'v_lshlrev_b32 v6, 4, v3\nv_add_u32 v6, {4 * w * 640}, v6')
    p(f'v_lshrrev_b32 v4, 1, v1\nv_mul_u32_u24 v7, 640, v4\nv_add_u32 v{vPt}, v6, v7')
    p(f'v_and_b32 v7, 1, v1\nv_lshlrev_b32 v7, 1, v7\nv_add3_u32 v7, v7, v5, 1\nv_lshl_add_u32 v{vPt}, v7, 7, v{vPt}')
    p(f'v_lshlrev_b32 v4, 1, v4\nv_add_u32 v4, v4, v5\nv_mul_u32_u24 v4, 640, v4\nv_add_u32 v{vPm}, v4, v6')
    p(f'v_and_b32 v4, 1, v1\nv_mul_u32_u24 v4, {4 * 40 * 4}, v4\nv_lshlrev_b32 v6, 2, v2\nv_add_u32 v4, v4, v6\nv_lshrrev_b32 v6, 1, v1\nv_lshlrev_b32 v6, 6, v6')
    p(f'v_add_u32 v4, v4, v6\nv_add_u32 v{vOadd}, {LO + w * 1280}, v4')
    p(f'v_lshrrev_b32 v4, 2, v0\nv_and_b32 v4, 7, v4\nv_mul_u32_u24 v4, 160, v4\nv_lshrrev_b32 v6, 5, v0\nv_lshlrev_b32 v6, 5, v6\nv_and_b32 v7, 3, v0\nv_lshlrev_b32 v7, 3, v7')
    p(f'v_add3_u32 v4, v4, v6, v7\nv_add_u32 v{vOrd}, {LO + (w & 1) * 64}, v4')
    p(f'v_lshlrev_b32 v{vL8}, 2, v0\nv_add_u32 v{vL8}, {(w & 1) * 256}, v{vL8}')
    p(f's_mov_b32 s34, 0xfffffffe\nv_mov_b32 v{vZ}, 0\nv_mov_b32 v{vM}, 0')
    t0, t1 = rot(0), rot(1)
    p(f's_mov_b32 s25, {OFF_MF}\ns_mov_b32 s26, {OFF_MS0}\ns_mov_b32 s27, {OFF_PF}')
    p(f's_mul_i32 s13, s11, 32768\ns_add_u32 s24, s13, {OFF_V + w * 8192}')
    p(f's_lshl_b32 s13, s11, 9\ns_add_u32 s28, s13, {OFF_MF + 8192}\ns_mov_b32 s29, 0x7ffffff0')
    p(f's_lshl_b32 s13, s11, 4\ns_add_u32 s33, s13, {OFF_VF + 4 * w}')
    for r in list(range(36, 68)) + list(range(128, 136)): p(f'v_mov_b32 v{r}, 0')
    p('s_mov_b32 s30, 0\ns_waitcnt vmcnt(0) lgkmcnt(0)\ns_barrier')
    prof(p, cfg, 3)
    vl = []
    for k in range(8):
        vl.append(ld(vr(84 + 4 * k, 4), vL16, 's24', (k & 3) * 1024) + (f'\ns_add_u32 s24, s24, {4096 if k == 3 else 14 * 32768 - 4096}' if (k & 3) == 3 else ''))
    mstore = [st(f'v{vM}', vL8, 's29', 0, 'sc1')] if w < 2 else []
    loop = p.uid('L_Bloop')
    p(f'{loop}:')
    p(f's_add_u32 s20, s25, {t0 * 1024}\ns_add_u32 s21, s25, {t1 * 1024}\ns_mov_b32 s22, s27')
    for sg in range(2):
        for nt in range(2):
            for q_ in range(2): p(dsr(vr(Ww(2 * sg + nt) + 4 * q_, 4), vLW, ((nt * 7 + rot(sg)) * 2 + q_) * 1024))
    if cfg.get('b_delay'): p(f's_sleep {cfg["b_delay"]}')
    chk = [mA(0) + i for i in range(8)] + [vF]
    fast_poll(p, [ld(vr(mA(0), 4), vL16, 's20'), ld(vr(mA(1), 4), vL16, 's21'), ld(f'v{vF}', vZ, 's33', n=1)], chk, vT0,
              cfg.get('bdepth', 1), cfg.get('space', 2), [], [],
              mstore + [f's_add_u32 s20, s26, {t0 * 1024}', f's_add_u32 s21, s26, {t1 * 1024}'])
    p(dsw(vL16, vr(mA(0), 4), LM + t0 * 1024))
    if w != 3: p(dsw(vL16, vr(mA(1), 4), LM + t1 * 1024))
    for x in vl + mstore: p(x)
    p('s_waitcnt lgkmcnt(0)\ns_barrier')
    for sg in range(2, 7): p(dsr(vr(mA(sg), 4), vL16, LM + rot(sg) * 1024))
    y_phase(p, mA, Ya, Ww, W, IDX, vLW, rot, [])
    for hh in (3, 0, 1, 2):
        for nt in range(2):
            for rp in range(2): p(cvt(Yop(nt) + 4 * (hh >> 1) + 2 * rp + (hh & 1), Ya(hh, nt) + 2 * rp))
    if cfg.get('p_delay'): p(f's_sleep {cfg["p_delay"]}')
    loads = [ld(vr(Pt(0), 4), vPt, 's22'), ld(vr(Pt(1), 4), vPt, 's22', 1280), ld(vr(Pm, 4), vPm, 's22')]
    om = []
    for u in range(2):
        for nt in range(2): om.append(f'{SMF} {vr(Oa(nt), 4)}, {vr(Pt(u), 4)}, {vr(Vi(u, nt), 8)}, v{IDX}')
    for nt in range(2): om.append(f'{SMF} {vr(Oa(nt), 4)}, {vr(Pm, 4)}, {vr(Yop(nt), 8)}, v{IDX}')
    fast_poll(p, loads, list(range(116, 128)), vT0, cfg.get('pdepth', 2), cfg.get('space', 2), om[:2],
              [f'v_mov_b32 v{r}, 0' for r in range(128, 136)], [f's_add_u32 s22, s27, {OFF_PS - OFF_PF}'])
    for x in om[2:]: p(x)
    o0, o1 = Oa(0), Oa(1)
    for r in range(2): p(f'{SW32} v{o0 + r}, v{o1 + r}')
    p(f'v_pk_add_f32 v[{o0}:{o0 + 1}], v[{o0}:{o0 + 1}], v[{o1}:{o1 + 1}]')
    p(f'ds_write2_b32 v{vOadd}, v{o0}, v{o0 + 1} offset0:0 offset1:40')
    for r in range(2, 4): p(f'{SW32} v{o0 + r}, v{o1 + r}')
    p(f'v_pk_add_f32 v[{o0 + 2}:{o0 + 3}], v[{o0 + 2}:{o0 + 3}], v[{o1 + 2}:{o1 + 3}]')
    p(f'ds_write2_b32 v{vOadd}, v{o0 + 2}, v{o0 + 3} offset0:80 offset1:120')
    p('s_waitcnt lgkmcnt(0)\ns_barrier')
    if w < 2:
        for wv in range(4): p(dsr(vr(36 + 2 * wv, 2), vOrd, wv * 1280, 2))
        p('s_waitcnt lgkmcnt(2)\nv_pk_add_f32 v[36:37], v[36:37], v[38:39]\ns_waitcnt lgkmcnt(0)\nv_pk_add_f32 v[40:41], v[40:41], v[42:43]')
        p('v_pk_add_f32 v[36:37], v[36:37], v[40:41]')
        p(f'v_cvt_pk_bf16_f32 v{vM}, v36, v37\nv_min_u32 v{vM}, s34, v{vM}')
        p(st(f'v{vM}', vL8, 's28'))
    for r in list(range(36, 68)) + list(range(128, 136)): p(f'v_mov_b32 v{r}, 0')
    p(f's_add_u32 s29, s28, {OFF_MS - OFF_MF}\ns_add_u32 s28, s28, 8192')
    p(f's_add_u32 s25, s25, 8192\ns_add_u32 s26, s25, {OFF_MS - OFF_MF}\ns_add_u32 s27, s27, 10240\ns_add_u32 s33, s33, 256')
    p(f's_add_u32 s30, s30, 1\ns_cmp_lt_u32 s30, {NSTEP}\ns_cbranch_scc1 {loop}')
    for x in mstore: p(x)
    p('s_branch L_exit')

def gen_pref(p, cfg):
    ahead = cfg.get('ahead', 2)
    p('s_lshl_b32 s11, s11, 2\ns_add_u32 s11, s11, s12')
    p('v_lshlrev_b32 v1, 7, v0')
    p(f's_mul_i32 s13, s11, {28 * 128}\ns_add_u32 s13, s13, {OFF_XN}\nv_add_u32 v2, s13, v1\nv_mov_b32 v3, 28672')
    p(f's_mul_i32 s13, s11, 1280\ns_add_u32 s13, s13, {OFF_PF - 28 * 128}\nv_add_u32 v4, s13, v1\nv_mov_b32 v5, 10240')
    p('v_cmp_lt_u32 vcc, 27, v0\nv_cndmask_b32 v2, v2, v4, vcc\nv_cndmask_b32 v3, v3, v5, vcc')
    p(f's_mul_i32 s13, s11, 896\ns_add_u32 s13, s13, {OFF_MF + 8192 - 38 * 128}\nv_add_u32 v4, s13, v1\nv_mov_b32 v5, 8192')
    p('v_cmp_lt_u32 vcc, 37, v0\nv_cndmask_b32 v2, v2, v4, vcc\nv_cndmask_b32 v3, v3, v5, vcc')
    p(f'v_add_u32 v4, {OFF_VF - 45 * 128}, v1\nv_mov_b32 v5, 256')
    p('v_cmp_lt_u32 vcc, 44, v0\nv_cndmask_b32 v2, v2, v4, vcc\nv_cndmask_b32 v3, v3, v5, vcc')
    p(f'v_mov_b32 v6, 0\ns_mov_b32 s20, {OFF_MS}\ns_mov_b32 s30, 0')
    loop = p.uid('L_pf')
    p(f'{loop}:')
    p(f's_cmp_le_u32 s30, {ahead}\ns_cbranch_scc1 {loop}_go')
    p(f's_add_u32 s20, s20, 8192\ns_sub_u32 s21, s20, {OFF_MS - OFF_MF}\ns_mov_b32 s31, 0')
    p(f'{loop}_poll:')
    p(f's_sleep {cfg.get("pf_sleep", 8)}\ns_mov_b64 exec, 1\n' + ld('v7', 6, 's21', n=1))
    p(f's_add_u32 s31, s31, 1\ns_cmp_ge_u32 s31, 16\ns_cselect_b32 s21, s20, s21\ns_cmp_gt_u32 s31, {TMO}\ns_cbranch_scc1 {FAIL}\ns_waitcnt vmcnt(0)')
    p(f'v_cmp_eq_u32 vcc, -1, v7\ns_mov_b64 exec, -1\ns_cbranch_vccnz {loop}_poll')
    p(f'{loop}_go:')
    p('s_mov_b32 exec_hi, 0x7fff\n' + ld('v8', 2, '0', n=1) + '\nv_add_u32 v2, v2, v3\ns_mov_b64 exec, -1')
    p(f's_add_u32 s30, s30, 1\ns_cmp_lt_u32 s30, {NSTEP}\ns_cbranch_scc1 {loop}')
    p('s_branch L_exit')
```

```python
from common import *
from rroles import load_A_weights, load_B_weights, idx_reg, y_phase

NREP = 4
ident = lambda sg: sg

def dma_linear(p, vL16, so, lds_sreg, n):
    out = []
    for k in range(n):
        if (k & 3) == 0: out.append(f's_add_u32 m0, {lds_sreg}, {k * 1024}')
        out.append(lddma(vL16, so, (k & 3) * 1024))
        if (k & 3) == 3 and k + 1 < n: out.append(f's_add_u32 {so}, {so}, 4096')
    for x in out: p(x)

def ms_off(p, dst, seg):
    p(f's_lshl_b32 {dst}, {seg}, 13\ns_add_u32 {dst}, {dst}, {OFF_MS}\ns_cmp_eq_u32 {seg}, 0\ns_cselect_b32 {dst}, {OFF_MS0}, {dst}')

def gen_TA(p, cfg):
    LP, LN, LR = 0, 28672, 57344
    acc = lambda T: 8 + 4 * T
    Q = lambda qt, u: 36 + 16 * qt + 4 * u
    Xw = lambda b: 68 + 4 * b
    Sm = lambda qt: 76 + 4 * qt
    S00, S01, S11 = 84, 88, 92
    Hw = lambda i: 96 + 4 * i
    vL16, vHa, vHb, vHc, vMa, vMb, vMc, vT0, vZ, vPM, vQ = range(108, 119)
    def Wh(T, ks):
        i = T * 7 + (ks >> 1); q = ks & 1
        return ar(8 * i + 4 * q, 4) if i < 32 else vr(120 + 8 * (i - 32) + 4 * q, 4)
    p(f'v_lshlrev_b32 v{vL16}, 4, v0\nv_mov_b32 v{vZ}, 0')
    if cfg.get('ta_wait', 1):
        p(f's_lshl_b32 s13, s37, 8\ns_add_u32 s13, s13, {OFF_VF}')
        slow_poll(p, [ld('v1', vZ, 's13', n=1)], [1], vT0, sleep=16)
    p(f's_lshl_b32 s13, s11, 2\ns_add_u32 s13, s13, s12\ns_mul_i32 s13, s13, {98 * 1024}\ns_add_u32 s13, s13, {OFF_A}')
    load_A_weights(p, vL16, ident)
    p('v_lshrrev_b32 v1, 4, v0\nv_and_b32 v2, 15, v0')
    emit_pos(p, 3, 2, 4, 5)
    p('s_lshr_b32 s13, s12, 1\ns_mul_i32 s13, s13, 28\ns_and_b32 s14, s12, 1\ns_lshl_b32 s15, s14, 3\ns_add_u32 s15, s15, s13')
    p('v_lshlrev_b32 v4, 1, v1\nv_add_u32 v4, s15, v4')
    p('s_lshl_b32 s15, s14, 2\ns_add_u32 s15, s15, s13\ns_add_u32 s15, s15, 16\nv_add_u32 v5, s15, v1')
    p('s_add_u32 s15, s13, 24\nv_add_u32 v6, s15, v1')
    p(f'v_lshlrev_b32 v3, 4, v3\nv_add_u32 v3, {LN}, v3\nv_and_b32 v7, 7, v0\nv_lshlrev_b32 v7, 4, v7')
    for d, m_, s_ in ((vHa, vMa, 4), (vHb, vMb, 5), (vHc, vMc, 6)):
        p(f'v_lshl_add_u32 v{d}, v{s_}, 9, v3\nv_lshl_add_u32 v{m_}, v{s_}, 7, v7')
    p('s_cmp_eq_u32 s14, 0\ns_cselect_b64 s[16:17], -1, 0')
    p(f'v_lshlrev_b32 v4, 2, v1\nv_sub_u32 v{vQ}, v2, v4')
    p(f's_and_b32 s13, s11, 1\ns_lshl_b32 s13, s13, 3\nv_add_u32 v4, s13, v{vL16}\nv_mov_b32 v5, 0x7ffffff0\nv_cmp_gt_u32 vcc, 32, v0\nv_cndmask_b32 v{vPM}, v5, v4, vcc')
    p('s_mul_i32 s26, s12, 7168\ns_mov_b32 s30, s37')
    p(f's_add_u32 s27, s26, {LN}\ns_mov_b32 s35, 0xff800000')
    def xissue(seg):
        p(f's_mul_i32 s13, {seg}, 28672\ns_add_u32 s13, s13, s26\ns_add_u32 s24, s13, {OFF_XP}\ns_add_u32 s25, s13, {OFF_XN}')
        dma_linear(p, vL16, 's24', 's26', 7); dma_linear(p, vL16, 's25', 's27', 7)
    xissue('s30')
    loop = p.uid('L_TA')
    p(f'{loop}:')
    p('s_waitcnt vmcnt(0)\ns_barrier')
    for qt in range(2):
        p(dsr(vr(Xw(0), 4), vL16, LP + qt * 1024))
        for ks in range(14):
            if ks < 13: p(dsr(vr(Xw((ks + 1) & 1), 4), vL16, LP + (ks + 1) * 2048 + qt * 1024))
            p(f's_waitcnt lgkmcnt({1 if ks < 13 else 0})')
            for T in range(7):
                p(f'{MF32} {vr(acc(T), 4)}, {Wh(T, ks)}, {vr(Xw(ks & 1), 4)}, {"0" if ks == 0 else vr(acc(T), 4)}')
        for u in range(3):
            for rp in range(2):
                for n4 in range(2): p(cvt(Q(qt, u) + 2 * rp + n4, acc(2 * u + n4) + 2 * rp))
        for rp in range(2):
            p(cvt(vT0, acc(6) + 2 * rp))
            p(f'v_cndmask_b32 v{Q(qt, 3) + 2 * rp}, 0, v{vT0}, s[16:17]\nv_cndmask_b32 v{Q(qt, 3) + 2 * rp + 1}, v{vT0}, 0, s[16:17]')
    haddr = [(vHa, 0), (vHa, 512), (vHb, 0), (vHc, 0)]
    for u in range(4):
        va, o = haddr[u]
        p(dsr(vr(Hw(0), 4), va, o)); p(dsr(vr(Hw(1), 4), va, o + 16))
        c = lambda r: '0' if u == 0 else vr(r, 4)
        p('s_waitcnt lgkmcnt(1)')
        p(f'{MF32} {vr(S00, 4)}, {vr(Hw(0), 4)}, {vr(Q(0, u), 4)}, {c(S00)}')
        p(f'{MF32} {vr(S01, 4)}, {vr(Hw(0), 4)}, {vr(Q(1, u), 4)}, {c(S01)}')
        p('s_waitcnt lgkmcnt(0)')
        p(f'{MF32} {vr(S11, 4)}, {vr(Hw(1), 4)}, {vr(Q(1, u), 4)}, {c(S11)}')
    p('s_barrier')
    lab = p.uid('L_TAx')
    p(f's_add_u32 s29, s30, {NREP}\ns_cmp_lt_u32 s29, 64\ns_cbranch_scc0 {lab}')
    xissue('s29')
    p(f'{lab}:')
    ms_off(p, 's20', 's30')
    maddr = [(vMa, 0), (vMa, 128), (vMb, 0), (vMc, 0)]
    slow_poll(p, [ld(vr(8 + 4 * u, 4), maddr[u][0], 's20', maddr[u][1]) for u in range(4)], list(range(8, 24)), vT0, sleep=cfg.get('t_sleep', 4))
    for u in range(4):
        for qt in range(2):
            p(f'{MF32} {vr(Sm(qt), 4)}, {vr(8 + 4 * u, 4)}, {vr(Q(qt, u), 4)}, {"0" if u == 0 else vr(Sm(qt), 4)}')
    p(f's_mul_i32 s13, s12, 5120\ns_add_u32 s13, s13, {LR}\nv_add_u32 v1, s13, v{vL16}')
    for i, r in enumerate((S00, S01, S11, Sm(0), Sm(1))): p(dsw(1, vr(r, 4), 1024 * i))
    p('s_waitcnt lgkmcnt(0)\ns_barrier')
    skip = p.uid('L_TAs')
    p(f's_cmp_gt_u32 s12, 1\ns_cbranch_scc1 {skip}')
    p(f's_lshl_b32 s13, s12, 10\ns_add_u32 s13, s13, {LR}\nv_add_u32 v1, s13, v{vL16}\nv_add_u32 v2, {LR}, v{vL16}')
    for wv in range(4):
        p(dsr(vr(8 + 12 * wv, 4), 1, wv * 5120 + 3072)); p(dsr(vr(12 + 12 * wv, 4), 1, wv * 5120)); p(dsr(vr(16 + 12 * wv, 4), 2, wv * 5120 + 2048))
    p('s_waitcnt lgkmcnt(0)')
    for r in range(0, 12, 2):
        p(f'v_pk_add_f32 v[{8 + r}:{9 + r}], v[{8 + r}:{9 + r}], v[{20 + r}:{21 + r}]\nv_pk_add_f32 v[{32 + r}:{33 + r}], v[{32 + r}:{33 + r}], v[{44 + r}:{45 + r}]')
    for r in range(0, 12, 2): p(f'v_pk_add_f32 v[{8 + r}:{9 + r}], v[{8 + r}:{9 + r}], v[{32 + r}:{33 + r}]')
    p('v_mov_b32 v3, s35\nv_cmp_gt_u32 vcc, 32, v0')
    for r in range(4): p(f'v_cndmask_b32 v{8 + r}, v3, v{8 + r}, vcc')
    p(f's_lshl_b32 s13, s12, 4\nv_add_u32 v4, s13, v{vQ}\nv_subrev_u32 v5, 16, v4')
    for r in range(4):
        p(f'v_cmp_le_i32 vcc, {r}, v4\nv_cndmask_b32 v{12 + r}, v3, v{12 + r}, vcc')
        p(f'v_cmp_le_i32 vcc, {r}, v5\nv_cndmask_b32 v{16 + r}, v3, v{16 + r}, vcc')
    def allred(op, r):
        p(f'v_mov_b32 v7, v{r}\n{SW16} v{r}, v7\n{op} v{r}, v{r}, v7\nv_mov_b32 v7, v{r}\n{SW32} v{r}, v7\n{op} v{r}, v{r}, v7')
    p('v_max3_f32 v6, v8, v9, v10')
    for r in range(11, 19, 2): p(f'v_max3_f32 v6, v6, v{r}, v{r + 1}')
    p('v_max_f32 v6, v6, v19')
    allred('v_max_f32', 6)
    for r in range(8, 20): p(f'v_sub_f32 v{r}, v{r}, v6')
    for r in range(8, 20): p(f'v_exp_f32 v{r}, v{r}')
    p('v_add_f32 v6, v8, v9')
    for r in range(10, 20): p(f'v_add_f32 v6, v6, v{r}')
    allred('v_add_f32', 6)
    p('v_rcp_f32 v6, v6')
    for r in range(8, 20): p(f'v_mul_f32 v{r}, v{r}, v6')
    for r in range(2): p(cvt(24 + r, 8 + 2 * r))
    for r in range(4): p(cvt(20 + r, 12 + 2 * r))
    p(f's_lshl_b32 s13, s30, 5\ns_lshl_b32 s14, s11, 1\ns_add_u32 s13, s13, s14\ns_add_u32 s13, s13, s12')
    p(f's_lshl_b32 s14, s13, 10\ns_add_u32 s14, s14, {OFF_PT}')
    p(st('v[20:23]', vL16, 's14', 0, 'sc1', n=4))
    p(f's_lshl_b32 s14, s30, 4\ns_and_b32 s15, s11, 14\ns_add_u32 s14, s14, s15\ns_add_u32 s14, s14, s12\ns_lshl_b32 s14, s14, 9\ns_add_u32 s14, s14, {OFF_PM}')
    p(st('v[24:25]', vPM, 's14', 0, 'sc1', n=2))
    p(f's_lshl_b32 s13, s13, 2\ns_add_u32 s13, s13, {OFF_TF}\ns_waitcnt vmcnt(0)\ns_mov_b64 exec, 1')
    p(st(f'v{vZ}', vZ, 's13', 0, 'sc1'))
    p(f's_mov_b64 exec, -1\n{skip}:')
    p(f's_add_u32 s30, s30, {NREP}\ns_cmp_lt_u32 s30, 64\ns_cbranch_scc1 {loop}')
    p('s_branch L_exit')

def gen_TB(p, cfg):
    LW, LP = 0, 114688
    acc = lambda hh, nt, tt: 8 + 16 * hh + 8 * nt + 4 * tt
    Xw = lambda b, tt: 72 + 8 * b + 4 * tt
    W1 = lambda b, nt: 88 + 8 * b + 4 * nt
    Vi = lambda u, nt: 104 + 16 * u + 8 * nt
    mA = lambda sg: 8 + 4 * sg
    Ya = lambda hh, nt: 36 + 8 * hh + 4 * nt
    Yop = lambda nt: 68 + 8 * nt
    Oa = lambda qt, nt: 84 + 8 * qt + 4 * nt
    Ww = lambda i: 136 + 8 * (i & 3)
    IDX, vL16, vLW, vXr, vZ, vT0, vPM, vRw = range(168, 176)
    vRr, vXo, vFl, vMl = 100, 101, 102, 103
    def Wreg(hh, nt, sg):
        i = (hh * 2 + nt) * 7 + sg
        return ar(8 * i, 8) if i < 32 else vr(176 + 8 * (i - 32), 8)
    def Wh(hh, nt, ks):
        i = (hh * 2 + nt) * 7 + (ks >> 1); q = ks & 1
        return ar(8 * i + 4 * q, 4) if i < 32 else vr(176 + 8 * (i - 32) + 4 * q, 4)
    p(f'v_lshlrev_b32 v{vL16}, 4, v0\nv_mov_b32 v{vZ}, 0')
    p(f's_mul_i32 s26, s12, 7168\ns_add_u32 s27, s26, {LP}\ns_mov_b32 s30, s37')
    def xissue(seg):
        p(f's_mul_i32 s13, {seg}, 28672\ns_add_u32 s13, s13, s26\ns_add_u32 s24, s13, {OFF_XP}')
        dma_linear(p, vL16, 's24', 's27', 7)
    xissue('s30')
    p(f's_lshl_b32 s13, s11, 2\ns_add_u32 s13, s13, s12\ns_mul_i32 s13, s13, {112 * 1024}\ns_add_u32 s13, s13, {OFF_B}\ns_mul_i32 s15, s12, 28672')
    load_B_weights(p, vL16, ident, 's15')
    p(f'v_add_u32 v{vLW}, s15, v{vL16}\nv_add_u32 v{vXr}, {LP}, v{vL16}')
    idx_reg(p, IDX)
    p(f's_lshl_b32 s13, s11, 15\ns_lshl_b32 s14, s12, 13\ns_add_u32 s13, s13, s14\ns_add_u32 s28, s13, {OFF_V}')
    p(f's_lshl_b32 s13, s11, 4\ns_lshl_b32 s14, s12, 2\ns_add_u32 s13, s13, s14\ns_add_u32 s29, s13, {OFF_VF}')
    loop = p.uid('L_TB1')
    p(f'{loop}:')
    p('s_waitcnt vmcnt(0)\ns_barrier')
    def rd(ks):
        b = ks & 1
        return [dsr(vr(Xw(b, tt), 4), vXr, ks * 2048 + tt * 1024) for tt in range(2)] + \
               [dsr(vr(W1(b, nt), 4), vLW, (nt * 14 + ks) * 1024) for nt in range(2)]
    for x in rd(0): p(x)
    for ks in range(14):
        p('s_waitcnt lgkmcnt(0)')
        nxt = rd(ks + 1) if ks < 13 else []
        for hh in range(4):
            for nt in range(2):
                for tt in range(2):
                    wop = Wh(hh, nt, ks) if hh < 3 else vr(W1(ks & 1, nt), 4)
                    p(f'{MF32} {vr(acc(hh, nt, tt), 4)}, {vr(Xw(ks & 1, tt), 4)}, {wop}, {"0" if ks == 0 else vr(acc(hh, nt, tt), 4)}')
                    if nxt: p(nxt.pop(0))
    p('s_barrier')
    lab = p.uid('L_TBx')
    p(f's_add_u32 s32, s30, {NREP}\ns_cmp_lt_u32 s32, 63\ns_cbranch_scc0 {lab}_n' if False else f's_add_u32 s32, s30, {NREP}\ns_cmp_lt_u32 s32, 64\ns_cbranch_scc0 {lab}')
    xissue('s32')
    p(f'{lab}:')
    for hh in range(4):
        for nt in range(2):
            for tt in range(2):
                for rp in range(2): p(cvt(Vi(hh >> 1, nt) + 4 * (hh & 1) + 2 * tt + rp, acc(hh, nt, tt) + 2 * rp))
    p(f's_mul_i32 s13, s30, {14 * 32768}\ns_add_u32 s13, s13, s28')
    for k in range(8):
        p(st(vr(104 + 4 * k, 4), vL16, 's13', (k & 3) * 1024, 'sc1', n=4))
        if k == 3: p('s_add_u32 s13, s13, 4096')
    p(f's_lshl_b32 s13, s30, 8\ns_add_u32 s13, s13, s29\ns_waitcnt vmcnt(0)\ns_mov_b64 exec, 1')
    p(st(f'v{vZ}', vZ, 's13', 0, 'sc1'))
    p(f's_mov_b64 exec, -1\ns_mov_b32 s30, s32\ns_cmp_lt_u32 s30, 64\ns_cbranch_scc1 {loop}')
    prof(p, cfg, 4)
    p('v_lshrrev_b32 v1, 4, v0\nv_and_b32 v2, 15, v0')
    p(f'v_and_b32 v3, 31, v0\nv_lshlrev_b32 v{vPM}, 4, v3')
    p(f's_mul_i32 s13, s12, 4608\ns_add_u32 s13, s13, {LP}\nv_mul_u32_u24 v3, 144, v2\nv_lshlrev_b32 v4, 4, v1\nv_add3_u32 v{vRw}, v3, v4, s13')
    p(f's_lshl_b32 s13, s12, 3\nv_lshrrev_b32 v3, 3, v0\nv_add_u32 v3, s13, v3\nv_and_b32 v4, 7, v0')
    p(f'v_mul_u32_u24 v5, 144, v3\nv_lshlrev_b32 v6, 4, v4\nv_add_u32 v5, v5, v6\nv_add_u32 v{vRr}, {LP}, v5')
    p(f's_lshl_b32 s13, s11, 6\nv_mul_u32_u24 v5, 896, v3\nv_lshlrev_b32 v6, 3, v4\nv_add3_u32 v{vXo}, v5, v6, s13')
    p(f's_lshl_b32 s13, s12, 5\nv_and_b32 v3, 7, v0\nv_lshlrev_b32 v3, 2, v3\nv_add_u32 v{vFl}, s13, v3')
    p(f'v_min_u32 v3, 27, v0\nv_lshlrev_b32 v{vMl}, 8, v3')
    p('s_mov_b32 s30, s37\ns_mov_b32 s34, 0xffff0000')
    loop = p.uid('L_TB2')
    p(f'{loop}:')
    p(f's_mul_i32 s13, s30, {14 * 32768}\ns_add_u32 s13, s13, s28')
    for k in range(8):
        p(ld(vr(104 + 4 * k, 4), vL16, 's13', (k & 3) * 1024))
        if k == 3: p('s_add_u32 s13, s13, 4096')
    for sg in range(2):
        for nt in range(2):
            for q_ in range(2): p(dsr(vr(Ww(2 * sg + nt) + 4 * q_, 4), vLW, ((nt * 7 + sg) * 2 + q_) * 1024))
    for r in range(36, 68): p(f'v_mov_b32 v{r}, 0')
    p(f's_lshl_b32 s21, s30, 2\ns_add_u32 s21, s21, {OFF_GF}')
    ms_off(p, 's20', 's30')
    p('s_add_u32 s22, s20, 4096')
    slow_poll(p, [ld('v1', vMl, 's20', n=1), ld('v2', vZ, 's21', n=1)], [1, 2], vT0, sleep=cfg.get('t_sleep', 4))
    p(f's_mul_i32 s23, s30, 28672\ns_add_u32 s25, s23, {OFF_G}')
    p(ld('v[2:3]', vXo, 's23', fl='', n=2, srd=XS)); p(ld('v[4:5]', vXo, 's25', n=2))
    slow_poll(p, [ld(vr(mA(t), 4), vL16, 's20' if t < 4 else 's22', (t & 3) * 1024) for t in range(7)], list(range(8, 36)), vT0, sleep=1)
    p('s_waitcnt lgkmcnt(0)')
    y_phase(p, mA, Ya, Ww, Wreg, IDX, vLW, ident, [])
    for hh in (3, 0, 1, 2):
        for nt in range(2):
            for rp in range(2): p(cvt(Yop(nt) + 2 * hh + rp, Ya(hh, nt) + 2 * rp))
    p(f's_lshl_b32 s21, s30, 7\ns_add_u32 s21, s21, {OFF_TF}')
    slow_poll(p, [ld('v1', vFl, 's21', n=1)], [1], vT0, sleep=cfg.get('t_sleep', 4))
    PT = lambda hh, qt: 8 + 8 * hh + 4 * qt
    PMm = lambda p3, qt: 40 + 8 * p3 + 4 * qt
    p(f's_lshl_b32 s13, s30, 15\ns_lshl_b32 s14, s12, 13\ns_add_u32 s13, s13, s14\ns_add_u32 s13, s13, {OFF_PT}')
    for k in range(8):
        p(ld(vr(8 + 4 * k, 4), vL16, 's13', (k & 3) * 1024))
        if k == 3: p('s_add_u32 s13, s13, 4096')
    p(f's_lshl_b32 s13, s30, 13\ns_lshl_b32 s14, s12, 11\ns_add_u32 s13, s13, s14\ns_add_u32 s13, s13, {OFF_PM}')
    for k in range(4): p(ld(vr(40 + 4 * k, 4), vPM, 's13', k * 512))
    for hh in range(4):
        p(f's_waitcnt vmcnt({10 - 2 * hh})')
        for qt in range(2):
            for nt in range(2):
                p(f'{MF32} {vr(Oa(qt, nt), 4)}, {vr(Vi(hh >> 1, nt) + 4 * (hh & 1), 4)}, {vr(PT(hh, qt), 4)}, {"0" if hh == 0 else vr(Oa(qt, nt), 4)}')
    for p3 in range(2):
        p(f's_waitcnt vmcnt({2 - 2 * p3})')
        for qt in range(2):
            for nt in range(2):
                p(f'{MF32} {vr(Oa(qt, nt), 4)}, {vr(Yop(nt) + 4 * p3, 4)}, {vr(PMm(p3, qt), 4)}, {vr(Oa(qt, nt), 4)}')
    p('s_barrier')
    for qt in range(2):
        for nt in range(2): p(dsw(vRw, vr(Oa(qt, nt), 4), qt * 16 * 144 + nt * 64))
    p('s_waitcnt lgkmcnt(0)\ns_barrier')
    for wv in range(4): p(dsr(vr(8 + 4 * wv, 4), vRr, wv * 4608))
    p('v_lshlrev_b32 v24, 16, v2\nv_and_b32 v25, s34, v2\nv_lshlrev_b32 v26, 16, v3\nv_and_b32 v27, s34, v3')
    p('v_lshlrev_b32 v28, 16, v4\nv_and_b32 v29, s34, v4\nv_lshlrev_b32 v30, 16, v5\nv_and_b32 v31, s34, v5')
    p('s_waitcnt lgkmcnt(0)')
    p('v_pk_add_f32 v[8:9], v[8:9], v[12:13]\nv_pk_add_f32 v[10:11], v[10:11], v[14:15]\nv_pk_add_f32 v[16:17], v[16:17], v[20:21]\nv_pk_add_f32 v[18:19], v[18:19], v[22:23]')
    p('v_pk_add_f32 v[8:9], v[8:9], v[16:17]\nv_pk_add_f32 v[10:11], v[10:11], v[18:19]')
    def rnd():
        p(cvt(12, 8)); p(cvt(13, 10))
        p('v_lshlrev_b32 v8, 16, v12\nv_and_b32 v9, s34, v12\nv_lshlrev_b32 v10, 16, v13\nv_and_b32 v11, s34, v13')
    rnd()
    p('v_pk_mul_f32 v[8:9], v[8:9], v[28:29]\nv_pk_mul_f32 v[10:11], v[10:11], v[30:31]')
    rnd()
    p('v_pk_add_f32 v[8:9], v[8:9], v[24:25]\nv_pk_add_f32 v[10:11], v[10:11], v[26:27]')
    p(cvt(6, 8)); p(cvt(7, 10))
    p(st('v[6:7]', vXo, 's23', 0, '', n=2, srd=OUT))
    p(f's_add_u32 s30, s30, {NREP}\ns_cmp_lt_u32 s30, 64\ns_cbranch_scc1 {loop}')
    p('s_branch L_exit')

def gen_FFN(p, cfg):
    LB = 131072
    Ga = lambda nt, tt: 8 * nt + 4 * tt
    Ha = lambda ft, tt: 8 + 8 * ft + 4 * tt
    Hop = lambda ks, tt: 40 + 8 * ks + 4 * tt
    Wf = lambda b, i: 56 + 16 * b + 4 * i
    Xf = lambda ks, tt: 128 + 8 * ks + 4 * tt
    vL16, vS1, vS2, vB, vZ = 88, 89, 91, 92, 93
    vR1, vR2 = 96, 100
    srd(p, 80, 56, 448 * 3584); srd(p, 84, 60, 1792 * 896); srd(p, 88, 58, 3584); srd(p, 92, 62, 896)
    p(f'v_lshlrev_b32 v{vL16}, 4, v0\nv_mov_b32 v{vZ}, 0')
    p(f's_lshl_b32 s13, s12, 10\ns_add_u32 m0, s13, {LB}')
    p(lddma(vL16, 's13', fl='', srd=R2))
    p(f's_mov_b32 m0, {LB + 4096}')
    p(lddma(vL16, '0', fl='', srd=R3))
    p('v_lshrrev_b32 v1, 4, v0\nv_and_b32 v2, 15, v0')
    emit_pos(p, 3, 2, 4, 5)
    p(f'v_lshlrev_b32 v3, 4, v3\nv_lshl_add_u32 v3, v1, 9, v3\ns_mul_i32 s13, s11, 28672\ns_add_u32 s13, s13, {OFF_XN}')
    for ks in range(14):
        for tt in range(2): p(ld(vr(Xf(ks, tt), 4), 3, 's13', (ks & 1) * 2048 + tt * 16))
        if ks & 1: p('s_add_u32 s13, s13, 4096')
    for r in range(224): p(f'v_accvgpr_write_b32 a{r}, 0')
    p('v_lshrrev_b32 v4, 3, v0\nv_and_b32 v5, 7, v0')
    p(f'v_and_b32 v6, 2, v4\nv_xor_b32 v6, v6, v5\nv_lshlrev_b32 v6, 4, v6\nv_mul_u32_u24 v7, 3584, v4\nv_add_u32 v{vS1}, v6, v7\nv_xor_b32 v{vS1 + 1}, 64, v{vS1}')
    p(f'v_and_b32 v6, 6, v4\nv_xor_b32 v6, v6, v5\nv_lshlrev_b32 v6, 4, v6\nv_mul_u32_u24 v7, 896, v4\nv_add_u32 v{vS2}, v6, v7')
    p('s_lshl_b32 s26, s12, 15\nv_lshrrev_b32 v4, 2, v2\nv_and_b32 v5, 3, v0\nv_lshlrev_b32 v5, 3, v5\nv_add_u32 v5, s26, v5')
    p('v_lshrrev_b32 v6, 1, v4\nv_and_b32 v7, 1, v1\nv_lshl_add_u32 v6, v7, 1, v6')
    p('v_lshl_add_u32 v7, v1, 3, v4\nv_lshl_add_u32 v8, v7, 7, v5\nv_lshl_add_u32 v7, v1, 2, v4\nv_lshl_add_u32 v9, v7, 7, v5')
    for i in range(4):
        p(f'v_xor_b32 v7, {i}, v6\nv_lshl_add_u32 v{vR1 + i}, v7, 5, v8\nv_lshl_add_u32 v{vR2 + i}, v7, 5, v9')
    p(f's_mul_i32 s13, s12, 896\ns_add_u32 s13, s13, {LB}\nv_lshlrev_b32 v7, 3, v1\nv_add_u32 v{vB}, s13, v7')
    p('s_mul_i32 s20, s12, 896\ns_mul_i32 s21, s12, 401408')
    p('s_mov_b32 s34, 0xffff0000')
    def issue(n, nxt):
        def f(ring):
            j = n % 7
            for i in range(8):
                p(f's_add_u32 m0, s26, {ring * 8192 + i * 1024}')
                if n < 7:
                    p(f's_add_u32 s13, s20, {(64 * j + 8 * i) * 3584 + (128 if nxt else 0)}')
                    p(lddma(vS1 + (i & 1), 's13', fl='', srd=R0))
                else:
                    p(f's_add_u32 s13, s21, {8 * i * 896 + 128 * j + (64 * 896 if nxt else 0)}')
                    p(lddma(vS2, 's13', fl='', srd=R1))
        return f
    for n in range(3): issue(n, False)(n)
    p('s_waitcnt vmcnt(24)\ns_barrier\ns_mov_b32 s30, 0')
    loop = p.uid('L_ffn')
    p(f'{loop}:')
    for half in range(2):
        for n in range(14):
            ring = (half * 14 + n) & 3
            p('s_waitcnt vmcnt(16)')
            def rd(ks):
                out = []
                for i in range(4):
                    for hf in range(2):
                        if n < 7: out.append(dstr(vr(Wf(ks, i) + 2 * hf, 2), vR1 + i, ring * 8192 + (32 * ks + 4 * hf) * 128))
                        else: out.append(dstr(vr(Wf(ks, i) + 2 * hf, 2), vR2 + i, ring * 8192 + (32 * ks + 16 * hf) * 128))
                return out
            for x in rd(0): p(x)
            n3 = n + 3
            issue(n3 % 14, n3 >= 14)((ring + 3) & 3)
            if n == 7:
                for ft in range(4): p(dsr(vr(104 + 2 * ft, 2), vB, 32 * ft, 2))
                p('s_waitcnt lgkmcnt(0)')
                for ft in range(4):
                    p(f'v_lshlrev_b32 v112, 16, v{104 + 2 * ft}\nv_and_b32 v113, s34, v{104 + 2 * ft}\nv_lshlrev_b32 v114, 16, v{105 + 2 * ft}\nv_and_b32 v115, s34, v{105 + 2 * ft}')
                    for tt in range(2):
                        a = Ha(ft, tt)
                        def rnd():
                            p(cvt(116, a)); p(cvt(117, a + 2))
                            p(f'v_lshlrev_b32 v{a}, 16, v116\nv_and_b32 v{a + 1}, s34, v116\nv_lshlrev_b32 v{a + 2}, 16, v117\nv_and_b32 v{a + 3}, s34, v117')
                        rnd()
                        p(f'v_pk_add_f32 v[{a}:{a + 1}], v[{a}:{a + 1}], v[112:113]\nv_pk_add_f32 v[{a + 2}:{a + 3}], v[{a + 2}:{a + 3}], v[114:115]')
                        rnd()
                        for r in range(4): p(f'v_max_f32 v{a + r}, 0, v{a + r}')
                        p(f'v_pk_mul_f32 v[{a}:{a + 1}], v[{a}:{a + 1}], v[{a}:{a + 1}]\nv_pk_mul_f32 v[{a + 2}:{a + 3}], v[{a + 2}:{a + 3}], v[{a + 2}:{a + 3}]')
                        d = Hop(ft >> 1, tt) + 2 * (ft & 1)
                        p(cvt(d, a)); p(cvt(d + 1, a + 2))
                p(f'v_add_u32 v{vB}, 128, v{vB}')
            for ks in range(2):
                p('s_waitcnt lgkmcnt(0)')
                nxt = rd(1) if ks == 0 else []
                for i in range(4):
                    for tt in range(2):
                        if n < 7:
                            c = '0' if (n == 0 and ks == 0) else vr(Ha(i, tt), 4)
                            p(f'{MF32} {vr(Ha(i, tt), 4)}, {vr(Wf(ks, i), 4)}, {vr(Xf(2 * n + ks, tt), 4)}, {c}')
                        else:
                            g_ = ar(Ga(4 * (n - 7) + i, tt), 4)
                            p(f'{MF32} {g_}, {vr(Wf(ks, i), 4)}, {vr(Hop(ks, tt), 4)}, {g_}')
                        if nxt: p(nxt.pop(0))
        p(f's_add_u32 s20, s20, 128\ns_add_u32 s21, s21, {64 * 896}\ns_add_u32 s30, s30, 1')
        if half == 0: p(f's_cmp_eq_u32 s30, 7\ns_cbranch_scc1 {loop}_end')
        else: p(f's_branch {loop}')
    p(f'{loop}_end:')
    p('s_waitcnt vmcnt(0)\ns_barrier')
    p(f's_mul_i32 s13, s12, 28672\nv_add_u32 v3, s13, v{vL16}\ns_mul_i32 s13, s12, 7168\nv_add_u32 v4, s13, v{vL16}\nv_add_u32 v5, 57344, v4')
    p(f's_mul_i32 s13, s12, 224\ns_add_u32 s14, s13, {LB + 4096}\nv_lshlrev_b32 v7, 3, v1\nv_add_u32 v{vB}, s14, v7')
    p(f'v_mul_u32_u24 v6, 896, v2\nv_add3_u32 v6, v6, v7, s13\ns_mul_i32 s22, s11, 28672\ns_add_u32 s22, s22, {OFF_G}')
    p('s_mov_b32 s24, 0xbfb8aa3b')
    for tt in range(2):
        for nt in range(28): p(dsw(3, ar(Ga(nt, tt), 4), nt * 1024))
        p('s_waitcnt lgkmcnt(0)\ns_barrier')
        for T in range(7):
            for wv in range(4): p(dsr(vr(8 + 4 * wv, 4), 4 if wv < 2 else 5, (wv & 1) * 28672 + T * 1024))
            p(dsr('v[24:25]', vB, 32 * T, 2))
            p('s_waitcnt lgkmcnt(0)')
            p('v_pk_add_f32 v[8:9], v[8:9], v[12:13]\nv_pk_add_f32 v[10:11], v[10:11], v[14:15]\nv_pk_add_f32 v[16:17], v[16:17], v[20:21]\nv_pk_add_f32 v[18:19], v[18:19], v[22:23]')
            p('v_pk_add_f32 v[8:9], v[8:9], v[16:17]\nv_pk_add_f32 v[10:11], v[10:11], v[18:19]')
            p('v_lshlrev_b32 v16, 16, v24\nv_and_b32 v17, s34, v24\nv_lshlrev_b32 v18, 16, v25\nv_and_b32 v19, s34, v25')
            def rnd():
                p(cvt(12, 8)); p(cvt(13, 10))
                p('v_lshlrev_b32 v8, 16, v12\nv_and_b32 v9, s34, v12\nv_lshlrev_b32 v10, 16, v13\nv_and_b32 v11, s34, v13')
            rnd()
            p('v_pk_add_f32 v[8:9], v[8:9], v[16:17]\nv_pk_add_f32 v[10:11], v[10:11], v[18:19]')
            rnd()
            for r in range(4): p(f'v_mul_f32 v{12 + r}, s24, v{8 + r}')
            for r in range(4): p(f'v_exp_f32 v{12 + r}, v{12 + r}')
            for r in range(4): p(f'v_add_f32 v{12 + r}, 1.0, v{12 + r}')
            for r in range(4): p(f'v_rcp_f32 v{12 + r}, v{12 + r}')
            for r in range(4): p(f'v_mul_f32 v{8 + r}, v{8 + r}, v{12 + r}')
            d = 26 + 2 * (T & 1)
            p(cvt(d, 8)); p(cvt(d + 1, 10))
            p(st(vr(d, 2), 6, 's22', 32 * T, 'sc1', n=2))
        p(f's_add_u32 s22, s22, {16 * 896}')
        if tt == 0: p('s_barrier')
    p(f's_waitcnt vmcnt(0)\ns_barrier\ns_cmp_lg_u32 s12, 0\ns_cbranch_scc1 L_exit')
    p(f's_lshl_b32 s13, s11, 2\ns_add_u32 s13, s13, {OFF_GF}\ns_mov_b64 exec, 1')
    p(st(f'v{vZ}', vZ, 's13', 0, 'sc1'))
    p('s_branch L_exit')
```

```python
import sys, os, json
sys.path.insert(0, os.path.dirname(os.path.abspath(__file__)))
from asm import Prog
from common import *
import prep, rroles, troles

DEFAULT = dict(a_delay=8, b_delay=2, p_delay=3)

def gen(cfg=None):
    c = dict(DEFAULT); c.update(cfg or {}); cfg = c
    p = Prog()
    p('''s_cmp_ge_u32 s2, 256
s_cbranch_scc1 L_end
s_load_dwordx16 s[40:55], s[0:1], 0
s_load_dwordx8 s[56:63], s[0:1], 64
s_load_dwordx4 s[4:7], s[0:1], 96
s_load_dwordx2 s[8:9], s[0:1], 112
s_getreg_b32 s10, hwreg(HW_REG_XCC_ID, 0, 3)
v_lshrrev_b32 v1, 6, v0
v_and_b32 v0, 63, v0
s_mov_b32 s99, s2
s_waitcnt lgkmcnt(0)
v_readfirstlane_b32 s12, v1''')
    if cfg.get('xcc_mix'): p('s_lshr_b32 s10, s2, 5')
    if cfg.get('xcc_skew'): p('s_lshr_b32 s10, s10, 1')
    srd(p, 64, 8, WS_END); srd(p, 68, 4, 2048 * 896); srd(p, 72, 6, 256); srd(p, 76, 40, 2048 * 896)
    prof(p, cfg, 0)
    p(f'''s_cmp_lg_u32 s12, 0
s_cbranch_scc1 L_notick
s_mov_b64 exec, 1
s_lshl_b32 s13, s10, 5
v_mov_b32 v254, s13
v_mov_b32 v255, 1
buffer_atomic_add v255, v254, {DBG}, 0 offen sc0
s_mov_b64 exec, -1
L_notick:
s_and_b32 s13, s2, 7
s_lshl_b32 s13, s13, 5
s_lshr_b32 s14, s2, 3
s_add_u32 s13, s13, s14
s_cmp_lt_u32 s13, 32
s_cbranch_scc1 L_ln
s_sub_u32 s13, s13, 32
s_cmp_ge_u32 s13, 112
s_cselect_b32 s16, 112, 0
s_sub_u32 s13, s13, s16
s_mul_i32 s14, s13, 147
s_lshr_b32 s14, s14, 10
s_mul_i32 s15, s14, 7
s_sub_u32 s15, s13, s15
s_cmp_lg_u32 s16, 0
s_cbranch_scc1 L_gemmB''')
    prep.gen_gemm(p, False, cfg)
    p('s_branch L_prepdone\nL_gemmB:')
    prep.gen_gemm(p, True, cfg)
    p('s_branch L_prepdone\nL_ln:')
    prep.gen_ln(p, cfg)
    p(f'''L_prepdone:
s_waitcnt vmcnt(0) lgkmcnt(0)
s_barrier
s_cmp_lg_u32 s12, 0
s_cbranch_scc1 L_role_w
s_mov_b64 exec, 1
v_mov_b32 v1, s23
v_mov_b32 v2, 1
buffer_atomic_add v2, v1, {DBG}, 0 offen
v_readfirstlane_b32 s11, v255
s_lshl_b32 s13, s10, 5
s_add_u32 s13, s13, s11
s_cmp_lt_u32 s11, 32
s_cbranch_scc1 L_role_ok
v_mov_b32 v1, 24
v_mov_b32 v3, 1
buffer_atomic_add v3, v1, {DBG}, 0 offen sc0
s_mov_b64 exec, 0xff
v_lshlrev_b32 v1, 5, v0
s_mov_b32 s31, 0
L_ovf:
{ld('v2', 1, '0', n=1, srd=DBG)}
s_add_u32 s31, s31, 1
s_cmp_gt_u32 s31, {TMO}
s_cbranch_scc1 L_exit
s_waitcnt vmcnt(0)
s_mov_b32 s14, 0''')
    for x in range(8): p(f'v_readlane_b32 s{20 + x}, v2, {x}')
    for x in range(8): p(f's_add_u32 s14, s14, s{20 + x}')
    p('''s_cmp_lt_u32 s14, 256
s_cbranch_scc1 L_ovf
v_readfirstlane_b32 s15, v3
s_mov_b32 s13, 255''')
    for x in range(8):
        p(f'''s_min_u32 s14, s{20 + x}, 32
s_add_u32 s16, s14, s15
s_add_u32 s17, s16, {32 * x}
s_cmp_lt_u32 s16, 32
s_cselect_b32 s13, s17, s13
s_cbranch_scc1 L_role_ok1
s_sub_u32 s15, s16, 32''')
    p('''L_role_ok1:
s_mov_b64 exec, 1
L_role_ok:
v_mov_b32 v1, 0
v_mov_b32 v2, s13
ds_write_b32 v1, v2
s_mov_b64 exec, -1
s_waitcnt lgkmcnt(0)
L_role_w:
s_barrier
v_mov_b32 v1, 0
ds_read_b32 v2, v1
s_waitcnt lgkmcnt(0)
v_readfirstlane_b32 s13, v2
s_barrier
s_and_b32 s11, s13, 31
s_lshr_b32 s10, s13, 5
s_and_b32 s10, s10, 7''')
    if cfg.get('prof'): p('s_add_u32 s99, s13, 256')
    prof(p, cfg, 1)
    if cfg.get('only_prep'): p('s_branch L_exit')
    p('''s_mov_b32 s16, 0x20202020
s_mov_b32 s17, 0x20202020
s_cmp_eq_u32 s10, 3
s_cbranch_scc1 L_exit
s_cmp_eq_u32 s10, 0
s_cbranch_scc1 L_grp
s_cmp_ge_u32 s10, 4
s_cbranch_scc1 L_grp
s_sub_u32 s13, s10, 1
s_lshl_b32 s13, s13, 5
s_add_u32 s11, s11, s13''')
    wait_dbg(p, 16, 17)
    prof(p, cfg, 2)
    troles.gen_FFN(p, cfg)
    p('''L_grp:
s_sub_u32 s37, s10, 4
s_cmp_ge_u32 s11, 30
s_cbranch_scc1 L_spare
s_cmp_ge_u32 s11, 16
s_cbranch_scc1 L_colrole
s_lshr_b32 s13, s11, 1
s_lshl_b32 s13, s13, 3
s_and_b32 s14, s11, 1
s_add_u32 s13, s13, s14
s_add_u32 s13, s13, 1
s_lshl_b64 s[14:15], 1, s13
s_or_b64 s[16:17], s[16:17], s[14:15]''')
    wait_dbg(p, 16, 17)
    prof(p, cfg, 2)
    p('s_cmp_lg_u32 s10, 0\ns_cbranch_scc1 L_TA')
    for w in range(3): p(f's_cmp_eq_u32 s12, {w}\ns_cbranch_scc1 L_A{w}')
    p('s_branch L_A3')
    p('L_colrole:\ns_sub_u32 s11, s11, 16\ns_mov_b32 s16, 0x38383838\ns_mov_b32 s17, 0x38383838')
    wait_dbg(p, 16, 17)
    prof(p, cfg, 2)
    p('s_cmp_lg_u32 s10, 0\ns_cbranch_scc1 L_TB')
    for w in range(3): p(f's_cmp_eq_u32 s12, {w}\ns_cbranch_scc1 L_B{w}')
    p('s_branch L_B3')
    p('L_spare:\ns_cmp_lg_u32 s10, 0\ns_cbranch_scc1 L_exit\ns_sub_u32 s11, s11, 30')
    wait_dbg(p, 16, 17)
    rroles.gen_pref(p, cfg)
    p('L_exit:\ns_mov_b64 exec, -1\ns_waitcnt vmcnt(0) lgkmcnt(0)')
    prof(p, cfg, 5)
    p('s_waitcnt vmcnt(0)\nL_end:\ns_endpgm')
    for w in range(4):
        p(f'L_A{w}:'); rroles.gen_A(p, w, cfg)
    for w in range(4):
        p(f'L_B{w}:'); rroles.gen_B(p, w, cfg)
    p('L_TA:'); troles.gen_TA(p, cfg)
    p('L_TB:'); troles.gen_TB(p, cfg)
    body = p.finish(cfg.get('verbose'))
    hdr = open(os.path.join(os.path.dirname(os.path.abspath(__file__)), 'header.txt')).read()
    return hdr + f'''.amdgcn_target "amdgcn-amd-amdhsa--gfx950"
.text
.globl {KNAME}
.p2align 8
.type {KNAME},@function
{KNAME}:
''' + body + f'''.section .rodata,"a"
.p2align 6
.amdhsa_kernel {KNAME}
  .amdhsa_next_free_vgpr 512
  .amdhsa_next_free_sgpr 102
  .amdhsa_accum_offset 256
  .amdhsa_group_segment_fixed_size 0
  .amdhsa_kernarg_size 120
  .amdhsa_user_sgpr_count 2
  .amdhsa_user_sgpr_kernarg_segment_ptr 1
  .amdhsa_system_sgpr_workgroup_id_x 1
.end_amdhsa_kernel
'''

if __name__ == '__main__':
    cfg = json.loads(sys.argv[2]) if len(sys.argv) > 2 else {}
    cfg['verbose'] = 1
    s = gen(cfg)
    open(sys.argv[1], 'w').write(s)
    print(len(s), 'bytes')
```

```python
KNAME = 'recurrent_scan__memory_aug_recurrent_mem_tr__dense_activation_squared_relu__prompt_kernel'
OFF_A = 0
OFF_B = OFF_A + 16 * 4 * 98 * 1024
OFF_V = OFF_B + 14 * 4 * 112 * 1024
OFF_XN = OFF_V + 64 * 14 * 32768
OFF_XP = OFF_XN + 64 * 28672
OFF_PT = OFF_XP + 64 * 28672
OFF_PM = OFF_PT + 64 * 32768
OFF_G = OFF_PM + 64 * 8192
OFF_MF = OFF_G + 2048 * 896
OFF_INIT = OFF_MF + 8192
OFF_PF = OFF_MF + 64 * 8192
PSLOT = 16384
OFF_PS = OFF_PF + 64 * PSLOT
OFF_VF = OFF_PS + 64 * PSLOT
OFF_TF = OFF_VF + 64 * 1024
OFF_GF = OFF_TF + 64 * 512
OFF_GO2 = OFF_GF + 8192
OFF_MS1 = OFF_GO2 + 1024
INIT_END = OFF_MS1 + 63 * 8192
INIT_PER_WAVE = -(-(INIT_END - OFF_INIT) // (1024 * 1024)) * 1024
OFF_MS0 = OFF_INIT + 1024 * INIT_PER_WAVE
OFF_MS = OFF_MS1 - 8192
OFF_CNT = OFF_MS0 + 8192
OFF_PROF = OFF_CNT + 8192
WS_END = OFF_PROF + (1 << 20)
NSTEP = 63
EM_OFF = 7168
EP_OFF = 7680

SMF = 'v_smfmac_f32_16x16x64_bf16'
SMF32 = 'v_smfmac_f32_16x16x32_bf16'
MF32 = 'v_mfma_f32_16x16x32_bf16'
MF16 = 'v_mfma_f32_16x16x16_bf16'
DPP = 'row_mask:0xf bank_mask:0xf'
SW32 = 'v_permlane32_swap_b32'
SW16 = 'v_permlane16_swap_b32'
WS = 's[64:67]'; OUT = 's[68:71]'; DBG = 's[72:75]'; XS = 's[76:79]'
R0 = 's[80:83]'; R1 = 's[84:87]'; R2 = 's[88:91]'; R3 = 's[92:95]'
FAIL = 'L_exit'
TMO = 0x80000

def vr(b, n=1): return f'v[{b}:{b + n - 1}]' if n > 1 else f'v{b}'
def ar(b, n=1): return f'a[{b}:{b + n - 1}]' if n > 1 else f'a{b}'
_OPN = {1: 'dword', 2: 'dwordx2', 4: 'dwordx4'}
def ld(dst, va, so, off=0, fl='sc1', n=4, srd=WS):
    assert 0 <= off < 4096
    o = f' offset:{off}' if off else ''
    return f'buffer_load_{_OPN[n]} {dst}, v{va}, {srd}, {so} offen{o} {fl}'.strip()
def lddma(va, so, off=0, fl='sc1', srd=WS):
    assert 0 <= off < 4096
    o = f' offset:{off}' if off else ''
    f = f' {fl}' if fl else ''
    return f'buffer_load_dwordx4 v{va}, {srd}, {so} offen{o}{f} lds'
def st(src, va, so, off=0, fl='', n=1, srd=WS):
    assert 0 <= off < 4096
    o = f' offset:{off}' if off else ''
    return f'buffer_store_{_OPN[n]} {src}, v{va}, {srd}, {so} offen{o} {fl}'.strip()
def dsr(dst, va, off=0, n=4):
    assert 0 <= off < 65536, off
    op = {1: 'b32', 2: 'b64', 4: 'b128'}[n]
    o = f' offset:{off}' if off else ''
    return f'ds_read_{op} {dst}, v{va}{o}'
def dsw(va, src, off=0, n=4):
    assert 0 <= off < 65536, off
    op = {1: 'b32', 2: 'b64', 4: 'b128'}[n]
    o = f' offset:{off}' if off else ''
    return f'ds_write_{op} v{va}, {src}{o}'
def dstr(dst, va, off=0):
    assert 0 <= off < 65536, off
    o = f' offset:{off}' if off else ''
    return f'ds_read_b64_tr_b16 {dst}, v{va}{o}'
def cvt(d, a, b=None):
    return f'v_cvt_pk_bf16_f32 v{d}, v{a}, v{a + 1 if b is None else b}'
def srd(p, reg, ptr, nbytes):
    p(f's_mov_b32 s{reg}, s{ptr}\ns_mov_b32 s{reg + 1}, s{ptr + 1}\ns_mov_b32 s{reg + 2}, {nbytes}\ns_mov_b32 s{reg + 3}, 0x20000')

def init_fill(p, va, d):
    for r in range(4): p(f'v_mov_b32 v{d + r}, -1')
    p(f's_lshl_b32 s28, s2, 2\ns_add_u32 s28, s28, s12\ns_mul_i32 s28, s28, {INIT_PER_WAVE}\ns_add_u32 s28, s28, {OFF_INIT}')
    n = INIT_PER_WAVE // 1024
    assert n <= 4
    for k in range(n): p(st(vr(d, 4), va, 's28', k * 1024, 'sc1', n=4))
    return n

def ticket(p):
    lab = p.uid('L_tk')
    p(f's_cmp_lg_u32 s12, 0\ns_cbranch_scc1 {lab}\ns_mov_b64 exec, 1\ns_lshl_b32 s3, s10, 5')
    p(f'v_mov_b32 v254, s3\nv_mov_b32 v255, 1\nbuffer_atomic_add v255, v254, {DBG}, 0 offen sc0\ns_mov_b64 exec, -1\n{lab}:')

def chk_instrs(chk, tmp):
    out = []
    regs = list(chk); cur = regs.pop(0)
    while regs:
        if len(regs) >= 2:
            out.append(f'v_max3_u32 v{tmp}, v{cur}, v{regs[0]}, v{regs[1]}'); regs = regs[2:]
        else:
            out.append(f'v_max_u32 v{tmp}, v{cur}, v{regs[0]}'); regs = regs[1:]
        cur = tmp
    out.append(f'v_cmp_eq_u32 vcc, -1, v{cur}')
    return out

def slow_poll(p, loads, chk, tmp, sleep=4, drain=True):
    lab = p.uid('L_sp')
    p(f's_mov_b32 s31, 0\ns_branch {lab}_go\n{lab}:')
    p(f's_sleep {sleep}\ns_add_u32 s31, s31, 1\ns_cmp_gt_u32 s31, {TMO}\ns_cbranch_scc1 {FAIL}')
    p(f'{lab}_go:')
    for l in loads: p(l)
    p('s_waitcnt vmcnt(0)')
    for x in chk_instrs(chk, tmp): p(x)
    p(f's_cbranch_vccnz {lab}')

def wait_word(p, srd_, off, sleep, unset):
    lab = p.uid('L_wd')
    p(f's_cmp_lg_u32 s12, 0\ns_cbranch_scc1 {lab}_done')
    p(f'v_mov_b32 v1, {off}\ns_mov_b32 s31, 0\ns_mov_b64 exec, 1\n{lab}:')
    p(ld('v2', 1, '0', n=1, srd=srd_))
    p(f's_add_u32 s31, s31, 1\ns_cmp_gt_u32 s31, {TMO}\ns_cbranch_scc1 {FAIL}')
    p(f's_waitcnt vmcnt(0)\nv_cmp_eq_u32 vcc, {unset}, v2\ns_cbranch_vccz {lab}_ok\ns_sleep {sleep}\ns_branch {lab}')
    p(f'{lab}_ok:\ns_mov_b64 exec, -1\n{lab}_done:\ns_barrier')

def cnt_zero(p):
    lab = p.uid('L_cz')
    p(f's_cmp_lg_u32 s2, 0\ns_cbranch_scc1 {lab}\ns_cmp_lg_u32 s12, 3\ns_cbranch_scc1 {lab}')
    p(f'v_lshlrev_b32 v250, 7, v0\nv_mov_b32 v251, 0\ns_mov_b32 s3, {OFF_CNT}')
    p(st('v251', 250, 's3', 0, 'sc1'))
    p(f's_waitcnt vmcnt(0)\nv_lshlrev_b32 v250, 5, v0\nv_mov_b32 v251, 0x10000\ns_mov_b64 exec, 0xff')
    p(f'buffer_atomic_add v251, v250, {DBG}, 0 offen')
    p(f's_mov_b64 exec, -1\n{lab}:')

def wait_go(p, mask, sleep, t=1, head=None):
    lab = p.uid('L_wg')
    p(f's_cmp_lg_u32 s12, 0\ns_cbranch_scc1 {lab}_done')
    p(f'v_lshlrev_b32 v{t}, 7, v0\ns_mov_b32 s31, 0\ns_mov_b32 s3, {OFF_CNT + 4096}')
    if head: p(f's_lshl_b64 exec, 1, {head}')
    else:
        lo = (0xffff if mask & 4 else 0) | (0x10000 if mask & 2 else 0) | (0x20000 if mask & 1 else 0)
        p(f's_mov_b32 exec_lo, {lo}\ns_mov_b32 exec_hi, 0')
    p(f'{lab}:')
    p(ld(f'v{t + 1}', t, 's3', n=1))
    p(f's_add_u32 s31, s31, 1\ns_cmp_gt_u32 s31, {TMO}\ns_cbranch_scc1 {FAIL}')
    p(f's_waitcnt vmcnt(0)\nv_cmp_eq_u32 vcc, 0, v{t + 1}\ns_cbranch_vccz {lab}_ok\ns_sleep {sleep}\ns_branch {lab}')
    p(f'{lab}_ok:\ns_mov_b64 exec, -1\n{lab}_done:\ns_barrier')

def prof(p, cfg, k, t=6):
    if not cfg.get('prof'): return
    lab = p.uid('L_pr')
    p(f's_cmp_lg_u32 s12, 0\ns_cbranch_scc1 {lab}')
    p(f's_memrealtime s[96:97]\nv_mov_b32 v{t}, {163584 + 4 * k}\ns_waitcnt lgkmcnt(0)')
    p(f'v_mov_b32 v{t + 1}, s96\nds_write_b32 v{t}, v{t + 1}\ns_waitcnt lgkmcnt(0)\n{lab}:')

def prof_dump(p, cfg):
    if not cfg.get('prof'): return
    lab = p.uid('L_pd')
    p(f's_cmp_lg_u32 s12, 0\ns_cbranch_scc1 {lab}')
    p(f'v_lshlrev_b32 v6, 2, v0\nv_add_u32 v7, 163584, v6\nds_read_b32 v7, v7\ns_lshl_b32 s98, s99, 8\ns_add_u32 s98, s98, {OFF_PROF}\ns_waitcnt lgkmcnt(0)')
    p(st('v7', 6, 's98') + f'\n{lab}:')

def prof_dbgout(p, cfg):
    if not cfg.get('dbgout'): return
    table = {0: {1: 13, 2: 1, 3: 2, 5: 3}, 16: {3: 6, 5: 7}, 240: {3: 9, 4: 10, 5: 11}, 32: {5: 12}, 224: {5: 14}, 255: {8: 15}}
    for rid, m in table.items():
        lab = p.uid('L_do')
        p(f's_cmp_lg_u32 s12, 0\ns_cbranch_scc1 {lab}\ns_cmp_lg_u32 s99, {rid}\ns_cbranch_scc1 {lab}')
        p('v_mov_b32 v6, 163584\nds_read_b32 v8, v6')
        for k, slot in m.items():
            p(f'ds_read_b32 v7, v6 offset:{4 * k}\ns_waitcnt lgkmcnt(0)\nv_sub_u32 v7, v7, v8\nv_mov_b32 v9, {4 * slot}')
            p(st('v7', 9, '0', 0, 'sc1', srd=DBG) + '\ns_waitcnt vmcnt(0)')
        p(f'{lab}:')

def rstamp(p, cfg, k):
    if cfg.get('rprof') and k in cfg.get('stamps', range(6)): p(f's_memtime s[{76 + 2 * k}:{77 + 2 * k}]')

def rstamp_flush(p, cfg, w, t=2):
    if not cfg.get('rprof'): return
    lab = p.uid('L_rf')
    k0 = cfg.get('rstep', 44)
    p(f's_sub_u32 s36, s30, {k0}\ns_cmp_ge_u32 s36, 2\ns_cbranch_scc1 {lab}')
    p('s_waitcnt lgkmcnt(0)\ns_mov_b64 s[52:53], s[40:41]\ns_mov_b64 s[54:55], s[42:43]\ns_mov_b64 s[56:57], s[44:45]\ns_mov_b64 s[58:59], s[46:47]')
    for k in range(6): p(f's_mov_b32 s{40 + k}, s{76 + 2 * k}')
    p(f's_mov_b32 s46, s39\ns_mov_b32 s47, s31\n{lab}:')

def rstamp_cal(p, cfg, k):
    if not cfg.get('rprof'): return
    p(f's_memtime s[88:89]\ns_memrealtime s[90:91]\ns_waitcnt lgkmcnt(0)\ns_mov_b32 s{60 + 2 * k}, s88\ns_mov_b32 s{61 + 2 * k}, s90')

def rstamp_dump(p, cfg, w):
    if not cfg.get('rprof'): return
    rstamp_cal(p, cfg, 1)
    p('s_waitcnt vmcnt(0)')
    for k in range(8): p(f'v_writelane_b32 v2, s{52 + k}, {k}\nv_writelane_b32 v2, s{40 + k}, {8 + k}')
    for k in range(4): p(f'v_writelane_b32 v2, s{60 + k}, {16 + k}')
    p(f'v_lshlrev_b32 v3, 2, v0\ns_lshl_b32 s36, s99, 10\ns_add_u32 s36, s36, {OFF_PROF + 65536 + w * 256}')
    p(st('v2', 3, 's36'))

def emit_maddr(p, dst, pc, row, t1, t2):
    p(f'v_lshrrev_b32 v{t1}, 1, v{pc}\nv_lshlrev_b32 v{t1}, 8, v{t1}\nv_and_b32 v{t2}, 1, v{pc}\nv_lshl_add_u32 v{t1}, v{t2}, 5, v{t1}')
    p(f'v_lshrrev_b32 v{t2}, 1, v{row}\nv_lshl_add_u32 v{t1}, v{t2}, 6, v{t1}\nv_and_b32 v{t2}, 1, v{row}\nv_lshl_add_u32 v{dst}, v{t2}, 4, v{t1}')

def pos_of(tok):
    return ((tok & 1) << 4) | (((tok >> 3) & 1) << 3) | (((tok >> 1) & 1) << 2) | (((tok >> 2) & 1) << 1) | (tok >> 4)

def emit_pos(p, dst, tok, t1, t2):
    p(f'v_and_b32 v{t1}, 1, v{tok}\nv_lshlrev_b32 v{dst}, 4, v{t1}\nv_and_b32 v{t1}, 8, v{tok}\nv_or_b32 v{dst}, v{dst}, v{t1}')
    p(f'v_and_b32 v{t1}, 2, v{tok}\nv_lshlrev_b32 v{t1}, 1, v{t1}\nv_and_b32 v{t2}, 4, v{tok}\nv_lshrrev_b32 v{t2}, 1, v{t2}')
    p(f'v_or_b32 v{t1}, v{t1}, v{t2}\nv_lshrrev_b32 v{t2}, 4, v{tok}\nv_or3_b32 v{dst}, v{dst}, v{t1}, v{t2}')
```

```python
import numpy as np
D = 448; H = 16; NSEG = 64; SEG = 32; M = 8

def phys_k(gB, p):
    p3, p2, p1, p0 = (p >> 3) & 1, (p >> 2) & 1, (p >> 1) & 1, p & 1
    return 32 * p3 + 16 * (gB >> 1) + 8 * p1 + 4 * (gB & 1) + 2 * p2 + p0

def piece(w, blk, gB, p3):
    P, b = w >> 1, w & 1
    if blk == 0: pc = 8 * b + 4 * p3 + gB
    elif gB & 1: pc = 24 + 2 * p3 + (gB >> 1)
    else: pc = 16 + 4 * b + 2 * p3 + (gB >> 1)
    return 28 * P + pc

def phi(w, T, n):
    b = w & 1
    blk = 0 if T < 4 else 1
    tt = T - 4 * blk
    if T == 6: n5, n4 = 1, b
    else: n5, n4 = tt >> 1, tt & 1
    n3, n2, n1, n0 = (n >> 3) & 1, (n >> 2) & 1, (n >> 1) & 1, n & 1
    pc = piece(w, blk, 2 * n2 + n5, n3)
    return 8 * pc + 4 * n1 + 2 * n4 + n0

def slot_chunk(w, sg): return (2 * w + sg) % 7

def check():
    cols = sorted(phi(w, T, n) for w in range(4) for T in range(7) for n in range(16))
    assert cols == list(range(448))
    ks = sorted(phys_k(g, p) for g in range(4) for p in range(16))
    assert ks == list(range(64))
check()

lane = np.arange(64); gB_ = lane >> 4; n_ = lane & 15

def img_A(A):
    out = np.zeros((16, 4, 7, 7, 2, 64, 8), dtype=A.dtype)
    kk = np.array([[phys_k(g, p) for p in range(16)] for g in gB_])
    for w in range(4):
        for T in range(7):
            cols = np.array([phi(w, T, n) for n in n_])
            for sg in range(7):
                t = slot_chunk(w, sg)
                blk = A[:, 64 * t + kk, cols[:, None]]
                out[:, w, T, sg, 0] = blk[:, :, :8]; out[:, w, T, sg, 1] = blk[:, :, 8:]
    return out

def img_B(B):
    out = np.zeros((14, 4, 4, 2, 7, 2, 64, 8), dtype=B.dtype)
    kk = np.array([[phys_k(g, p) for p in range(16)] for g in gB_])
    for c in range(14):
        for w in range(4):
            for nt in range(2):
                cols = 32 * c + 16 * nt + n_
                for sg in range(7):
                    t = slot_chunk(w, sg)
                    blk = B[4 * w:4 * w + 4, 64 * t + kk, cols[:, None]]
                    out[c, w, :, nt, sg, 0] = blk[:, :, :8]; out[c, w, :, nt, sg, 1] = blk[:, :, 8:]
    return out

def img_V(Vp):
    out = np.zeros((64, 14, 4, 2, 2, 2, 64, 8), dtype=Vp.dtype)
    for p in range(16):
        p3, p2, p1, p0 = (p >> 3) & 1, (p >> 2) & 1, (p >> 1) & 1, p & 1
        tok = 16 * p3 + 4 * gB_ + 2 * p2 + p0
        for w in range(4):
            for u in range(2):
                for nt in range(2):
                    for c in range(14):
                        out[:, c, w, u, nt, p3, :, p & 7] = Vp[:, 4 * w + 2 * u + p1, tok, 32 * c + 16 * nt + n_]
    return out

def img_X(xn):
    out = np.zeros((64, 4, 2, 2, 2, 64, 8), dtype=xn.dtype)
    x = xn.reshape(64, 32, 448)
    for w in range(4):
        for blk in range(2):
            for tile in range(2):
                for p3 in range(2):
                    pc = np.array([piece(w, blk, g, p3) for g in gB_])
                    out[:, w, blk, tile, p3] = x[:, (2 * n_ + tile)[:, None], 8 * pc[:, None] + np.arange(8)[None, :]]
    return out

def img_M(m):
    return m.reshape(8, 56, 8).transpose(1, 0, 2).copy()
def unimg_M(im):
    return im.reshape(56, 8, 8).transpose(1, 0, 2).reshape(8, 448)


def pos_of(tok):
    return ((tok & 1) << 4) | (((tok >> 3) & 1) << 3) | (((tok >> 1) & 1) << 2) | (((tok >> 2) & 1) << 1) | (tok >> 4)

def img_A2(A):
    out = np.zeros((16, 4, 7, 7, 2, 64, 8), dtype=A.dtype)
    kk = np.array([[phys_k(g, p) for p in range(16)] for g in gB_])
    for w in range(4):
        for T in range(7):
            cols = np.array([phi(w, T, n) for n in n_])
            for t in range(7):
                blk = A[:, 64 * t + kk, cols[:, None]]
                out[:, w, T, t, 0] = blk[:, :, :8]; out[:, w, T, t, 1] = blk[:, :, 8:]
    return out

def img_B2(B):
    out = np.zeros((14, 4, 4, 2, 7, 2, 64, 8), dtype=B.dtype)
    kk = np.array([[phys_k(g, p) for p in range(16)] for g in gB_])
    for c in range(14):
        for w in range(4):
            for nt in range(2):
                cols = 32 * c + 16 * nt + n_
                for t in range(7):
                    blk = B[4 * w:4 * w + 4, 64 * t + kk, cols[:, None]]
                    out[c, w, :, nt, t, 0] = blk[:, :, :8]; out[c, w, :, nt, t, 1] = blk[:, :, 8:]
    return out

def img_V2(Vp):
    out = np.zeros((64, 14, 4, 2, 2, 2, 64, 8), dtype=Vp.dtype)
    for p in range(16):
        p3, p2, p1, p0 = (p >> 3) & 1, (p >> 2) & 1, (p >> 1) & 1, p & 1
        tok = 16 * p2 + 4 * gB_ + 2 * p1 + p0
        for w in range(4):
            for u in range(2):
                for nt in range(2):
                    for c in range(14):
                        out[:, c, w, u, nt, p3, :, p & 7] = Vp[:, 4 * w + 2 * u + p3, tok, 32 * c + 16 * nt + n_]
    return out

def img_XN(xn):
    x = xn.reshape(64, 32, 56, 8)
    out = np.zeros((64, 56, 32, 8), dtype=xn.dtype)
    for t in range(32): out[:, :, pos_of(t)] = x[:, t]
    return out

def img_XP(xn):
    x = xn.reshape(64, 2, 16, 14, 32)
    out = np.zeros((64, 14, 2, 4, 16, 8), dtype=xn.dtype)
    for g in range(4):
        for e in range(8):
            out[:, :, :, g, :, e] = x[:, :, :, :, phys_k(g, e)].transpose(0, 3, 1, 2)
    return out

def img_PT(P):
    pt = np.zeros((64, 16, 2, 64, 8), dtype=P.dtype); pm = np.zeros((64, 8, 2, 32, 8), dtype=P.dtype)
    for qt in range(2):
        for x in range(8):
            key = 16 * (x >> 2) + 4 * gB_ + (x & 3)
            pt[:, :, qt, :, x] = P[:, :, 16 * qt + n_, 8 + key]
            pm[:, :, qt, :, x] = P[:, (x >> 2)::2, (16 * qt + n_)[:32], (4 * gB_ + (x & 3))[:32]]
    return pt, pm

def unimg_M2(im):
    a = im.reshape(28, 4, 2, 2, 8)
    return a.transpose(1, 3, 0, 2, 4).reshape(8, 448)

def img_PM2(P):
    pm = np.zeros((64, 16, 2, 64, 2), dtype=P.dtype)
    for qt in range(2):
        for x in range(2): pm[:, :, qt, :, x] = P[:, :, 16 * qt + n_, 2 * gB_ + x]
    return pm
```

```python
from common import *

def gen_ln(p, cfg):
    LN_, LP_ = 0, 57344
    p('v_lshlrev_b32 v1, 4, v0')
    p(f'v_lshrrev_b32 v2, 2, v0\nv_and_b32 v3, 3, v0')
    p(f's_lshl_b32 s14, s13, 6\ns_lshl_b32 s15, s12, 4\ns_add_u32 s14, s14, s15\ns_mul_i32 s20, s14, 896')
    p('v_mul_u32_u24 v176, 896, v2\nv_lshlrev_b32 v177, 4, v3\nv_add_u32 v176, v176, v177')
    for k in range(14): p(ld(vr(8 + 4 * k, 4), 176, 's20', 64 * k, fl=cfg.get('flX', ''), srd=XS))
    ns = init_fill(p, 1, 4)
    walk(p, cfg)
    lab = p.uid('L_m0')
    p(f's_cmp_lg_u32 s13, 0\ns_cbranch_scc1 {lab}\ns_cmp_gt_u32 s12, 1\ns_cbranch_scc1 {lab}')
    srd(p, 80, 42, 7168)
    p(f's_mov_b32 s22, {OFF_MS0}\ns_cmp_eq_u32 s12, 0\ns_cselect_b32 s22, {OFF_MF}, s22')
    p('v_bfe_u32 v178, v0, 2, 2\nv_lshlrev_b32 v178, 1, v178\nv_and_b32 v179, 1, v0\nv_add_u32 v178, v178, v179\nv_mul_u32_u24 v178, 896, v178')
    p('v_lshrrev_b32 v179, 4, v0\nv_lshl_add_u32 v178, v179, 5, v178\nv_bfe_u32 v179, v0, 1, 1\nv_lshl_add_u32 v178, v179, 4, v178')
    for k in range(7): p(ld(vr(180 + 4 * k, 4), 178, '0', 128 * k, fl='', srd=R0))
    p('s_mov_b32 s34, 0xfffffffe\ns_waitcnt vmcnt(0)')
    for k in range(28): p(f'v_min_u32 v{180 + k}, s34, v{180 + k}')
    for k in range(7):
        p(st(vr(180 + 4 * k, 4), 1, 's22', (k & 3) * 1024, 'sc1', n=4))
        if k == 3: p('s_add_u32 s22, s22, 4096')
    p('v_mov_b32 v182, 0\nv_mov_b32 v183, 0\nv_lshlrev_b32 v181, 3, v0')
    p(st('v[182:183]', 181, 's22', EM_OFF - 4096, 'sc1', n=2))
    p(f's_waitcnt vmcnt(0)\n{lab}:')
    p(f's_waitcnt vmcnt({min(ns, 63)})')
    prof(p, cfg, 11, 212)
    F = 64
    p('s_mov_b32 s34, 0xffff0000\ns_mov_b32 s35, 0x3f803f80')
    p('v_mov_b32 v208, 0\nv_mov_b32 v209, 0\nv_mov_b32 v210, s35')
    for r in range(0, 56, 2):
        p(f'v_dot2c_f32_bf16 v208, v{8 + r}, v210\nv_dot2c_f32_bf16 v209, v{9 + r}, v210')
    for r in range(56):
        p(f'v_lshlrev_b32 v{F + 2 * r}, 16, v{8 + r}\nv_and_b32 v{F + 2 * r + 1}, s34, v{8 + r}')
    def quad_sum():
        p(f'v_add_f32_dpp v8, v8, v8 quad_perm:[1,0,3,2] {DPP}\nv_add_f32_dpp v8, v8, v8 quad_perm:[2,3,0,1] {DPP}')
        p(f'v_mul_f32 v8, 0x{0x3b124925:x}, v8')
    p('v_add_f32 v8, v208, v209')
    quad_sum()
    p('v_mov_b32 v12, v8\nv_mov_b32 v13, v8')
    p('v_cvt_pk_bf16_f32 v14, v8, v8\nv_and_b32 v14, s34, v14\nv_mov_b32 v15, v14')
    p('v_mov_b32 v8, 0\nv_mov_b32 v9, 0\nv_mov_b32 v10, 0\nv_mov_b32 v11, 0')
    for r in range(0, 56, 2):
        p(f'v_pk_add_f32 v[16:17], v[{F + 2 * r}:{F + 2 * r + 1}], v[12:13] neg_lo:[0,1] neg_hi:[0,1]')
        p(f'v_pk_add_f32 v[18:19], v[{F + 2 * r + 2}:{F + 2 * r + 3}], v[12:13] neg_lo:[0,1] neg_hi:[0,1]')
        p('v_pk_fma_f32 v[8:9], v[16:17], v[16:17], v[8:9]\nv_pk_fma_f32 v[10:11], v[18:19], v[18:19], v[10:11]')
    p('v_pk_add_f32 v[8:9], v[8:9], v[10:11]\nv_add_f32 v8, v8, v9')
    quad_sum()
    p('v_cvt_pk_bf16_f32 v8, v8, v8\nv_and_b32 v8, s34, v8\nv_add_f32 v8, 0x3727c5ac, v8')
    p('v_cvt_pk_bf16_f32 v8, v8, v8\nv_and_b32 v8, s34, v8\nv_sqrt_f32 v8, v8')
    p('v_cvt_pk_bf16_f32 v8, v8, v8\nv_and_b32 v8, s34, v8\nv_rcp_f32 v12, v8\nv_mov_b32 v13, v12')
    p('s_and_b32 s14, s12, 1\ns_lshl_b32 s14, s14, 4\nv_add_u32 v4, s14, v2')
    emit_pos(p, 5, 4, 6, 7)
    p(f's_lshr_b32 s14, s12, 1\ns_mul_i32 s14, s14, 28672')
    p('v_lshlrev_b32 v5, 4, v5\nv_lshlrev_b32 v6, 9, v3\nv_add3_u32 v178, v5, v6, s14')
    p('s_and_b32 s15, s12, 1\ns_lshl_b32 s15, s15, 10\ns_add_u32 s14, s14, s15')
    p(f's_add_u32 s14, s14, {LP_}')
    p('v_lshrrev_b32 v5, 1, v3\nv_lshlrev_b32 v5, 9, v5\nv_and_b32 v6, 1, v3\nv_lshlrev_b32 v6, 2, v6\nv_lshlrev_b32 v7, 4, v2')
    p('v_add3_u32 v5, v5, v6, v7\nv_add_u32 v179, s14, v5')
    for k in range(14):
        d = 16 + 4 * (k & 1)
        for q in range(4):
            a = F + 8 * k + 2 * q
            p(f'v_pk_add_f32 v[{a}:{a + 1}], v[{a}:{a + 1}], v[14:15] neg_lo:[0,1] neg_hi:[0,1]')
            p(f'v_cvt_pk_bf16_f32 v24, v{a}, v{a + 1}\nv_lshlrev_b32 v{a}, 16, v24\nv_and_b32 v{a + 1}, s34, v24')
            p(f'v_pk_mul_f32 v[{a}:{a + 1}], v[{a}:{a + 1}], v[12:13]')
            p(cvt(d + q, a))
        p(dsw(178, vr(d, 4), 2048 * k))
        p(f'v_add_u32 v25, {2048 * k}, v179')
        p(f'ds_write2_b32 v25, v{d}, v{d + 1} offset0:0 offset1:2\nds_write2_b32 v25, v{d + 2}, v{d + 3} offset0:64 offset1:66')
    p('s_waitcnt lgkmcnt(0)\ns_barrier')
    prof(p, cfg, 15, 212)
    p(f's_mul_i32 s14, s12, 28672\nv_add_u32 v2, s14, v1')
    p(f's_mul_i32 s20, s13, 57344\ns_add_u32 s20, s20, s14\ns_mov_b32 s15, {OFF_XP - 57344}\ns_cmp_lt_u32 s12, 2\ns_cselect_b32 s15, {OFF_XN}, s15\ns_add_u32 s20, s20, s15')
    for k in range(28): p(dsr(vr(8 + 4 * k, 4), 2, 1024 * k))
    for k in range(28):
        if k % 7 == 0: p(f's_waitcnt lgkmcnt({min(15, 21 - k)})' if k < 21 else 's_waitcnt lgkmcnt(0)')
        p(st(vr(8 + 4 * k, 4), 1, 's20', (k & 3) * 1024, 'sc1', n=4))
        if (k & 3) == 3: p('s_add_u32 s20, s20, 4096')
    ticket(p)
    p('s_mov_b32 s23, 17\ns_mov_b32 s24, 31')

def gen_gemm(p, isB, cfg):
    acc = lambda T, tt: 8 + 16 * T + 4 * tt
    KF = lambda b, tt: 120 + 44 * b + 4 * tt
    NF = lambda b, T: 120 + 44 * b + 16 + 4 * T
    vK0, vK1, vKr0, vKr1, vL16 = 208, 209, 210, 211, 212
    vN = 214
    vR = 230
    flK = cfg.get('flK', ''); flN = cfg.get('flN', '')
    srd(p, 80, 48 if isB else 44, 448 * 8192)
    srd(p, 84, 50 if isB else 46, 448 * 8192)
    p(f'v_lshlrev_b32 v{vL16}, 4, v0')
    p('v_and_b32 v1, 7, v0\nv_lshrrev_b32 v2, 4, v0\nv_xor_b32 v1, v1, v2\nv_lshlrev_b32 v1, 4, v1')
    p('v_bfe_u32 v3, v0, 3, 1\nv_bfe_u32 v4, v0, 4, 1\nv_bfe_u32 v5, v0, 5, 1')
    p(f'v_lshlrev_b32 v6, 3, v4\nv_lshlrev_b32 v7, 2, v5\nv_add3_u32 v6, v6, v7, v3\nv_lshlrev_b32 v6, 13, v6\nv_add_u32 v{vK0}, v6, v1\nv_xor_b32 v{vK1}, 64, v{vK0}')
    p('s_lshr_b32 s20, s12, 1\ns_lshl_b32 s20, s20, 5\ns_and_b32 s21, s12, 1\ns_lshl_b32 s21, s21, 1\ns_add_u32 s20, s20, s21')
    p('s_lshl_b32 s21, s15, 6\ns_add_u32 s20, s20, s21\ns_lshl_b32 s20, s20, 13\ns_lshl_b32 s21, s14, 9\ns_add_u32 s20, s20, s21')
    p('s_lshl_b32 s26, s12, 11\ns_mul_i32 s27, s12, 14336\ns_add_u32 s27, s27, 32768')
    if isB: p('s_mul_i32 s22, s14, 229376')
    def nsetup():
        if not isB:
            p(f'v_lshlrev_b32 v6, 4, v5\nv_lshlrev_b32 v7, 2, v4\nv_add3_u32 v6, v6, v7, v3\nv_lshlrev_b32 v6, 13, v6\nv_add_u32 v{vN}, v6, v1\nv_xor_b32 v{vN + 1}, 64, v{vN}')
            p(f'v_lshlrev_b32 v6, 3, v5\nv_add3_u32 v6, v6, v7, v3\nv_lshlrev_b32 v6, 13, v6\nv_add_u32 v{vN + 2}, v6, v1\nv_xor_b32 v{vN + 3}, 64, v{vN + 2}')
            p('s_lshr_b32 s22, s12, 1\ns_mul_i32 s22, s22, 224\ns_and_b32 s25, s12, 1')
            p('s_lshl_b32 s23, s25, 5\ns_add_u32 s23, s23, s22\ns_add_u32 s23, s23, 128')
            p('s_lshl_b32 s24, s25, 1\ns_add_u32 s24, s24, s22\ns_add_u32 s24, s24, 192')
            p('s_lshl_b32 s25, s25, 6\ns_add_u32 s22, s22, s25')
            for r in (22, 23, 24): p(f's_lshl_b32 s{r}, s{r}, 13\ns_add_u32 s{r}, s{r}, s21')
        else:
            p('s_mul_i32 s24, s12, 896\ns_mov_b32 s25, 0x4924925')
            for i in range(14):
                p(f's_add_u32 s23, s24, {64 * i}\nv_add_u32 v6, s23, v0\nv_mul_hi_u32 v7, s25, v6')
                p('v_mul_u32_u24 v8, 56, v7\nv_sub_u32 v6, v6, v8\nv_bfe_u32 v8, v7, 1, 1\nv_bfe_u32 v9, v7, 3, 1\nv_lshlrev_b32 v9, 1, v9\nv_or_b32 v8, v8, v9')
                p(f'v_lshlrev_b32 v8, 1, v8\nv_xor_b32 v6, v6, v8\nv_lshlrev_b32 v6, 4, v6\nv_mul_u32_u24 v7, 896, v7\nv_add_u32 v{vN + i}, v6, v7')

    def qsel(q):
        if cfg.get('qrot', 0): p(f's_add_u32 s29, s15, {q}\ns_and_b32 s29, s29, 3')
        else: p(f's_mov_b32 s29, {q}')
        p(f's_mul_i32 s33, s29, {64 * 896}\ns_lshl_b32 s29, s29, 7')
    def touch():
        if isB:
            p(f's_lshl_b32 s28, s15, 15\ns_add_u32 s28, s28, s22\ns_lshl_b32 s29, s12, 13\ns_add_u32 s28, s28, s29\nv_lshlrev_b32 v6, 7, v0')
        else:
            p(f's_lshl_b32 s28, s15, 19\ns_add_u32 s28, s28, s21\ns_lshl_b32 s29, s12, 17\ns_add_u32 s28, s28, s29')
            p('v_lshrrev_b32 v6, 2, v0\nv_lshlrev_b32 v6, 13, v6\nv_and_b32 v7, 3, v0\nv_lshl_add_u32 v6, v7, 7, v6')
        p(ld('v244', 6, 's28', fl=flN, n=1, srd=R1))
    def issueK():
        for q in range(4):
            qsel(q)
            for ii in range(2):
                p(f's_add_u32 m0, s26, {q * 8192 + ii * 1024}\ns_add_u32 s28, s20, {ii * 16 * 8192}\ns_add_u32 s28, s28, s29')
                p(lddma(vK0 + ii, 's28', fl=flK, srd=R0))
    def issue_groups(q):
        b = (q & 1) * 57344
        sq, sb_ = (29, 33) if q & 1 == 0 else (35, 36)
        pre = []
        if cfg.get('qrot', 0): pre.append(f's_add_u32 s{sq}, s15, {q}\ns_and_b32 s{sq}, s{sq}, 3')
        else: pre.append(f's_mov_b32 s{sq}, {q}')
        pre.append(f's_mul_i32 s{sb_}, s{sq}, {64 * 896}\ns_lshl_b32 s{sq}, s{sq}, 7')
        if isB: pre.append(f's_add_u32 s{sb_}, s22, s{sb_}')
        out = []
        for i in range(14):
            g = pre if i == 0 else []
            g = g + [f's_add_u32 m0, s27, {b + i * 1024}']
            if isB:
                g.append(lddma(vN + i, f's{sb_}', fl=flN, srd=R1))
            else:
                T, ii = i >> 1, i & 1
                if T < 4: sb, rc, va = 22, 8 * (4 * ii + (T >> 1)) + 2 * (T & 1), vN + ii
                elif T < 6: sb, rc, va = 23, 16 * ii + 2 * (T & 1), vN + 2 + ii
                else: sb, rc, va = 24, 16 * ii, vN + 2 + ii
                g.append(f's_add_u32 s28, s{sb}, {rc * 8192}\ns_add_u32 s28, s28, s{sq}')
                g.append(lddma(va, 's28', fl=flN, srd=R1))
            out.append('\n'.join(g))
        return out
    def issue(q):
        for g in issue_groups(q): p(g)
    prof(p, cfg, 9)
    if cfg.get('gtouch', 1): touch()
    issueK(); walk(p, cfg); nsetup(); issue(0); issue(1)
    ni = init_fill(p, vL16, 240)
    prof(p, cfg, 6)
    p('v_and_b32 v1, 15, v0\nv_lshrrev_b32 v2, 4, v0\nv_lshrrev_b32 v3, 1, v1\nv_xor_b32 v3, v3, v2\nv_lshlrev_b32 v3, 4, v3\nv_lshlrev_b32 v4, 7, v1')
    p(f'v_add_u32 v{vKr0}, v3, v4\nv_xor_b32 v{vKr1}, 64, v{vKr0}')
    if not isB:
        p(f'v_add_u32 v{vR}, s27, v{vKr0}\nv_add_u32 v{vR + 1}, s27, v{vKr1}')
        nR = 2
    else:
        p('v_lshrrev_b32 v3, 2, v1\nv_and_b32 v4, 3, v0\nv_lshlrev_b32 v5, 3, v2\nv_add_u32 v5, v5, v3\nv_mul_u32_u24 v5, 896, v5\nv_lshlrev_b32 v4, 3, v4\nv_add_u32 v5, v5, v4')
        p('v_add_u32 v5, 32768, v5\nv_lshrrev_b32 v3, 1, v3\nv_and_b32 v4, 1, v2\nv_lshlrev_b32 v4, 1, v4\nv_or_b32 v3, v3, v4\ns_mul_i32 s23, s12, 7')
        for T in range(7):
            p(f's_add_u32 s24, s23, {T}\nv_xor_b32 v4, s24, v3\nv_lshlrev_b32 v4, 5, v4\nv_add_u32 v{vR + T}, v4, v5')
        nR = 7
    def reads(b, es, q):
        r = [dsr(vr(KF(b, tt), 4), vKr0 + es, 8192 * q + 2048 * tt) for tt in range(4)]
        for T in range(7):
            if isB:
                r += [dstr(vr(NF(b, T) + 2 * hf, 2), vR + T, (32 * es + 4 * hf) * 896) for hf in range(2)]
            else:
                r.append(dsr(vr(NF(b, T), 4), vR + es, 2048 * T))
        return r
    def mfmas(b, first, extra, dma=(), tail=None):
        extra = list(extra); dma = list(dma); k = 0
        for T in range(7):
            tl = tail(T - 2) if (tail and T >= 2) else []
            for tt in range(4):
                c = '0' if first else vr(acc(T, tt), 4)
                p(f'{MF32} {vr(acc(T, tt), 4)}, {vr(KF(b, tt), 4)}, {vr(NF(b, T), 4)}, {c}')
                if extra: p(extra.pop(0))
                if dma and k % 4 == 1: p(dma.pop(0))
                n = -(-len(tl) // (4 - tt))
                for x in tl[:n]: p(x)
                tl = tl[n:]
                k += 1
        assert not extra and not dma
    def epi(T):
        o = 164 + 8 * (T & 1) if False else 120 + 8 * (T & 1)
        out = []
        for tt in range(4):
            a = acc(T, tt)
            if not isB:
                out += [f'v_pk_mul_f32 v[{a}:{a + 1}], v[{a}:{a + 1}], s[24:25]', f'v_pk_mul_f32 v[{a + 2}:{a + 3}], v[{a + 2}:{a + 3}], s[24:25]']
            out += [cvt(o + 2 * tt, a), cvt(o + 2 * tt + 1, a + 2)]
        if isB:
            out.append(f's_add_u32 s24, s23, {T}\ns_lshr_b32 s25, s24, 1\ns_mul_i32 s25, s25, {448 * 1024}\ns_and_b32 s24, s24, 1\ns_mul_i32 s24, s24, 14336\ns_add_u32 s22, s26, s25\ns_add_u32 s22, s22, s24')
        out += [st(vr(o, 4), vL16, 's22', 0, cfg.get('stW', 'sc1'), n=4), st(vr(o + 4, 4), vL16, 's22', 1024, cfg.get('stW', 'sc1'), n=4)]
        if not isB: out.append('s_add_u32 s22, s22, 14336')
        return out
    carry = []
    for q in range(4):
        p(f's_waitcnt vmcnt({(14 + ni, 7 + ni, 7, 0)[q]})\ns_barrier')
        if q == 3: ticket(p)
        prof(p, cfg, 11 + q)
        for x in reads(0, 0, q): p(x)
        p('s_waitcnt lgkmcnt(0)')
        mfmas(0, q == 0, reads(1, 1, q), carry)
        carry = []
        p('s_waitcnt lgkmcnt(0)')
        if q < 2:
            p('s_barrier')
            g = issue_groups(q + 2); carry = g[7:]
            mfmas(1, False, [], g[:7])
        elif q == 2:
            mfmas(1, False, [])
        else:
            if not isB:
                p(f's_mov_b32 s24, 0x{0x3db8aa3b:x}\ns_mov_b32 s25, s24')
                p(f's_lshl_b32 s22, s14, 2\ns_add_u32 s22, s22, s12\ns_mul_i32 s22, s22, {98 * 1024}\ns_lshl_b32 s23, s15, 11\ns_add_u32 s22, s22, s23\ns_add_u32 s22, s22, {OFF_A}')
            else:
                p(f's_mul_i32 s26, s14, 28672\ns_lshl_b32 s23, s15, 11\ns_add_u32 s26, s26, s23\ns_add_u32 s26, s26, {OFF_B}\ns_mul_i32 s23, s12, 7')
            mfmas(1, False, [], tail=epi)
            prof(p, cfg, 15)
            for T in (5, 6):
                for x in epi(T): p(x)
        if q < 3:
            for r in [vR + i for i in range(nR)]: p(f'v_add_u32 v{r}, {57344 if q & 1 == 0 else -57344}, v{r}')
    p('s_mov_b32 s23, 16\ns_mov_b32 s24, 111' if isB else 's_mov_b32 s23, s14\ns_mov_b32 s24, 6')
```

```python
from common import *
import layout as L

def fast_poll(p, loads, chk, tmp, depth, space, spec, undo, switch, early=None, ci=None, behind=None):
    lab = p.uid('L_fp')
    assert not early or depth == 1
    p('s_mov_b32 s31, 0')
    for d in range(depth - 1):
        for l in loads: p(l)
        if space: p(f's_sleep {space}')
    for l in loads: p(l)
    if behind:
        assert depth == 1 and not early
        for l in behind: p(l)
        p(f's_waitcnt vmcnt({len(behind)})\ns_branch {lab}_c')
    p(f'{lab}_w:')
    ci = ci or chk_instrs(chk, tmp)
    if early:
        for x in early:
            p(x)
            if x.startswith('v_smf') and ci: p(ci.pop(0))
    else:
        p(f's_waitcnt vmcnt({len(loads) * (depth - 1)})')
    if behind: p(f'{lab}_c:')
    for x in ci: p(x)
    for x in spec: p(x)
    p(f's_cbranch_vccnz {lab}')
    def tail():
        p(f'{lab}:')
        p(f's_add_u32 s31, s31, 1\ns_cmp_ge_u32 s31, 48\ns_cbranch_scc1 {lab}_sw')
        p(f'{lab}_r:')
        for l in loads: p(l)
        for l in undo: p(l)
        p(f's_branch {lab}_w')
        p(f'{lab}_sw:')
        p(f's_cmp_gt_u32 s31, {TMO}\ns_cbranch_scc1 {FAIL}\ns_cmp_lg_u32 s31, 48\ns_cbranch_scc1 {lab}_r')
        p('s_waitcnt vmcnt(0)')
        for x in switch: p(x)
        for d in range(depth - 1):
            for l in loads: p(l)
        p(f's_branch {lab}_r')
    return tail

def quick_poll(p, loads, chk, tmp, depth, space, shadow, switch, unroll=4, gap=0):
    lab = p.uid('L_qp')
    p('s_mov_b32 s31, 0')
    for d in range(depth - 1):
        for l in loads: p(l)
        if space: p(f's_nop {space - 1}' if space <= 16 else f's_nop 15\ns_nop {space - 17}')
    p(f'{lab}:')
    for u in range(unroll):
        for l in loads: p(l)
        p(f's_waitcnt vmcnt({len(loads) * (depth - 1)})')
        for x in chk_instrs(chk, tmp): p(x)
        for x in shadow: p(x)
        p(f's_cbranch_vccz {lab}_go')
        if gap: p(f's_nop {gap - 1}')
    p(f's_add_u32 s31, s31, 1\ns_cmp_lt_u32 s31, 16\ns_cbranch_scc1 {lab}')
    p(f's_cmp_gt_u32 s31, {TMO}\ns_cbranch_scc1 {FAIL}\ns_cmp_lg_u32 s31, 16\ns_cbranch_scc1 {lab}')
    p('s_waitcnt vmcnt(0)')
    for x in switch: p(x)
    for d in range(depth - 1):
        for l in loads: p(l)
    p(f's_branch {lab}\n{lab}_go:')
    return lambda: None

def hint_wait(p, reg, va, so, cfg, delay, w):
    lab = p.uid('L_hw')
    if w == cfg.get('hwave', 3):
        D = cfg.get('hdepth', 4)
        l = ld(f'v{reg}', va, so, n=1)
        p('s_mov_b32 s38, 0')
        for d in range(D - 1): p(l + f'\ns_nop {cfg.get("hgap", 7)}')
        p(f'{lab}:')
        for u in range(3):
            p(f'{l}\ns_waitcnt vmcnt({D - 1})\nv_cmp_eq_u32 vcc, -1, v{reg}\ns_cbranch_vccz {lab}_go')
        p(f's_add_u32 s38, s38, 1\ns_cmp_lt_u32 s38, 64\ns_cbranch_scc1 {lab}')
        p(f'{lab}_go:')
        while delay > 0:
            q = min(delay, 16); p(f's_nop {q - 1}'); delay -= q
    p('s_barrier')

def load_A_weights(p, vL16, rot):
    def Wh(i, q): return ar(8 * i + 4 * q, 4) if i < 32 else vr(120 + 8 * (i - 32) + 4 * q, 4)
    for T in range(7):
        for sg in range(7):
            i = T * 7 + sg; o = (T * 7 + rot(sg)) * 2048
            p(f's_add_u32 s14, s13, {o}')
            p(ld(Wh(i, 0), vL16, 's14')); p(ld(Wh(i, 1), vL16, 's14', 1024))

def load_B_weights(p, vL16, rot, lds_base):
    def Wh(i, q): return ar(8 * i + 4 * q, 4) if i < 32 else vr(176 + 8 * (i - 32) + 4 * q, 4)
    for hn in range(6):
        for sg in range(7):
            i = hn * 7 + sg; o = (hn * 7 + rot(sg)) * 2048
            p(f's_add_u32 s14, s13, {o}')
            p(ld(Wh(i, 0), vL16, 's14')); p(ld(Wh(i, 1), vL16, 's14', 1024))
    for k in range(7):
        p(f's_add_u32 m0, {lds_base}, {k * 4096}\ns_add_u32 s14, s13, {84 * 1024 + k * 4096}')
        for j in range(4): p(lddma(vL16, 's14', j * 1024))

def idx_reg(p, IDX):
    p(f'v_bfe_u32 v5, v0, 1, 1\nv_mov_b32 v6, 0x4444\nv_mov_b32 v7, 0xeeee\nv_cmp_eq_u32 vcc, 1, v5\nv_cndmask_b32 v{IDX}, v6, v7, vcc')

def gen_A(p, w, cfg):
    LM, LT, LMm, LX = 0, 7168, 11264, 13312
    mA = lambda sg: 8 + 4 * sg
    acc = lambda T: 36 + 4 * T
    Sa = lambda t: 64 + 4 * t
    Hh = lambda t: 76 + 8 * t
    SEL2, SEL1, IDX = 100, 104, 106
    vL16, vH1, vH2, vSadd, vSrd, vPt, vX1, vT0, vT1, vMadd, vX2, vMrd, vNI = range(107, 120)
    def W(T, sg):
        i = T * 7 + sg
        return ar(8 * i, 8) if i < 32 else vr(120 + 8 * (i - 32), 8)
    P_, b = w >> 1, w & 1
    rot = lambda sg: L.slot_chunk(w, sg)
    p(f'v_lshlrev_b32 v{vL16}, 4, v0')
    p(f's_mul_i32 s13, s11, {4 * 98 * 1024}\ns_add_u32 s13, s13, {OFF_A + w * 98 * 1024}')
    load_A_weights(p, vL16, rot)
    p(f'v_lshrrev_b32 v1, 4, v0\nv_and_b32 v2, 15, v0\nv_and_b32 v3, 7, v0')
    idx_reg(p, IDX)
    p(f'v_mov_b32 v6, 0x3f80\nv_mov_b32 v7, 0x3f800000\nv_and_b32 v4, 1, v0\nv_cmp_eq_u32 vcc, 1, v4\nv_cndmask_b32 v6, v6, v7, vcc')
    p(f'v_lshrrev_b32 v4, 2, v2\nv_cmp_eq_u32 vcc, v4, v1\nv_cndmask_b32 v6, 0, v6, vcc')
    for hh in range(2):
        p(f'v_cmp_eq_u32 vcc, {hh}, v5')
        for q2 in range(2): p(f'v_cndmask_b32 v{SEL2 + 2 * hh + q2}, 0, v6, vcc')
    for q2 in range(2): p(f'v_mov_b32 v{SEL1 + q2}, v{SEL2 + 2 * b + q2}')
    p(f'v_add_u32 v4, {28 * P_ + 8 * b}, v1')
    p(f'v_and_b32 v5, 1, v1\nv_mul_u32_u24 v5, {24 - 16 - 4 * b}, v5\nv_lshrrev_b32 v7, 1, v1\nv_add_u32 v5, v5, v7\nv_add_u32 v5, {28 * P_ + 16 + 4 * b}, v5')
    emit_maddr(p, vH1, 4, 3, 6, 7); emit_maddr(p, vH2, 5, 3, 6, 7)
    p(f'v_lshlrev_b32 v6, 4, v2\nv_add_u32 v6, {LX}, v6\nv_lshl_add_u32 v{vX1}, v4, 9, v6\nv_lshl_add_u32 v{vX2}, v5, 9, v6')
    p(f'v_and_b32 v4, 1, v1\nv_lshrrev_b32 v5, 1, v1')
    p(f'v_lshlrev_b32 v7, 8, v1\nv_lshlrev_b32 v3, 3, v2\nv_add_u32 v7, v7, v3\nv_add_u32 v{vSadd}, {LT + w * 1024}, v7')
    p(f'v_lshlrev_b32 v7, 7, v4\nv_add_u32 v7, v7, v3\nv_add_u32 v{vSrd}, {LT + 2 * w * 128}, v7')
    p(f'v_lshlrev_b32 v7, 7, v1\nv_lshlrev_b32 v3, 2, v2\nv_add_u32 v7, v7, v3\nv_add_u32 v{vMadd}, {LMm + w * 512}, v7')
    p(f'v_lshlrev_b32 v7, 6, v4\nv_add_u32 v7, v7, v3\nv_add_u32 v{vMrd}, {LMm + 2 * w * 64}, v7')
    p(f's_lshl_b32 s13, s11, 10\ns_add_u32 s13, s13, {w * 256}')
    p(f'v_lshrrev_b32 v6, 2, v2\nv_lshlrev_b32 v6, 5, v6\nv_lshl_add_u32 v6, v4, 4, v6')
    p(f'v_and_b32 v7, 3, v2\nv_lshl_add_u32 v6, v7, 2, v6\nv_add_u32 v{vPt}, s13, v6')
    p(f's_add_u32 s13, s13, 128\nv_bfe_u32 v6, v2, 2, 1\nv_lshlrev_b32 v6, 4, v6\nv_lshl_add_u32 v6, v4, 3, v6\nv_bfe_u32 v7, v2, 1, 1\nv_lshl_add_u32 v6, v7, 2, v6\nv_add_u32 v6, s13, v6')
    if cfg.get('pfill', 1):
        p(f'v_and_b32 v3, 1, v2\nv_lshrrev_b32 v7, 3, v2\nv_lshl_add_u32 v3, v7, 1, v3\nv_lshl_add_u32 v6, v3, 5, v6\nv_mov_b32 v7, 0x7ffffff0')
    else:
        p(f'v_and_b32 v3, 9, v2\nv_mov_b32 v7, 0x7ffffff0\nv_cmp_eq_u32 vcc, 0, v3\nv_cndmask_b32 v6, v7, v6, vcc')
    p(f'v_cmp_eq_u32 vcc, 1, v5\nv_cndmask_b32 v{vPt}, v{vPt}, v6, vcc')
    p(f's_lshl_b32 s13, s11, 2\nv_mov_b32 v5, s13\nv_cmp_eq_u32 vcc, 0, v0\nv_cndmask_b32 v5, v7, v5, vcc')
    p(f'v_min_u32 v4, 13, v2\nv_lshlrev_b32 v4, 2, v4\nv_lshrrev_b32 v1, 4, v0\nv_lshl_add_u32 v4, v1, 7, v4\nv_mov_b32 v1, 0\nv_mov_b32 v3, 0\ns_mov_b32 s23, 0x7ffffff0')
    p(f'v_mov_b32 v{vNI}, 0xff800000')
    p('s_mov_b32 s16, 0xff00ff00\ns_mov_b32 s17, 0xff00ff00')
    p('s_mov_b32 s18, 0\ns_mov_b32 s19, -1\ns_mov_b32 s35, 0x42800000\ns_mov_b32 s34, 0xfffffffe')
    t0, t1 = rot(0), rot(1)
    p(f's_mov_b32 s25, {OFF_MF}\ns_mov_b32 s26, {OFF_MS0}\ns_mov_b32 s22, {OFF_PF}\ns_mov_b32 s24, {OFF_XN + w * 7168}')
    def xgroups(sbuf):
        g = []
        for k in range(7):
            cur = []
            if (k & 3) == 0: cur.append(f's_add_u32 m0, {sbuf}, {LX + w * 7168 + (k >> 2) * 4096}')
            cur.append(lddma(vL16, 's24', (k & 3) * 1024))
            if k == 3: cur.append('s_add_u32 s24, s24, 4096')
            if k == 6: cur.append(f's_add_u32 s24, s24, {28672 - 4096}')
            g.append(cur)
        return g
    wait_go(p, 7, 4, 36)
    p('s_mov_b32 s32, 0\ns_mov_b32 s33, 28672')
    for g_ in xgroups('s32'):
        for x in g_: p(x)
    for r in range(36, 76): p(f'v_mov_b32 v{r}, 0')
    p('s_mov_b32 s30, 0\ns_waitcnt vmcnt(0) lgkmcnt(0)\ns_barrier')
    prof(p, cfg, 3)
    rstamp_cal(p, cfg, 0)
    loop = p.uid('L_Aloop')
    p(f'{loop}:')
    p(f's_add_u32 s20, s25, {t0 * 1024}\ns_add_u32 s21, s25, {t1 * 1024}')
    hint = cfg.get('hint', 1)
    if cfg.get('a_delay'): p(f's_sleep {cfg["a_delay"]}')
    if hint:
        p(f's_add_u32 s27, s25, {EM_OFF}')
        hint_wait(p, 6, 4, 's27', cfg, cfg.get('ah_delay', 0), w)
    chk = [mA(0) + i for i in range(8)]
    def qs(T, sg): return f'{SMF} {vr(acc(T), 4)}, {vr(mA(sg), 4)}, {W(T, sg)}, v{IDX}'
    seq = [(T, 0) for T in range(7)] + [(T, 1) for T in range(7)]
    wr = [dsw(vL16, vr(mA(0), 4), LM + t0 * 1024)]
    if w != 3: wr.append(dsw(vL16, vr(mA(1), 4), LM + t1 * 1024))
    loads = [ld(vr(mA(0), 4), vL16, 's20'), ld(vr(mA(1), 4), vL16, 's21')]
    npre = cfg.get('npre', 7); wpos = cfg.get('wpos', 2)
    pstore = st('v3', vPt, 's23', 0, 'sc1')
    sw = [pstore, f's_add_u32 s20, s26, {t0 * 1024}', f's_add_u32 s21, s26, {t1 * 1024}']
    if cfg.get('quick', 1):
        tailA = quick_poll(p, loads, [mA(0) + 3, mA(1) + 3], vT0, cfg.get('depth', 2), cfg.get('qspace', 24), wr[:cfg.get('ashadow', 1)], sw, gap=cfg.get('agap', 0))
        rstamp(p, cfg, 0)
        rest_w = wr[cfg.get('ashadow', 1):]
        for i, a in enumerate(seq[:npre]):
            p(qs(*a))
            if rest_w and i in (0 if len(rest_w) == 2 else -1, wpos): p(rest_w.pop(0))
            if i == cfg.get('pspos', 4): p(pstore)
        assert not rest_w
    elif cfg.get('early', 1):
        ea = ['s_waitcnt vmcnt(1)', qs(*seq[0]), wr[0], 's_waitcnt vmcnt(0)', qs(*seq[1]), qs(*seq[2])] + wr[1:] + [qs(*seq[3]), qs(*seq[4])]
        tailA = fast_poll(p, loads, chk, vT0, 1, 0, [qs(*seq[5])], [f'v_mov_b32 v{r}, 0' for r in range(36, 60)], sw, early=ea)
        rstamp(p, cfg, 0)
        for a in seq[6:npre]: p(qs(*a))
    else:
        tailA = fast_poll(p, loads, chk, vT0, cfg.get('depth', 2), cfg.get('space', 2), [qs(*seq[0]), wr[0]],
                          [f'v_mov_b32 v{r}, 0' for r in range(36, 40)], sw)
        rstamp(p, cfg, 0)
        for i, a in enumerate(seq[1:npre]):
            p(qs(*a))
            if i == wpos - 1 and len(wr) > 1: p(wr[1])
    p('s_waitcnt lgkmcnt(0)\ns_barrier')
    rstamp(p, cfg, 1)
    def hreads(blk):
        r = []
        va, st_ = (vH1, 512) if blk == 0 else (vH2, 256)
        vx = vX1 if blk == 0 else vX2
        for p3 in range(2): r.append(dsr(vr(Hh(0) + 4 * p3, 4), va, LM + p3 * st_))
        for tile in range(2):
            for p3 in range(2): r.append(dsr(vr(Hh(1 + tile) + 4 * p3, 4), vx, p3 * st_ * 4 + tile * 256))
        return r
    mr = [dsr(vr(mA(sg), 4), vL16, LM + rot(sg) * 1024) for sg in range(2, 7)]
    p(mr[0]); p(mr[1])
    mi = 2
    for a in seq[npre:]:
        p(qs(*a))
        if mi < 5: p(mr[mi]); mi += 1
    for x in mr[mi:]: p(x)
    p('s_waitcnt lgkmcnt(0)')
    def cvt_pair(T):
        a = acc(T); return [cvt(a, a), cvt(a + 1, a + 2), cvt(a + 2, a + 4), cvt(a + 3, a + 6)]
    def tr_pair(T): return f'{MF32} {vr(acc(T + 1), 4)}, {vr(acc(T), 4)}, {vr(SEL2, 4)}, 0'
    def cvt_D(src, dst): return [cvt(dst, src), cvt(dst + 1, src + 2)]
    A2 = [acc(0), acc(4)]
    def sm(blk, t): return f'{SMF} {vr(Sa(t), 4)}, {vr(A2[blk], 4)}, {vr(Hh(t), 8)}, v{IDX}'
    fill = {k: [] for k in range(36)}
    for i, g_ in enumerate(xgroups('s33')): fill[4 * i + w] += g_
    hr = hreads(0)
    for i in range(6): fill[1 + i].append(hr[i])
    c0, c2, c4 = cvt_pair(0), cvt_pair(2), cvt_pair(4)
    fill[9] += c0[:1]; fill[10] += c0[1:2]; fill[14] += c0[2:3]; fill[15] += c0[3:]
    fill[17] += [tr_pair(0)]
    fill[19] += c2[:1]; fill[20] += c2[1:2]
    fill[22] += cvt_D(acc(1), A2[0])[:1]; fill[23] += cvt_D(acc(1), A2[0])[1:]
    fill[24] += c2[2:3]; fill[25] += c2[3:]
    fill[27] += [tr_pair(2)]
    fill[29] += c4[:1]; fill[30] += c4[1:2]
    fill[32] += cvt_D(acc(3), A2[0] + 2)[:1]; fill[33] += cvt_D(acc(3), A2[0] + 2)[1:]
    k = 0
    for T in range(7):
        for sg in range(2, 7):
            p(qs(T, sg))
            for x in fill[k]: p(x)
            k += 1
    eflag = [f's_add_u32 s27, s25, {8192 + EP_OFF}', st('v1', 5, 's27')] if (hint and w == cfg.get('ewave', 0)) else []
    epos = cfg.get('a_epos', 0)
    if epos == -2:
        for x in eflag: p(x)
    h2 = hreads(1)
    a6 = acc(6)
    p(c4[2]); p(c4[3])
    p('s_waitcnt lgkmcnt(0)')
    p(sm(0, 0)); p(tr_pair(4)); p(h2[0]); p(h2[1])
    p(cvt(a6, a6)); p(cvt(a6 + 1, a6 + 2))
    p(sm(0, 1)); p(h2[2])
    p(f'{MF16} {vr(acc(1), 4)}, {vr(a6, 2)}, {vr(SEL1, 2)}, 0')
    p(h2[3])
    p(sm(0, 2)); p(h2[4]); p(h2[5])
    for x in cvt_D(acc(5), A2[1]): p(x)
    for x in cvt_D(acc(1), A2[1] + 2): p(x)
    lk = (lambda n: 0) if cfg.get('rprof') else (lambda n: n)
    p('s_waitcnt lgkmcnt(4)'); p(sm(1, 0))
    p('s_waitcnt lgkmcnt(2)'); p(sm(1, 1))
    p('s_waitcnt lgkmcnt(0)'); p(sm(1, 2))
    rstamp(p, cfg, 2)
    if epos == -1:
        for x in eflag: p(x)
    m_, t0_, t1_ = Sa(0), Sa(1), Sa(2)
    p(f'v_pk_add_f32 v[{m_}:{m_ + 1}], v[{m_}:{m_ + 1}], v[{m_ + 2}:{m_ + 3}]')
    p(f'v_add_f32 v36, v{t0_}, v{t0_ + 2}\nv_add_f32 v38, v{t0_ + 1}, v{t0_ + 3}')
    p(f'ds_write2_b32 v{vMadd}, v{m_}, v{m_ + 1} offset0:0 offset1:16')
    p(f'v_add_f32 v37, v{t1_}, v{t1_ + 2}\nv_add_f32 v39, v{t1_ + 1}, v{t1_ + 3}')
    p(f'ds_write2_b64 v{vSadd}, v[36:37], v[38:39] offset0:0 offset1:16')
    p('s_waitcnt lgkmcnt(0)\ns_barrier')
    rstamp(p, cfg, 3)
    p(f'ds_read2st64_b32 v[84:85], v{vMrd} offset0:0 offset1:2\nds_read2st64_b32 v[86:87], v{vMrd} offset0:4 offset1:6')
    for wv in range(4): p(dsr(vr(76 + 2 * wv, 2), vSrd, wv * 1024, 2))
    if epos == 0:
        for x in eflag: p(x)
    p(f's_waitcnt lgkmcnt({lk(4)})')
    p('v_pk_add_f32 v[84:85], v[84:85], v[86:87]\nv_add_f32 v84, v84, v85')
    s0, s1, s2 = 84, 76, 77
    e0, e1, e2 = 85, 78, 79
    p(f'v_exp_f32 v{e0}, v{s0}')
    p(f's_waitcnt lgkmcnt({lk(2)})')
    p('v_pk_add_f32 v[76:77], v[76:77], v[78:79]')
    p(f'v_cndmask_b32 v{e0}, v{e0}, 0, s[16:17]')
    p('s_waitcnt lgkmcnt(0)')
    p('v_pk_add_f32 v[80:81], v[80:81], v[82:83]\nv_pk_add_f32 v[76:77], v[76:77], v[80:81]')
    rstamp(p, cfg, 4)
    if epos == 1:
        for x in eflag: p(x)
    lab = p.uid('L_sm')
    p(f'v_max3_f32 v{vT0}, abs(v{s0}), abs(v{s1}), abs(v{s2})')
    p(f'v_cmp_nge_f32 vcc, s35, v{vT0}')
    p(f'v_exp_f32 v{e1}, v{s1}\nv_exp_f32 v{e2}, v{s2}')
    p(f's_cbranch_vccnz {lab}_max\n{lab}:')
    p(f'v_add_f32 v{vT0}, v{e0}, v{e1}\nv_add_f32 v{vT0}, v{vT0}, v{e2}')
    p(f'v_mov_b32_dpp v{vT1}, v{e0} quad_perm:[1,0,3,2] {DPP}')
    p(f'v_cndmask_b32 v{e1}, v{e1}, v{e0}, s[18:19]')
    p(f'v_add_f32_dpp v{vT0}, v{vT0}, v{vT0} row_ror:8 {DPP}')
    p(f'v_cndmask_b32 v{e2}, v{e2}, v{vT1}, s[18:19]')
    for sh in (4, 2, 1): p(f'v_add_f32_dpp v{vT0}, v{vT0}, v{vT0} row_ror:{sh} {DPP}')
    p(f'v_rcp_f32 v{vT0}, v{vT0}')
    p(f'v_mul_f32 v{e1}, v{e1}, v{vT0}\nv_mul_f32 v{e2}, v{e2}, v{vT0}')
    p(f'v_cvt_pk_bf16_f32 v{e1}, v{e1}, v{e2}\nv_min_u32 v{e1}, s34, v{e1}')
    p(st(f'v{e1}', vPt, 's22'))
    rstamp(p, cfg, 5)
    p(f's_add_u32 s23, s22, {OFF_PS - OFF_PF}\nv_mov_b32 v3, v{e1}')
    if cfg.get('pspos', 4) == -1: p(pstore)
    for r in range(36, 76): p(f'v_mov_b32 v{r}, 0')
    if cfg.get('pspos', 4) == -2: p(pstore)
    p(f's_sub_u32 s36, s33, s32\nv_add_u32 v{vX1}, s36, v{vX1}\nv_add_u32 v{vX2}, s36, v{vX2}\ns_mov_b32 s36, s32\ns_mov_b32 s32, s33\ns_mov_b32 s33, s36')
    p(f's_add_u32 s25, s25, 8192\ns_add_u32 s26, s25, {OFF_MS - OFF_MF}\ns_add_u32 s22, s22, {PSLOT}')
    rstamp_flush(p, cfg, w, 84)
    p(f's_add_u32 s30, s30, 1\ns_cmp_lt_u32 s30, {NSTEP}\ns_cbranch_scc1 {loop}')
    p(pstore)
    rstamp_dump(p, cfg, w)
    p('s_branch L_exit')
    tailA()
    p(f'{lab}_max:')
    p(f'v_cndmask_b32 v{s0}, v{s0}, v{vNI}, s[16:17]')
    p(f'v_max3_f32 v{vT0}, v{s0}, v{s1}, v{s2}')
    for sh in (8, 4, 2, 1): p(f'v_max_f32_dpp v{vT0}, v{vT0}, v{vT0} row_ror:{sh} {DPP}')
    for s_ in (s0, s1, s2): p(f'v_sub_f32 v{s_}, v{s_}, v{vT0}')
    for e_, s_ in ((e0, s0), (e1, s1), (e2, s2)): p(f'v_exp_f32 v{e_}, v{s_}')
    p(f's_branch {lab}')

def y_phase(p, mA, Ya, Ww, W, IDX, vLW, rot, extra, Yop, mid=None, transpose=False):
    def wread(sg):
        return [dsr(vr(Ww(2 * sg + nt) + 4 * q_, 4), vLW, ((nt * 7 + rot(sg)) * 2 + q_) * 1024) for nt in range(2) for q_ in range(2)]
    def fin(hh, nt):
        a = Ya(hh, nt)
        return [f'v_pk_add_f32 v[{a}:{a + 1}], v[{a}:{a + 1}], v[{a + 2}:{a + 3}]', cvt(Yop(nt) + ph[hh], a)]
    ph = (0, 2, 1, 3) if transpose else (0, 1, 2, 3)
    vi = iter(extra)
    for sg in range(7):
        if sg >= 2: p('s_waitcnt lgkmcnt(4)' if sg < 6 else 's_waitcnt lgkmcnt(0)')
        for nt in range(2):
            p(f'{SMF} {vr(Ya(3, nt), 4)}, {vr(mA(sg), 4)}, {vr(Ww(2 * sg + nt), 8)}, v{IDX}')
        wrd = wread(sg + 2) if sg + 2 < 7 else []
        if sg == 0 and mid: wrd = []
        for hh in range(3):
            for nt in range(2):
                p(f'{SMF} {vr(Ya(hh, nt), 4)}, {vr(mA(sg), 4)}, {W(hh, nt, sg)}, v{IDX}')
                if wrd: p(wrd.pop(0))
                if (hh, nt) in ((0, 1), (2, 1)) and not (sg == 0 and mid):
                    x = next(vi, None)
                    if x: p(x)
        if sg == 0 and mid:
            for x in mid + wread(2): p(x)
    for x in vi: p(x)
    for hh in (3, 0, 1, 2):
        for nt in range(2): p(fin(hh, nt)[0])
    for hh in (3, 0, 1, 2):
        for nt in range(2): p(fin(hh, nt)[1])
    if transpose:
        for nt in range(2):
            for a, b in ((0, 2), (1, 3)): p(f'{SW32} v{Yop(nt) + ph[a]}, v{Yop(nt) + ph[b]}')
        for nt in range(2):
            for a, b in ((0, 1), (2, 3)): p(f'{SW16} v{Yop(nt) + ph[a]}, v{Yop(nt) + ph[b]}')

def gen_B(p, w, cfg):
    LM, LO, LW = 0, 7168, 12288
    mA = lambda sg: 8 + 4 * sg
    Ya = lambda hh, nt: 36 + 8 * hh + 4 * nt
    Yop = lambda nt: 68 + 4 * nt
    Vi = lambda u, nt: 84 + 16 * u + 8 * nt
    Pt = lambda u: 116 + 4 * u
    Pm = 124
    Oa = lambda nt: 128 + 4 * nt
    Ww = lambda i: 136 + 8 * (i & 3)
    IDX, vL16, vPt, vPm, vOadd, vOrd, vL8, vLW = range(168, 176)
    vT0, vM, vF, vZ = 6, 5, 7, 4
    vEw, vEr, vEm = 76, 77, 78
    hint = cfg.get('hint', 1)
    lk = (lambda n: 0) if cfg.get('rprof') else (lambda n: n)
    rot = lambda sg: L.slot_chunk(w, sg)
    def W(hh, nt, sg):
        i = (hh * 2 + nt) * 7 + sg
        return ar(8 * i, 8) if i < 32 else vr(176 + 8 * (i - 32), 8)
    p(f'v_lshlrev_b32 v{vL16}, 4, v0')
    p(f's_mul_i32 s13, s11, {4 * 112 * 1024}\ns_add_u32 s13, s13, {OFF_B + w * 112 * 1024}\ns_mov_b32 s15, {LW + w * 28672}')
    load_B_weights(p, vL16, rot, 's15')
    p(f'v_add_u32 v{vLW}, {LW + w * 28672}, v{vL16}')
    idx_reg(p, IDX)
    p(f'v_lshrrev_b32 v1, 4, v0\nv_and_b32 v2, 15, v0')
    p(f'v_lshrrev_b32 v4, 2, v2\nv_lshlrev_b32 v4, 8, v4\nv_add_u32 v4, {w * 4096}, v4\nv_and_b32 v6, 3, v0')
    p(f'v_lshl_add_u32 v{vPm}, v6, 3, v4\nv_lshl_add_u32 v{vPm}, v1, 10, v{vPm}\nv_add_u32 v{vPm}, 128, v{vPm}')
    p(f'v_lshl_add_u32 v4, v6, 4, v4\nv_lshrrev_b32 v6, 1, v1\nv_lshl_add_u32 v4, v6, 10, v4\nv_and_b32 v6, 1, v1\nv_lshl_add_u32 v{vPt}, v6, 6, v4')
    p(f'v_mul_u32_u24 v4, 320, v1\nv_lshlrev_b32 v6, 2, v2\nv_add_u32 v4, v4, v6\nv_add_u32 v{vOadd}, {LO + w * 1280}, v4')
    p(f'v_lshlrev_b32 v4, 1, v1\nv_bfe_u32 v6, v0, 2, 1\nv_add_u32 v4, v4, v6\nv_mul_u32_u24 v4, 160, v4\nv_bfe_u32 v6, v0, 3, 1\nv_lshlrev_b32 v6, 5, v6\nv_and_b32 v7, 3, v0\nv_lshlrev_b32 v7, 3, v7')
    p(f'v_add3_u32 v4, v4, v6, v7\nv_add_u32 v{vOrd}, {LO + (w & 1) * 64}, v4')
    p(f's_lshl_b32 s13, s11, 2\ns_add_u32 s13, s13, {128 * w}\nv_mov_b32 v{vEw}, s13\nv_mov_b32 v7, 0x7ffffff0\nv_cmp_eq_u32 vcc, 0, v0\nv_cndmask_b32 v{vEw}, v7, v{vEw}, vcc')
    p(f'v_lshlrev_b32 v{vEr}, 2, v2\nv_min_u32 v4, 13, v2\nv_lshlrev_b32 v4, 2, v4\nv_lshl_add_u32 v{vEm}, v1, 7, v4')
    p(f'v_lshlrev_b32 v{vL8}, 2, v0\nv_add_u32 v{vL8}, {(w & 1) * 256}, v{vL8}')
    p(f's_mov_b32 s34, 0xfffffffe\nv_mov_b32 v{vZ}, 0\nv_mov_b32 v{vM}, 0')
    t0, t1 = rot(0), rot(1)
    p(f's_mov_b32 s25, {OFF_MF}\ns_mov_b32 s26, {OFF_MS0}\ns_mov_b32 s27, {OFF_PF}')
    p(f's_mul_i32 s13, s11, 32768\ns_add_u32 s24, s13, {OFF_V + w * 8192}')
    p(f's_lshl_b32 s13, s11, 9\ns_add_u32 s28, s13, {OFF_MF + 8192}\ns_mov_b32 s29, 0x7ffffff0')
    p(f's_lshl_b32 s13, s11, 6\ns_add_u32 s33, s13, {OFF_VF + 4 * w}')
    for r in list(range(36, 68)) + list(range(128, 136)): p(f'v_mov_b32 v{r}, 0')
    wait_go(p, 7, 4, 1)
    if w == 0:
        lab0 = p.uid('L_go2')
        p(f's_waitcnt vmcnt(0)\ns_cmp_lg_u32 s11, 0\ns_cbranch_scc1 {lab0}\ns_mov_b32 s13, {OFF_GO2}\ns_mov_b64 exec, 1')
        p(st(f'v{vZ}', vZ, 's13', 0, 'sc1') + f'\ns_mov_b64 exec, -1\n{lab0}:')
    slow_poll(p, [ld(f'v{vF}', vZ, 's33', n=1)], [vF], vT0, sleep=4)
    p('s_add_u32 s33, s33, 1024')
    p('s_mov_b32 s30, 0\ns_waitcnt vmcnt(0) lgkmcnt(0)\ns_barrier')
    prof(p, cfg, 3)
    rstamp_cal(p, cfg, 0)
    vl = []
    for k in range(8):
        vl.append(ld(vr(84 + 4 * k, 4), vL16, 's24', (k & 3) * 1024) + (f'\ns_add_u32 s24, s24, {4096 if k == 3 else 14 * 32768 - 4096}' if (k & 3) == 3 else ''))
    if cfg.get('nov'): vl = vl[:8 - cfg['nov']]
    mstore = [st(f'v{vM}', vL8, 's29', 0, 'sc1')] if w < 2 else []
    loop = p.uid('L_Bloop')
    p(f'{loop}:')
    p(f's_add_u32 s20, s25, {t0 * 1024}\ns_add_u32 s21, s25, {t1 * 1024}\ns_mov_b32 s22, s27')
    for sg in range(2):
        for nt in range(2):
            for q_ in range(2): p(dsr(vr(Ww(2 * sg + nt) + 4 * q_, 4), vLW, ((nt * 7 + rot(sg)) * 2 + q_) * 1024))
    if cfg.get('b_delay'): p(f's_sleep {cfg["b_delay"]}')
    vfirst = cfg.get('vfirst', 0)
    if cfg.get('bmhint', 1) and hint:
        p(f's_add_u32 s23, s25, {EM_OFF}')
        hint_wait(p, vF, vEm, 's23', cfg, cfg.get('bm_delay', 32), w)
    chk = [mA(0) + i for i in range(8)] + [vF]
    tailM = fast_poll(p, [ld(vr(mA(0), 4), vL16, 's20'), ld(vr(mA(1), 4), vL16, 's21'), ld(f'v{vF}', vZ, 's33', n=1)], chk, vT0,
              cfg.get('bdepth', 1), cfg.get('space', 2), [], [],
              mstore + [f's_add_u32 s20, s26, {t0 * 1024}', f's_add_u32 s21, s26, {t1 * 1024}'], behind=vl if vfirst else None)
    rstamp(p, cfg, 0)
    p('s_mov_b32 s39, s31\ns_waitcnt lgkmcnt(0)')
    p(dsw(vL16, vr(mA(0), 4), LM + t0 * 1024))
    if w != 3: p(dsw(vL16, vr(mA(1), 4), LM + t1 * 1024))
    npre_v = 8 if not cfg.get('vspread') else cfg.get('vpre', 0)
    if not vfirst:
        for x in vl[:npre_v]: p(x)
    for x in mstore: p(x)
    mid = ['s_waitcnt lgkmcnt(0)', 's_barrier'] + [dsr(vr(mA(sg), 4), vL16, LM + rot(sg) * 1024) for sg in range(2, 7)]
    y_phase(p, mA, Ya, Ww, W, IDX, vLW, rot, ([] if vfirst else vl[npre_v:]), Yop, mid, True)
    rstamp(p, cfg, 1)
    if cfg.get('p_delay'): p(f's_sleep {cfg["p_delay"]}')
    p(f's_add_u32 s23, s25, {8192 + EP_OFF}\ns_add_u32 s32, s25, {8192 + EM_OFF}')
    if hint: hint_wait(p, vF, vEr, 's23', cfg, cfg.get('bh_delay', 0), w)
    rstamp(p, cfg, 2)
    loads = [ld(vr(Pt(0), 4), vPt, 's22'), ld(vr(Pt(1), 4), vPt, 's22', 2048), ld(vr(Pm, 2), vPm, 's22', n=2)]
    om = []
    for u in range(2):
        for nt in range(2): om.append(f'{SMF} {vr(Oa(nt), 4)}, {vr(Pt(u), 4)}, {vr(Vi(u, nt), 8)}, v{IDX}')
    for nt in range(2): om.append(f'{SMF32} {vr(Oa(nt), 4)}, {vr(Pm, 2)}, {vr(Yop(nt), 4)}, v{IDX}')
    undo = [f'v_mov_b32 v{r}, 0' for r in range(128, 136)]
    sw = [f's_add_u32 s22, s27, {OFF_PS - OFF_PF}']
    eflag = [st(f'v{vZ}', vEw, 's32')] if hint else []
    epos = cfg.get('b_epos', 0)
    o0, o1 = Oa(0), Oa(1)
    if cfg.get('quick', 1):
        if epos == -2:
            for x in eflag: p(x)
        tailP = quick_poll(p, loads, [119, 123, 125], vT0, cfg.get('pdepth', 2), cfg.get('qspace', 24), [], sw, gap=cfg.get('pgap', 0))
        rstamp(p, cfg, 3)
        if epos in (0, -1):
            for x in eflag: p(x)
        if cfg.get('oord', 1):
            for i in (4, 5, 0, 2, 1, 3): p(om[i])
        else:
            for x in om: p(x)
    elif cfg.get('early', 1):
        if epos == -2:
            for x in eflag: p(x)
        ea = ['s_waitcnt vmcnt(2)', om[0], om[1], 's_waitcnt vmcnt(1)', om[2], om[3], 's_waitcnt vmcnt(0)'] + (eflag if epos == -1 else []) + [om[4], om[5]]
        ci = [f'v_max3_u32 v{vT0}, v116, v117, v118', f'v_max_u32 v{vT0}, v{vT0}, v119'] + \
             [f'v_max3_u32 v{vT0}, v{vT0}, v{r}, v{r + 1}' for r in (120, 122, 124)] + [f'v_cmp_eq_u32 vcc, -1, v{vT0}']
        tailP = fast_poll(p, loads, None, vT0, 1, 0, [], undo, sw, early=ea, ci=ci)
        rstamp(p, cfg, 3)
        if epos == 0:
            for x in eflag: p(x)
    else:
        tailP = fast_poll(p, loads, list(range(116, 126)), vT0, cfg.get('pdepth', 2), cfg.get('space', 2), om[:2], undo, sw)
        rstamp(p, cfg, 3)
        if epos == 0:
            for x in eflag: p(x)
        for x in om[2:]: p(x)
    p(f'v_pk_add_f32 v[{o0}:{o0 + 1}], v[{o0}:{o0 + 1}], v[{o0 + 2}:{o0 + 3}]')
    p(f'ds_write2_b32 v{vOadd}, v{o0}, v{o0 + 1} offset0:0 offset1:40')
    p(f'v_pk_add_f32 v[{o1}:{o1 + 1}], v[{o1}:{o1 + 1}], v[{o1 + 2}:{o1 + 3}]')
    p(f'ds_write2_b32 v{vOadd}, v{o1}, v{o1 + 1} offset0:16 offset1:56')
    if epos == 1:
        for x in eflag: p(x)
    p('s_waitcnt lgkmcnt(0)\ns_barrier')
    rstamp(p, cfg, 4)
    if w < 2:
        for wv in range(4): p(dsr(vr(36 + 2 * wv, 2), vOrd, wv * 1280, 2))
        p(f's_waitcnt lgkmcnt({lk(2)})\nv_pk_add_f32 v[36:37], v[36:37], v[38:39]\ns_waitcnt lgkmcnt(0)\nv_pk_add_f32 v[40:41], v[40:41], v[42:43]')
        p('v_pk_add_f32 v[36:37], v[36:37], v[40:41]')
        p(f'v_cvt_pk_bf16_f32 v{vM}, v36, v37\nv_min_u32 v{vM}, s34, v{vM}')
        p(st(f'v{vM}', vL8, 's28'))
    rstamp(p, cfg, 5)
    for r in list(range(36, 68)) + list(range(128, 136)): p(f'v_mov_b32 v{r}, 0')
    p(f's_add_u32 s29, s28, {OFF_MS - OFF_MF}\ns_add_u32 s28, s28, 8192')
    p(f's_add_u32 s25, s25, 8192\ns_add_u32 s26, s25, {OFF_MS - OFF_MF}\ns_add_u32 s27, s27, {PSLOT}\ns_add_u32 s33, s33, 1024')
    rstamp_flush(p, cfg, w)
    p(f's_add_u32 s30, s30, 1\ns_cmp_lt_u32 s30, {NSTEP}\ns_cbranch_scc1 {loop}')
    for x in mstore: p(x)
    rstamp_dump(p, cfg, w)
    p('s_branch L_exit')
    tailM(); tailP()

def gen_pref(p, cfg):
    ahead = cfg.get('ahead', 2)
    p('s_lshl_b32 s11, s11, 2\ns_add_u32 s11, s11, s12')
    p('v_lshlrev_b32 v1, 7, v0')
    p(f's_mul_i32 s13, s11, {28 * 128}\ns_add_u32 s13, s13, {OFF_XN}\nv_add_u32 v2, s13, v1\nv_mov_b32 v3, 28672')
    p(f's_lshl_b32 s13, s11, 11\ns_add_u32 s13, s13, {OFF_PF - 28 * 128}\nv_add_u32 v4, s13, v1\nv_mov_b32 v5, {PSLOT}')
    p('v_cmp_lt_u32 vcc, 27, v0\nv_cndmask_b32 v2, v2, v4, vcc\nv_cndmask_b32 v3, v3, v5, vcc')
    p(f's_lshl_b32 s13, s11, 10\ns_add_u32 s13, s13, {OFF_MF + 8192 - 44 * 128}\nv_add_u32 v4, s13, v1\nv_mov_b32 v5, 8192')
    p('v_cmp_lt_u32 vcc, 43, v0\nv_cndmask_b32 v2, v2, v4, vcc\nv_cndmask_b32 v3, v3, v5, vcc')
    p(f's_lshl_b32 s13, s11, 7\ns_add_u32 s13, s13, {OFF_VF + 1024 - 52 * 128}\nv_add_u32 v4, s13, v1\nv_mov_b32 v5, 1024')
    p('v_cmp_lt_u32 vcc, 51, v0\nv_cndmask_b32 v2, v2, v4, vcc\nv_cndmask_b32 v3, v3, v5, vcc')
    p(f'v_mov_b32 v6, 0\ns_mov_b32 s20, {OFF_MS}\ns_mov_b32 s30, 0')
    nv = cfg.get('prefv', 0)
    p(f'v_lshrrev_b32 v9, 3, v0\nv_min_u32 v9, 6, v9\nv_lshlrev_b32 v9, 13, v9\nv_and_b32 v10, 7, v0\nv_lshl_add_u32 v9, v10, 7, v9')
    p(f's_mul_i32 s13, s11, {7 * 8192}\ns_add_u32 s24, s13, {OFF_V + (8 - nv) * 1024}')
    loop = p.uid('L_pf')
    p(f'{loop}:')
    p(f's_cmp_le_u32 s30, {ahead}\ns_cbranch_scc1 {loop}_go')
    p(f's_add_u32 s20, s20, 8192\ns_sub_u32 s21, s20, {OFF_MS - OFF_MF}\ns_mov_b32 s31, 0')
    p(f'{loop}_poll:')
    p(f's_sleep {cfg.get("pf_sleep", 8)}\ns_mov_b64 exec, 1\n' + ld('v7', 6, 's21', n=1))
    p(f's_add_u32 s31, s31, 1\ns_cmp_ge_u32 s31, 16\ns_cselect_b32 s21, s20, s21\ns_cmp_gt_u32 s31, {TMO}\ns_cbranch_scc1 {FAIL}\ns_waitcnt vmcnt(0)')
    p(f'v_cmp_eq_u32 vcc, -1, v7\ns_mov_b64 exec, -1\ns_cbranch_vccnz {loop}_poll')
    p(f'{loop}_go:')
    p('s_mov_b32 exec_hi, 0x1fffff\n' + ld('v8', 2, '0', n=1) + '\nv_add_u32 v2, v2, v3\ns_mov_b64 exec, -1')
    for k in range(nv): p(ld(f'v{11 + k}', 9, 's24', k * 1024, n=1))
    p(f's_add_u32 s24, s24, {14 * 32768}')
    p(f's_add_u32 s30, s30, 1\ns_cmp_lt_u32 s30, {NSTEP}\ns_cbranch_scc1 {loop}')
    p('s_branch L_exit')
```

```python
from common import *
from rroles import load_A_weights, load_B_weights, idx_reg, y_phase

NREP = 4
ident = lambda sg: sg

def dma_linear(p, vL16, so, lds_sreg, n):
    out = []
    for k in range(n):
        if (k & 3) == 0: out.append(f's_add_u32 m0, {lds_sreg}, {k * 1024}')
        out.append(lddma(vL16, so, (k & 3) * 1024))
        if (k & 3) == 3 and k + 1 < n: out.append(f's_add_u32 {so}, {so}, 4096')
    for x in out: p(x)

def ms_off(p, dst, seg):
    p(f's_lshl_b32 {dst}, {seg}, 13\ns_add_u32 {dst}, {dst}, {OFF_MS}\ns_cmp_eq_u32 {seg}, 0\ns_cselect_b32 {dst}, {OFF_MS0}, {dst}')

def gen_TA(p, cfg):
    LP, LN, LR = 0, 28672, 57344
    acc = lambda T: 8 + 4 * T
    Q = lambda qt, u: 36 + 16 * qt + 4 * u
    Xw = lambda b: 68 + 4 * b
    Sm = lambda qt: 76 + 4 * qt
    S00, S01, S11 = 84, 88, 92
    Hw = lambda i: 96 + 4 * i
    vL16, vHa, vHb, vHc, vMa, vMb, vMc, vT0, vZ, vPM, vQ = range(108, 119)
    def Wh(T, ks):
        i = T * 7 + (ks >> 1); q = ks & 1
        return ar(8 * i + 4 * q, 4) if i < 32 else vr(120 + 8 * (i - 32) + 4 * q, 4)
    p(f'v_lshlrev_b32 v{vL16}, 4, v0\nv_mov_b32 v{vZ}, 0')
    if cfg.get('ta_wait', 1): wait_word(p, WS, OFF_GO2, 32, -1)
    p(f's_lshl_b32 s13, s11, 2\ns_add_u32 s13, s13, s12\ns_mul_i32 s13, s13, {98 * 1024}\ns_add_u32 s13, s13, {OFF_A}')
    load_A_weights(p, vL16, ident)
    p('v_lshrrev_b32 v1, 4, v0\nv_and_b32 v2, 15, v0')
    emit_pos(p, 3, 2, 4, 5)
    p('s_lshr_b32 s13, s12, 1\ns_mul_i32 s13, s13, 28\ns_and_b32 s14, s12, 1\ns_lshl_b32 s15, s14, 3\ns_add_u32 s15, s15, s13')
    p('v_lshlrev_b32 v4, 1, v1\nv_add_u32 v4, s15, v4')
    p('s_lshl_b32 s15, s14, 2\ns_add_u32 s15, s15, s13\ns_add_u32 s15, s15, 16\nv_add_u32 v5, s15, v1')
    p('s_add_u32 s15, s13, 24\nv_add_u32 v6, s15, v1')
    p(f'v_lshlrev_b32 v3, 4, v3\nv_add_u32 v3, {LN}, v3')
    p(f'v_lshrrev_b32 v7, 2, v2\nv_lshlrev_b32 v7, 1, v7\nv_and_b32 v8, 1, v0\nv_add_u32 v7, v7, v8')
    for d, m_, s_ in ((vHa, vMa, 4), (vHb, vMb, 5), (vHc, vMc, 6)):
        p(f'v_lshl_add_u32 v{d}, v{s_}, 9, v3')
        emit_maddr(p, m_, s_, 7, 8, 9)
    p('s_cmp_eq_u32 s14, 0\ns_cselect_b64 s[16:17], -1, 0')
    p(f'v_lshlrev_b32 v4, 2, v1\nv_sub_u32 v{vQ}, v2, v4')
    p(f'v_lshlrev_b32 v{vPM}, 2, v0')
    p('s_mul_i32 s26, s12, 7168\ns_mov_b32 s30, s37')
    p(f's_add_u32 s27, s26, {LN}\ns_mov_b32 s35, 0xff800000')
    def xissue(seg):
        p(f's_mul_i32 s13, {seg}, 28672\ns_add_u32 s13, s13, s26\ns_add_u32 s24, s13, {OFF_XP}\ns_add_u32 s25, s13, {OFF_XN}')
        dma_linear(p, vL16, 's24', 's26', 7); dma_linear(p, vL16, 's25', 's27', 7)
    xissue('s30')
    loop = p.uid('L_TA')
    p(f'{loop}:')
    p('s_waitcnt vmcnt(0)\ns_barrier')
    for qt in range(2):
        p(dsr(vr(Xw(0), 4), vL16, LP + qt * 1024))
        for ks in range(14):
            if ks < 13: p(dsr(vr(Xw((ks + 1) & 1), 4), vL16, LP + (ks + 1) * 2048 + qt * 1024))
            p(f's_waitcnt lgkmcnt({1 if ks < 13 else 0})')
            for T in range(7):
                p(f'{MF32} {vr(acc(T), 4)}, {Wh(T, ks)}, {vr(Xw(ks & 1), 4)}, {"0" if ks == 0 else vr(acc(T), 4)}')
        for u in range(3):
            for rp in range(2):
                for n4 in range(2): p(cvt(Q(qt, u) + 2 * rp + n4, acc(2 * u + n4) + 2 * rp))
        for rp in range(2):
            p(cvt(vT0, acc(6) + 2 * rp))
            p(f'v_cndmask_b32 v{Q(qt, 3) + 2 * rp}, 0, v{vT0}, s[16:17]\nv_cndmask_b32 v{Q(qt, 3) + 2 * rp + 1}, v{vT0}, 0, s[16:17]')
    haddr = [(vHa, 0), (vHa, 512), (vHb, 0), (vHc, 0)]
    for u in range(4):
        va, o = haddr[u]
        p(dsr(vr(Hw(0), 4), va, o)); p(dsr(vr(Hw(1), 4), va, o + 16))
        c = lambda r: '0' if u == 0 else vr(r, 4)
        p('s_waitcnt lgkmcnt(1)')
        p(f'{MF32} {vr(S00, 4)}, {vr(Hw(0), 4)}, {vr(Q(0, u), 4)}, {c(S00)}')
        p(f'{MF32} {vr(S01, 4)}, {vr(Hw(0), 4)}, {vr(Q(1, u), 4)}, {c(S01)}')
        p('s_waitcnt lgkmcnt(0)')
        p(f'{MF32} {vr(S11, 4)}, {vr(Hw(1), 4)}, {vr(Q(1, u), 4)}, {c(S11)}')
    p('s_barrier')
    lab = p.uid('L_TAx')
    p(f's_add_u32 s29, s30, {NREP}\ns_cmp_lt_u32 s29, 64\ns_cbranch_scc0 {lab}')
    xissue('s29')
    p(f'{lab}:')
    ms_off(p, 's20', 's30')
    maddr = [(vMa, 0), (vMa, 32), (vMb, 0), (vMc, 0)]
    slow_poll(p, [ld(vr(8 + 4 * u, 4), maddr[u][0], 's20', maddr[u][1]) for u in range(4)], list(range(8, 24)), vT0, sleep=cfg.get('t_sleep', 4))
    for u in range(4):
        for qt in range(2):
            p(f'{MF32} {vr(Sm(qt), 4)}, {vr(8 + 4 * u, 4)}, {vr(Q(qt, u), 4)}, {"0" if u == 0 else vr(Sm(qt), 4)}')
    p(f's_mul_i32 s13, s12, 5120\ns_add_u32 s13, s13, {LR}\nv_add_u32 v1, s13, v{vL16}')
    for i, r in enumerate((S00, S01, S11, Sm(0), Sm(1))): p(dsw(1, vr(r, 4), 1024 * i))
    p('s_waitcnt lgkmcnt(0)\ns_barrier')
    skip = p.uid('L_TAs')
    p(f's_cmp_gt_u32 s12, 1\ns_cbranch_scc1 {skip}')
    p(f's_lshl_b32 s13, s12, 10\ns_add_u32 s13, s13, {LR}\nv_add_u32 v1, s13, v{vL16}\nv_add_u32 v2, {LR}, v{vL16}')
    for wv in range(4):
        p(dsr(vr(8 + 12 * wv, 4), 1, wv * 5120 + 3072)); p(dsr(vr(12 + 12 * wv, 4), 1, wv * 5120)); p(dsr(vr(16 + 12 * wv, 4), 2, wv * 5120 + 2048))
    p('s_waitcnt lgkmcnt(0)')
    for r in range(0, 12, 2):
        p(f'v_pk_add_f32 v[{8 + r}:{9 + r}], v[{8 + r}:{9 + r}], v[{20 + r}:{21 + r}]\nv_pk_add_f32 v[{32 + r}:{33 + r}], v[{32 + r}:{33 + r}], v[{44 + r}:{45 + r}]')
    for r in range(0, 12, 2): p(f'v_pk_add_f32 v[{8 + r}:{9 + r}], v[{8 + r}:{9 + r}], v[{32 + r}:{33 + r}]')
    p('v_mov_b32 v3, s35\nv_mov_b32 v10, v8\nv_mov_b32 v11, v9')
    p(f's_lshl_b32 s13, s12, 4\nv_add_u32 v4, s13, v{vQ}\nv_subrev_u32 v5, 16, v4')
    for r in range(4):
        p(f'v_cmp_le_i32 vcc, {r}, v4\nv_cndmask_b32 v{12 + r}, v3, v{12 + r}, vcc')
        p(f'v_cmp_le_i32 vcc, {r}, v5\nv_cndmask_b32 v{16 + r}, v3, v{16 + r}, vcc')
    def allred(op, r):
        p(f'v_mov_b32 v7, v{r}\n{SW16} v{r}, v7\n{op} v{r}, v{r}, v7\nv_mov_b32 v7, v{r}\n{SW32} v{r}, v7\n{op} v{r}, v{r}, v7')
    p('v_max_f32 v6, v10, v11')
    for r in range(12, 20, 2): p(f'v_max3_f32 v6, v6, v{r}, v{r + 1}')
    allred('v_max_f32', 6)
    for r in range(10, 20): p(f'v_sub_f32 v{r}, v{r}, v6')
    for r in range(10, 20): p(f'v_exp_f32 v{r}, v{r}')
    p('v_add_f32 v6, v10, v11')
    for r in range(12, 20): p(f'v_add_f32 v6, v6, v{r}')
    allred('v_add_f32', 6)
    p('v_rcp_f32 v6, v6')
    for r in range(10, 20): p(f'v_mul_f32 v{r}, v{r}, v6')
    p(cvt(24, 10))
    for r in range(4): p(cvt(20 + r, 12 + 2 * r))
    p(f's_lshl_b32 s13, s30, 5\ns_lshl_b32 s14, s11, 1\ns_add_u32 s13, s13, s14\ns_add_u32 s13, s13, s12')
    p(f's_lshl_b32 s14, s13, 10\ns_add_u32 s14, s14, {OFF_PT}')
    p(st('v[20:23]', vL16, 's14', 0, 'sc1', n=4))
    p(f's_lshl_b32 s14, s13, 8\ns_add_u32 s14, s14, {OFF_PM}')
    p(st('v24', vPM, 's14', 0, 'sc1'))
    p(f's_lshr_b32 s14, s13, 3\ns_lshl_b32 s14, s14, 7\ns_and_b32 s13, s13, 7\ns_lshl_b32 s13, s13, 2\ns_add_u32 s13, s13, s14\ns_add_u32 s13, s13, {OFF_TF}\ns_waitcnt vmcnt(0)\ns_mov_b64 exec, 1')
    p(st(f'v{vZ}', vZ, 's13', 0, 'sc1'))
    p(f's_mov_b64 exec, -1\n{skip}:')
    p(f's_add_u32 s30, s30, {NREP}\ns_cmp_lt_u32 s30, 64\ns_cbranch_scc1 {loop}')
    p('s_branch L_exit')

def gen_TB(p, cfg):
    LW, LP = 0, 114688
    acc = lambda hh, nt, tt: 8 + 16 * hh + 8 * nt + 4 * tt
    Xw = lambda b, tt: 72 + 8 * b + 4 * tt
    W1 = lambda b, nt: 88 + 8 * b + 4 * nt
    Vi = lambda u, nt: 104 + 16 * u + 8 * nt
    mA = lambda sg: 8 + 4 * sg
    Ya = lambda hh, nt: 36 + 8 * hh + 4 * nt
    Yop = lambda nt: 68 + 4 * nt
    Oa = lambda qt, nt: 84 + 8 * qt + 4 * nt
    Ww = lambda i: 136 + 8 * (i & 3)
    IDX, vL16, vLW, vXr, vZ, vT0, vPM, vRw = range(168, 176)
    vRr, vXo, vFl, vMl = 100, 101, 102, 103
    def Wreg(hh, nt, sg):
        i = (hh * 2 + nt) * 7 + sg
        return ar(8 * i, 8) if i < 32 else vr(176 + 8 * (i - 32), 8)
    def Wh(hh, nt, ks):
        i = (hh * 2 + nt) * 7 + (ks >> 1); q = ks & 1
        return ar(8 * i + 4 * q, 4) if i < 32 else vr(176 + 8 * (i - 32) + 4 * q, 4)
    p(f'v_lshlrev_b32 v{vL16}, 4, v0\nv_mov_b32 v{vZ}, 0')
    p(f's_mul_i32 s26, s12, 7168\ns_add_u32 s27, s26, {LP}\ns_mov_b32 s30, s37')
    def xissue(seg):
        p(f's_mul_i32 s13, {seg}, 28672\ns_add_u32 s13, s13, s26\ns_add_u32 s24, s13, {OFF_XP}')
        dma_linear(p, vL16, 's24', 's27', 7)
    p(f's_lshl_b32 s13, s11, 2\ns_add_u32 s13, s13, s12\ns_mul_i32 s13, s13, {112 * 1024}\ns_add_u32 s13, s13, {OFF_B}\ns_mul_i32 s15, s12, 28672')
    load_B_weights(p, vL16, ident, 's15')
    wait_go(p, 7, 4, 1)
    xissue('s30')
    p(f'v_add_u32 v{vLW}, s15, v{vL16}\nv_add_u32 v{vXr}, {LP}, v{vL16}')
    idx_reg(p, IDX)
    p(f's_lshl_b32 s13, s11, 15\ns_lshl_b32 s14, s12, 13\ns_add_u32 s13, s13, s14\ns_add_u32 s28, s13, {OFF_V}')
    p(f's_lshl_b32 s13, s11, 6\ns_lshl_b32 s14, s12, 2\ns_add_u32 s13, s13, s14\ns_add_u32 s29, s13, {OFF_VF}')
    if cfg.get('tb_stagger', 1):
        pass
    p('s_mov_b32 s33, 0x7ffffff0\ns_waitcnt vmcnt(0)')
    prof(p, cfg, 3)
    loop = p.uid('L_TB1')
    p(f'{loop}:')
    p('s_barrier')
    def rd(ks):
        b = ks & 1
        return [dsr(vr(Xw(b, tt), 4), vXr, ks * 2048 + tt * 1024) for tt in range(2)] + \
               [dsr(vr(W1(b, nt), 4), vLW, (nt * 14 + ks) * 1024) for nt in range(2)]
    for x in rd(0): p(x)
    for ks in range(14):
        p('s_waitcnt lgkmcnt(0)')
        nxt = rd(ks + 1) if ks < 13 else []
        for hh in range(4):
            for nt in range(2):
                for tt in range(2):
                    wop = Wh(hh, nt, ks) if hh < 3 else vr(W1(ks & 1, nt), 4)
                    p(f'{MF32} {vr(acc(hh, nt, tt), 4)}, {vr(Xw(ks & 1, tt), 4)}, {wop}, {"0" if ks == 0 else vr(acc(hh, nt, tt), 4)}')
                    if nxt: p(nxt.pop(0))
    p('s_barrier')
    if cfg.get('prof'):
        l2 = p.uid('L_x'); p(f's_cmp_ge_u32 s30, {NREP}\ns_cbranch_scc1 {l2}'); prof(p, cfg, 16); p(f'{l2}:')
    p('s_waitcnt vmcnt(0)\ns_mov_b64 exec, 1')
    p(st(f'v{vZ}', vZ, 's33', 0, 'sc1'))
    p('s_mov_b64 exec, -1')
    p(f's_add_u32 s32, s30, {NREP}\ns_min_u32 s14, s32, 63')
    xissue('s14')
    for hh in range(4):
        for nt in range(2):
            for tt in range(2):
                for rp in range(2): p(cvt(Vi(hh >> 1, nt) + 4 * (hh & 1) + 2 * tt + rp, acc(hh, nt, tt) + 2 * rp))
    p(f's_mul_i32 s13, s30, {14 * 32768}\ns_add_u32 s13, s13, s28')
    for k in range(8):
        p(st(vr(104 + 4 * k, 4), vL16, 's13', (k & 3) * 1024, cfg.get('stV', 'sc1'), n=4))
        if k == 3: p('s_add_u32 s13, s13, 4096')
    p(f's_lshl_b32 s13, s30, 10\ns_add_u32 s33, s13, s29')
    lab = p.uid('L_TBf')
    p(f's_cmp_ge_u32 s30, {2 * NREP}\ns_cbranch_scc1 {lab}')
    p('s_waitcnt vmcnt(0)\ns_mov_b64 exec, 1')
    p(st(f'v{vZ}', vZ, 's33', 0, 'sc1'))
    p(f's_mov_b64 exec, -1\ns_mov_b32 s33, 0x7ffffff0')
    if cfg.get('prof'):
        l2 = p.uid('L_x'); p(f's_cmp_ge_u32 s30, {NREP}\ns_cbranch_scc1 {l2}'); prof(p, cfg, 17); p(f'{l2}:')
    p(f'{lab}:')
    p(f's_waitcnt vmcnt(8)\ns_mov_b32 s30, s32\ns_cmp_lt_u32 s30, 64\ns_cbranch_scc1 {loop}')
    p('s_waitcnt vmcnt(0)\ns_mov_b64 exec, 1')
    p(st(f'v{vZ}', vZ, 's33', 0, 'sc1'))
    p('s_mov_b64 exec, -1\ns_barrier')
    prof(p, cfg, 4)
    p('v_lshrrev_b32 v1, 4, v0\nv_and_b32 v2, 15, v0')
    p(f'v_lshlrev_b32 v{vPM}, 2, v0')
    p(f's_mul_i32 s13, s12, 4608\ns_add_u32 s13, s13, {LP}\nv_mul_u32_u24 v3, 144, v2\nv_lshlrev_b32 v4, 4, v1\nv_add3_u32 v{vRw}, v3, v4, s13')
    p(f's_lshl_b32 s13, s12, 3\nv_lshrrev_b32 v3, 3, v0\nv_add_u32 v3, s13, v3\nv_and_b32 v4, 7, v0')
    p(f'v_mul_u32_u24 v5, 144, v3\nv_lshlrev_b32 v6, 4, v4\nv_add_u32 v5, v5, v6\nv_add_u32 v{vRr}, {LP}, v5')
    p(f's_lshl_b32 s13, s11, 6\nv_mul_u32_u24 v5, 896, v3\nv_lshlrev_b32 v6, 3, v4\nv_add3_u32 v{vXo}, v5, v6, s13')
    p(f's_lshl_b32 s13, s12, 7\nv_and_b32 v3, 7, v0\nv_lshlrev_b32 v3, 2, v3\nv_add_u32 v{vFl}, s13, v3')
    p(f'v_min_u32 v3, 27, v0\nv_lshlrev_b32 v{vMl}, 8, v3')
    p('s_mov_b32 s30, s37\ns_mov_b32 s34, 0xffff0000')
    loop = p.uid('L_TB2')
    p(f'{loop}:')
    p(f's_mul_i32 s13, s30, {14 * 32768}\ns_add_u32 s13, s13, s28')
    for k in range(8):
        p(ld(vr(104 + 4 * k, 4), vL16, 's13', (k & 3) * 1024))
        if k == 3: p('s_add_u32 s13, s13, 4096')
    for sg in range(2):
        for nt in range(2):
            for q_ in range(2): p(dsr(vr(Ww(2 * sg + nt) + 4 * q_, 4), vLW, ((nt * 7 + sg) * 2 + q_) * 1024))
    for r in range(36, 68): p(f'v_mov_b32 v{r}, 0')
    p(f's_lshl_b32 s21, s30, 7\ns_add_u32 s21, s21, {OFF_GF}')
    ms_off(p, 's20', 's30')
    p('s_add_u32 s22, s20, 4096')
    slow_poll(p, [ld('v1', vMl, 's20', n=1), ld('v2', vZ, 's21', n=1)], [1, 2], vT0, sleep=cfg.get('t_sleep', 4))
    p(f's_mul_i32 s23, s30, 28672\ns_add_u32 s25, s23, {OFF_G}')
    p(ld('v[2:3]', vXo, 's23', fl='', n=2, srd=XS)); p(ld('v[4:5]', vXo, 's25', n=2))
    slow_poll(p, [ld(vr(mA(t), 4), vL16, 's20' if t < 4 else 's22', (t & 3) * 1024) for t in range(7)], list(range(8, 36)), vT0, sleep=1)
    p('s_waitcnt lgkmcnt(0)')
    y_phase(p, mA, Ya, Ww, Wreg, IDX, vLW, ident, [], Yop)
    p(f's_lshl_b32 s21, s30, 9\ns_add_u32 s21, s21, {OFF_TF}')
    slow_poll(p, [ld('v1', vFl, 's21', n=1)], [1], vT0, sleep=cfg.get('t_sleep', 4))
    PT = lambda hh, qt: 8 + 8 * hh + 4 * qt
    PMm = lambda qt: 40 + 4 * qt
    p(f's_lshl_b32 s13, s30, 15\ns_lshl_b32 s14, s12, 13\ns_add_u32 s13, s13, s14\ns_add_u32 s13, s13, {OFF_PT}')
    for k in range(8):
        p(ld(vr(8 + 4 * k, 4), vL16, 's13', (k & 3) * 1024))
        if k == 3: p('s_add_u32 s13, s13, 4096')
    p(f's_lshl_b32 s13, s30, 13\ns_lshl_b32 s14, s12, 11\ns_add_u32 s13, s13, s14\ns_add_u32 s13, s13, {OFF_PM}')
    for k in range(8): p(ld(vr(PMm(k & 1) + (k >> 1)), vPM, 's13', k * 256, n=1))
    for hh in range(4):
        p(f's_waitcnt vmcnt({14 - 2 * hh})')
        for qt in range(2):
            for nt in range(2):
                p(f'{MF32} {vr(Oa(qt, nt), 4)}, {vr(Vi(hh >> 1, nt) + 4 * (hh & 1), 4)}, {vr(PT(hh, qt), 4)}, {"0" if hh == 0 else vr(Oa(qt, nt), 4)}')
    p('s_waitcnt vmcnt(0)')
    for qt in range(2):
        for nt in range(2):
            p(f'{MF32} {vr(Oa(qt, nt), 4)}, {vr(Yop(nt), 4)}, {vr(PMm(qt), 4)}, {vr(Oa(qt, nt), 4)}')
    p('s_barrier')
    for qt in range(2):
        for nt in range(2): p(dsw(vRw, vr(Oa(qt, nt), 4), qt * 16 * 144 + nt * 64))
    p('s_waitcnt lgkmcnt(0)\ns_barrier')
    for wv in range(4): p(dsr(vr(8 + 4 * wv, 4), vRr, wv * 4608))
    p('v_lshlrev_b32 v24, 16, v2\nv_and_b32 v25, s34, v2\nv_lshlrev_b32 v26, 16, v3\nv_and_b32 v27, s34, v3')
    p('v_lshlrev_b32 v28, 16, v4\nv_and_b32 v29, s34, v4\nv_lshlrev_b32 v30, 16, v5\nv_and_b32 v31, s34, v5')
    p('s_waitcnt lgkmcnt(0)')
    p('v_pk_add_f32 v[8:9], v[8:9], v[12:13]\nv_pk_add_f32 v[10:11], v[10:11], v[14:15]\nv_pk_add_f32 v[16:17], v[16:17], v[20:21]\nv_pk_add_f32 v[18:19], v[18:19], v[22:23]')
    p('v_pk_add_f32 v[8:9], v[8:9], v[16:17]\nv_pk_add_f32 v[10:11], v[10:11], v[18:19]')
    def rnd():
        p(cvt(12, 8)); p(cvt(13, 10))
        p('v_lshlrev_b32 v8, 16, v12\nv_and_b32 v9, s34, v12\nv_lshlrev_b32 v10, 16, v13\nv_and_b32 v11, s34, v13')
    rnd()
    p('v_pk_mul_f32 v[8:9], v[8:9], v[28:29]\nv_pk_mul_f32 v[10:11], v[10:11], v[30:31]')
    rnd()
    p('v_pk_add_f32 v[8:9], v[8:9], v[24:25]\nv_pk_add_f32 v[10:11], v[10:11], v[26:27]')
    p(cvt(6, 8)); p(cvt(7, 10))
    p(st('v[6:7]', vXo, 's23', 0, cfg.get('stO', ''), n=2, srd=OUT))
    p(f's_add_u32 s30, s30, {NREP}\ns_cmp_lt_u32 s30, 64\ns_cbranch_scc1 {loop}')
    p('s_branch L_exit')

def gen_FFN(p, cfg):
    LB = 131072
    Ga = lambda nt, tt: 8 * nt + 4 * tt
    Ha = lambda ft, tt: 8 + 8 * ft + 4 * tt
    Hop = lambda ks, tt: 40 + 8 * ks + 4 * tt
    Wf = lambda b, i: 56 + 16 * b + 4 * i
    Xf = lambda ks, tt: 128 + 8 * ks + 4 * tt
    vL16, vS1, vS2, vB, vZ = 88, 89, 91, 92, 93
    vR1, vR2 = 96, 100
    srd(p, 80, 56, 448 * 3584); srd(p, 84, 60, 1792 * 896); srd(p, 88, 58, 3584); srd(p, 92, 62, 896)
    p(f'v_lshlrev_b32 v{vL16}, 4, v0\nv_mov_b32 v{vZ}, 0')
    if cfg.get('ffn_wait', 1): wait_word(p, WS, OFF_GO2, 32, -1)
    p(f's_lshl_b32 s13, s12, 10\ns_add_u32 m0, s13, {LB}')
    p(lddma(vL16, 's13', fl='', srd=R2))
    p(f's_mov_b32 m0, {LB + 4096}')
    p(lddma(vL16, '0', fl='', srd=R3))
    p('v_lshrrev_b32 v1, 4, v0\nv_and_b32 v2, 15, v0')
    emit_pos(p, 3, 2, 4, 5)
    p(f'v_lshlrev_b32 v3, 4, v3\nv_lshl_add_u32 v3, v1, 9, v3\ns_mul_i32 s13, s11, 28672\ns_add_u32 s13, s13, {OFF_XN}')
    for ks in range(14):
        for tt in range(2): p(ld(vr(Xf(ks, tt), 4), 3, 's13', (ks & 1) * 2048 + tt * 16))
        if ks & 1: p('s_add_u32 s13, s13, 4096')
    for r in range(224): p(f'v_accvgpr_write_b32 a{r}, 0')
    p('v_lshrrev_b32 v4, 3, v0\nv_and_b32 v5, 7, v0')
    p(f'v_and_b32 v6, 2, v4\nv_xor_b32 v6, v6, v5\nv_lshlrev_b32 v6, 4, v6\nv_mul_u32_u24 v7, 3584, v4\nv_add_u32 v{vS1}, v6, v7\nv_xor_b32 v{vS1 + 1}, 64, v{vS1}')
    p(f'v_and_b32 v6, 6, v4\nv_xor_b32 v6, v6, v5\nv_lshlrev_b32 v6, 4, v6\nv_mul_u32_u24 v7, 896, v4\nv_add_u32 v{vS2}, v6, v7')
    p('s_lshl_b32 s26, s12, 15\nv_lshrrev_b32 v4, 2, v2\nv_and_b32 v5, 3, v0\nv_lshlrev_b32 v5, 3, v5\nv_add_u32 v5, s26, v5')
    p('v_lshrrev_b32 v6, 1, v4\nv_and_b32 v7, 1, v1\nv_lshl_add_u32 v6, v7, 1, v6')
    p('v_lshl_add_u32 v7, v1, 3, v4\nv_lshl_add_u32 v8, v7, 7, v5\nv_lshl_add_u32 v7, v1, 2, v4\nv_lshl_add_u32 v9, v7, 7, v5')
    for i in range(4):
        p(f'v_xor_b32 v7, {i}, v6\nv_lshl_add_u32 v{vR1 + i}, v7, 5, v8\nv_lshl_add_u32 v{vR2 + i}, v7, 5, v9')
    p(f's_mul_i32 s13, s12, 896\ns_add_u32 s13, s13, {LB}\nv_lshlrev_b32 v7, 3, v1\nv_add_u32 v{vB}, s13, v7')
    p('s_mul_i32 s13, s11, 147\ns_lshr_b32 s13, s13, 10\ns_mul_i32 s13, s13, 7\ns_sub_u32 s27, s11, s13')
    if not cfg.get('ffn_rot', 1): p('s_mov_b32 s27, 0')
    p(f's_lshl_b32 s13, s27, 7\nv_add_u32 v{vB}, s13, v{vB}')
    p('s_mul_i32 s22, s12, 896\ns_mul_i32 s23, s12, 401408')
    def grp_offsets():
        p(f's_lshl_b32 s13, s27, 7\ns_add_u32 s20, s22, s13\ns_mul_i32 s13, s27, {64 * 896}\ns_add_u32 s21, s23, s13')
        p('s_add_u32 s27, s27, 1\ns_mov_b32 s29, 128\ns_cmp_eq_u32 s27, 7\ns_cselect_b32 s27, 0, s27\ns_cselect_b32 s29, -768, s29')
        p('s_lshl_b32 s13, s27, 7\ns_add_u32 s28, s22, s13')
    grp_offsets()
    p('s_mov_b32 s34, 0xffff0000')
    def issue(n, nxt):
        def f(ring):
            j = n % 7
            for i in range(8):
                p(f's_add_u32 m0, s26, {ring * 8192 + i * 1024}')
                if n < 7:
                    p(f's_add_u32 s13, {"s28" if nxt else "s20"}, {(64 * j + 8 * i) * 3584}')
                    p(lddma(vS1 + (i & 1), 's13', fl='', srd=R0))
                else:
                    p(f's_add_u32 s13, s21, {8 * i * 896 + 128 * j + (64 * 896 if nxt else 0)}')
                    p(lddma(vS2, 's13', fl='', srd=R1))
        return f
    for n in range(3): issue(n, False)(n)
    p('s_waitcnt vmcnt(24)\ns_barrier\ns_mov_b32 s30, 0')
    loop = p.uid('L_ffn')
    p(f'{loop}:')
    for half in range(2):
        for n in range(14):
            ring = (half * 14 + n) & 3
            p('s_waitcnt vmcnt(16)')
            def rd(ks):
                out = []
                for i in range(4):
                    for hf in range(2):
                        if n < 7: out.append(dstr(vr(Wf(ks, i) + 2 * hf, 2), vR1 + i, ring * 8192 + (32 * ks + 4 * hf) * 128))
                        else: out.append(dstr(vr(Wf(ks, i) + 2 * hf, 2), vR2 + i, ring * 8192 + (32 * ks + 16 * hf) * 128))
                return out
            for x in rd(0): p(x)
            n3 = n + 3
            issue(n3 % 14, n3 >= 14)((ring + 3) & 3)
            if n == 7:
                for ft in range(4): p(dsr(vr(104 + 2 * ft, 2), vB, 32 * ft, 2))
                p('s_waitcnt lgkmcnt(0)')
                for ft in range(4):
                    p(f'v_lshlrev_b32 v112, 16, v{104 + 2 * ft}\nv_and_b32 v113, s34, v{104 + 2 * ft}\nv_lshlrev_b32 v114, 16, v{105 + 2 * ft}\nv_and_b32 v115, s34, v{105 + 2 * ft}')
                    for tt in range(2):
                        a = Ha(ft, tt)
                        def rnd():
                            p(cvt(116, a)); p(cvt(117, a + 2))
                            p(f'v_lshlrev_b32 v{a}, 16, v116\nv_and_b32 v{a + 1}, s34, v116\nv_lshlrev_b32 v{a + 2}, 16, v117\nv_and_b32 v{a + 3}, s34, v117')
                        rnd()
                        p(f'v_pk_add_f32 v[{a}:{a + 1}], v[{a}:{a + 1}], v[112:113]\nv_pk_add_f32 v[{a + 2}:{a + 3}], v[{a + 2}:{a + 3}], v[114:115]')
                        rnd()
                        for r in range(4): p(f'v_max_f32 v{a + r}, 0, v{a + r}')
                        p(f'v_pk_mul_f32 v[{a}:{a + 1}], v[{a}:{a + 1}], v[{a}:{a + 1}]\nv_pk_mul_f32 v[{a + 2}:{a + 3}], v[{a + 2}:{a + 3}], v[{a + 2}:{a + 3}]')
                        d = Hop(ft >> 1, tt) + 2 * (ft & 1)
                        p(cvt(d, a)); p(cvt(d + 1, a + 2))
                p(f'v_add_u32 v{vB}, s29, v{vB}')
            for ks in range(2):
                p('s_waitcnt lgkmcnt(0)')
                nxt = rd(1) if ks == 0 else []
                for i in range(4):
                    for tt in range(2):
                        if n < 7:
                            c = '0' if (n == 0 and ks == 0) else vr(Ha(i, tt), 4)
                            p(f'{MF32} {vr(Ha(i, tt), 4)}, {vr(Wf(ks, i), 4)}, {vr(Xf(2 * n + ks, tt), 4)}, {c}')
                        else:
                            g_ = ar(Ga(4 * (n - 7) + i, tt), 4)
                            p(f'{MF32} {g_}, {vr(Wf(ks, i), 4)}, {vr(Hop(ks, tt), 4)}, {g_}')
                        if nxt: p(nxt.pop(0))
        grp_offsets()
        p('s_add_u32 s30, s30, 1')
        if half == 0: p(f's_cmp_eq_u32 s30, 7\ns_cbranch_scc1 {loop}_end')
        else: p(f's_branch {loop}')
    p(f'{loop}_end:')
    p('s_waitcnt vmcnt(0)\ns_barrier')
    p(f's_mul_i32 s13, s12, 28672\nv_add_u32 v3, s13, v{vL16}\ns_mul_i32 s13, s12, 7168\nv_add_u32 v4, s13, v{vL16}\nv_add_u32 v5, 57344, v4')
    p(f's_mul_i32 s13, s12, 224\ns_add_u32 s14, s13, {LB + 4096}\nv_lshlrev_b32 v7, 3, v1\nv_add_u32 v{vB}, s14, v7')
    p(f'v_mul_u32_u24 v6, 896, v2\nv_add3_u32 v6, v6, v7, s13\ns_mul_i32 s22, s11, 28672\ns_add_u32 s22, s22, {OFF_G}')
    p('s_mov_b32 s24, 0xbfb8aa3b')
    for tt in range(2):
        for nt in range(28): p(dsw(3, ar(Ga(nt, tt), 4), nt * 1024))
        p('s_waitcnt lgkmcnt(0)\ns_barrier')
        for T in range(7):
            for wv in range(4): p(dsr(vr(8 + 4 * wv, 4), 4 if wv < 2 else 5, (wv & 1) * 28672 + T * 1024))
            p(dsr('v[24:25]', vB, 32 * T, 2))
            p('s_waitcnt lgkmcnt(0)')
            p('v_pk_add_f32 v[8:9], v[8:9], v[12:13]\nv_pk_add_f32 v[10:11], v[10:11], v[14:15]\nv_pk_add_f32 v[16:17], v[16:17], v[20:21]\nv_pk_add_f32 v[18:19], v[18:19], v[22:23]')
            p('v_pk_add_f32 v[8:9], v[8:9], v[16:17]\nv_pk_add_f32 v[10:11], v[10:11], v[18:19]')
            p('v_lshlrev_b32 v16, 16, v24\nv_and_b32 v17, s34, v24\nv_lshlrev_b32 v18, 16, v25\nv_and_b32 v19, s34, v25')
            def rnd():
                p(cvt(12, 8)); p(cvt(13, 10))
                p('v_lshlrev_b32 v8, 16, v12\nv_and_b32 v9, s34, v12\nv_lshlrev_b32 v10, 16, v13\nv_and_b32 v11, s34, v13')
            rnd()
            p('v_pk_add_f32 v[8:9], v[8:9], v[16:17]\nv_pk_add_f32 v[10:11], v[10:11], v[18:19]')
            rnd()
            for r in range(4): p(f'v_mul_f32 v{12 + r}, s24, v{8 + r}')
            for r in range(4): p(f'v_exp_f32 v{12 + r}, v{12 + r}')
            for r in range(4): p(f'v_add_f32 v{12 + r}, 1.0, v{12 + r}')
            for r in range(4): p(f'v_rcp_f32 v{12 + r}, v{12 + r}')
            for r in range(4): p(f'v_mul_f32 v{8 + r}, v{8 + r}, v{12 + r}')
            d = 26 + 2 * (T & 1)
            p(cvt(d, 8)); p(cvt(d + 1, 10))
            p(st(vr(d, 2), 6, 's22', 32 * T, 'sc1', n=2))
        p(f's_add_u32 s22, s22, {16 * 896}')
        if tt == 0: p('s_barrier')
    p(f's_waitcnt vmcnt(0)\ns_barrier\ns_cmp_lg_u32 s12, 0\ns_cbranch_scc1 L_exit')
    p(f's_lshl_b32 s13, s11, 7\ns_add_u32 s13, s13, {OFF_GF}\ns_mov_b64 exec, 1')
    p(st(f'v{vZ}', vZ, 's13', 0, 'sc1'))
    p('s_branch L_exit')
```

```python
import sys, os, json
sys.path.insert(0, os.path.dirname(os.path.abspath(__file__)))
from asm import Prog
from common import *
import prep, rroles, troles

DEFAULT = dict(pspos=-2, dbg_sleep=2, ffn_wait=0, flK='nt', flX='nt', flN='nt', a_delay=10, b_delay=2, p_delay=0, hint=0, early=0, vspread=0)

def gen(cfg=None):
    c = dict(DEFAULT); c.update(cfg or {}); cfg = c
    p = Prog()
    p('''s_cmp_ge_u32 s2, 256
s_cbranch_scc1 L_end''')
    if cfg.get('padto'): p('s_memrealtime s[100:101]')
    p('''s_load_dwordx16 s[40:55], s[0:1], 0
s_load_dwordx8 s[56:63], s[0:1], 64
s_load_dwordx4 s[4:7], s[0:1], 96
s_load_dwordx2 s[8:9], s[0:1], 112
s_getreg_b32 s10, hwreg(HW_REG_XCC_ID, 0, 3)
v_lshrrev_b32 v1, 6, v0
v_and_b32 v0, 63, v0
s_mov_b32 s99, s2
s_waitcnt lgkmcnt(0)
v_readfirstlane_b32 s12, v1''')
    if cfg.get('xcc_mix'): p('s_lshr_b32 s10, s2, 5')
    if cfg.get('xcc_skew'): p('s_lshr_b32 s10, s10, 1')
    srd(p, 64, 8, WS_END); srd(p, 68, 4, 2048 * 896); srd(p, 72, 6, 256); srd(p, 76, 40, 2048 * 896)
    prof(p, cfg, 0)
    cnt_zero(p)
    p(f'''s_and_b32 s13, s2, 7
s_lshr_b32 s14, s2, 3
s_cmp_lt_u32 s14, 28
s_cbranch_scc1 L_isgemm
s_lshl_b32 s13, s13, 2
s_add_u32 s13, s13, s14
s_sub_u32 s13, s13, 28
s_branch L_ln
L_isgemm:
s_mul_i32 s13, s13, 28
s_add_u32 s13, s13, s14
s_cmp_ge_u32 s13, 112
s_cselect_b32 s16, 112, 0
s_sub_u32 s13, s13, s16
s_mul_i32 s14, s13, 147
s_lshr_b32 s14, s14, 10
s_mul_i32 s15, s14, 7
s_sub_u32 s15, s13, s15
s_cmp_lg_u32 s16, 0
s_cbranch_scc{0 if cfg.get('bfirst', 1) else 1} L_gemmB''')
    prep.gen_gemm(p, False, cfg)
    p('s_branch L_prepdone\nL_gemmB:')
    prep.gen_gemm(p, True, cfg)
    p('s_branch L_prepdone\nL_ln:')
    prep.gen_ln(p, cfg)
    p(f'''L_prepdone:''')
    prof(p, cfg, 7)
    p('s_waitcnt vmcnt(0) lgkmcnt(0)')
    prof(p, cfg, 8)
    p(f'''s_barrier
s_cmp_lg_u32 s12, 0
s_cbranch_scc1 L_role_w
s_mov_b64 exec, 1
s_mov_b32 s31, 0
v_mov_b32 v253, v255
L_czw:
v_cmp_lt_u32 vcc, 0xffff, v253
s_cbranch_vccnz L_czok
v_mov_b32 v252, 0
v_mov_b32 v253, 0
buffer_atomic_add v253, v252, {DBG}, 0 offen sc0
s_add_u32 s31, s31, 1
s_cmp_gt_u32 s31, {TMO}
s_cbranch_scc1 L_exit
s_waitcnt vmcnt(0)
s_branch L_czw
L_czok:
s_lshl_b32 s23, s23, 7
s_add_u32 s23, s23, {OFF_CNT}
v_mov_b32 v1, 0
v_mov_b32 v2, 1
buffer_atomic_add v2, v1, {WS}, s23 offen sc0
s_add_u32 s23, s23, 4096
s_waitcnt vmcnt(0)
v_cmp_ne_u32 vcc, s24, v2
s_cbranch_vccnz L_notlast
buffer_store_dword v2, v1, {WS}, s23 offen sc1
L_notlast:
v_readfirstlane_b32 s11, v255
s_and_b32 s11, s11, 0xffff
s_lshl_b32 s13, s10, 5
s_add_u32 s13, s13, s11
s_cmp_lt_u32 s11, 32
s_cbranch_scc1 L_role_ok
v_mov_b32 v1, 24
v_mov_b32 v3, 1
buffer_atomic_add v3, v1, {DBG}, 0 offen sc0
s_mov_b64 exec, 0xff
v_lshlrev_b32 v1, 5, v0
s_mov_b32 s31, 0
L_ovf:
{ld('v2', 1, '0', n=1, srd=DBG)}
s_add_u32 s31, s31, 1
s_cmp_gt_u32 s31, {TMO}
s_cbranch_scc1 L_exit
s_waitcnt vmcnt(0)
s_mov_b32 s14, 0''')
    for x in range(8): p(f'v_readlane_b32 s{20 + x}, v2, {x}')
    for x in range(8): p(f's_and_b32 s{20 + x}, s{20 + x}, 0xffff\ns_add_u32 s14, s14, s{20 + x}')
    p('''s_cmp_lt_u32 s14, 256
s_cbranch_scc1 L_ovf
v_readfirstlane_b32 s15, v3
s_mov_b32 s13, 255''')
    for x in range(8):
        p(f'''s_min_u32 s14, s{20 + x}, 32
s_add_u32 s16, s14, s15
s_add_u32 s17, s16, {32 * x}
s_cmp_lt_u32 s16, 32
s_cselect_b32 s13, s17, s13
s_cbranch_scc1 L_role_ok1
s_sub_u32 s15, s16, 32''')
    p('''L_role_ok1:
s_mov_b64 exec, 1
L_role_ok:
v_mov_b32 v1, 0
v_mov_b32 v2, s13
ds_write_b32 v1, v2
s_mov_b64 exec, -1
s_waitcnt lgkmcnt(0)
L_role_w:
s_barrier
v_mov_b32 v1, 0
ds_read_b32 v2, v1
s_waitcnt lgkmcnt(0)
v_readfirstlane_b32 s13, v2
s_barrier
s_and_b32 s11, s13, 31
s_lshr_b32 s10, s13, 5
s_and_b32 s10, s10, 7''')
    if cfg.get('prof') or cfg.get('rprof'): p('s_mov_b32 s99, s13\nv_mov_b32 v6, 163584 + 40\nv_mov_b32 v7, s2\nds_write_b32 v6, v7')
    prof(p, cfg, 1)
    if cfg.get('only_prep'): p('s_branch L_exit')
    fast_s, slow_s = cfg.get('dbg_sleep', 8), cfg.get('dbg_slow', 48)
    r0, f0, sp = cfg.get('map', (2, 6, 1))
    p(f'''s_cmp_eq_u32 s10, {sp}
s_cbranch_scc1 L_exit
s_sub_u32 s13, s10, {f0}
s_cmp_ge_u32 s13, 2
s_cbranch_scc1 L_grp
s_lshl_b32 s13, s13, 5
s_add_u32 s11, s11, s13''')
    wait_go(p, 7, slow_s)
    prof(p, cfg, 2)
    troles.gen_FFN(p, cfg)
    p(f'''L_grp:
s_sub_u32 s37, s10, {r0}
s_cmp_ge_u32 s11, 30
s_cbranch_scc1 L_spare
s_cmp_ge_u32 s11, 16
s_cbranch_scc1 L_colrole
s_cmp_lg_u32 s10, 0
s_cbranch_scc1 L_TAw''')
    wait_go(p, 4, fast_s, head='s11')
    prof(p, cfg, 2)
    for w in range(3): p(f's_cmp_eq_u32 s12, {w}\ns_cbranch_scc1 L_A{w}')
    p('s_branch L_A3\nL_TAw:')
    wait_go(p, 7, slow_s)
    prof(p, cfg, 2)
    p('s_branch L_TA')
    p('L_colrole:\ns_sub_u32 s11, s11, 16')
    wait_go(p, 2, fast_s)
    prof(p, cfg, 2)
    p('s_cmp_lg_u32 s10, 0\ns_cbranch_scc1 L_TB')
    for w in range(3): p(f's_cmp_eq_u32 s12, {w}\ns_cbranch_scc1 L_B{w}')
    p('s_branch L_B3')
    p('L_spare:\ns_cmp_lg_u32 s10, 0\ns_cbranch_scc1 L_exit\ns_sub_u32 s11, s11, 30')
    wait_go(p, 7, slow_s)
    rroles.gen_pref(p, cfg)
    p('L_exit:\ns_mov_b64 exec, -1\ns_waitcnt vmcnt(0) lgkmcnt(0)')
    prof(p, cfg, 5)
    if cfg.get('wb'): p('buffer_wbl2 sc1\ns_waitcnt vmcnt(0)')
    if cfg.get('padto'):
        p(f'L_pad:\ns_sleep 1\ns_memrealtime s[96:97]\ns_waitcnt lgkmcnt(0)\ns_sub_u32 s96, s96, s100\ns_cmp_lt_u32 s96, {cfg["padto"]}\ns_cbranch_scc1 L_pad')
    prof_dump(p, cfg)
    prof_dbgout(p, cfg)
    p('s_waitcnt vmcnt(0)\nL_end:\ns_endpgm')
    for w in range(4):
        p(f'L_A{w}:'); rroles.gen_A(p, w, cfg)
    for w in range(4):
        p(f'L_B{w}:'); rroles.gen_B(p, w, cfg)
    p('L_TA:'); troles.gen_TA(p, cfg)
    p('L_TB:'); troles.gen_TB(p, cfg)
    body = p.finish(cfg.get('verbose'))
    hdr = open(os.path.join(os.path.dirname(os.path.abspath(__file__)), 'header.txt')).read()
    return hdr + f'''.amdgcn_target "amdgcn-amd-amdhsa--gfx950"
.text
.globl {KNAME}
.p2align 8
.type {KNAME},@function
{KNAME}:
''' + body + f'''.section .rodata,"a"
.p2align 6
.amdhsa_kernel {KNAME}
  .amdhsa_next_free_vgpr 512
  .amdhsa_next_free_sgpr 102
  .amdhsa_accum_offset 256
  .amdhsa_group_segment_fixed_size 0
  .amdhsa_kernarg_size 120
  .amdhsa_user_sgpr_count 2
  .amdhsa_user_sgpr_kernarg_segment_ptr 1
  .amdhsa_system_sgpr_workgroup_id_x 1
.end_amdhsa_kernel
'''

if __name__ == '__main__':
    cfg = json.loads(sys.argv[2]) if len(sys.argv) > 2 else {}
    cfg['verbose'] = 1
    s = gen(cfg)
    open(sys.argv[1], 'w').write(s)
    print(len(s), 'bytes')
```

```python
import re

_REG = re.compile(r'^(-?)(?:abs\()?\|?([vas])(\d+)\|?\)?$')
_RNG = re.compile(r'^(-?)([vas])\[(\d+):(\d+)\]$')

def regs_of(tok):
    tok = tok.strip()
    if tok in ('vcc', 'vcc_lo', 'vcc_hi'): return {('s', 106), ('s', 107)}
    if tok in ('exec', 'exec_lo', 'exec_hi'): return {('x', 0)}
    if tok == 'm0': return {('m', 0)}
    m = _REG.match(tok)
    if m: return {(m.group(2), int(m.group(3)))}
    m = _RNG.match(tok)
    if m: return {(m.group(2), i) for i in range(int(m.group(3)), int(m.group(4)) + 1)}
    return set()

TRANS = ('v_exp_', 'v_log_', 'v_rcp_', 'v_rsq_', 'v_sqrt_', 'v_sin_', 'v_cos_')

class Ins:
    __slots__ = ('text', 'op', 'kind', 'dst', 'src', 'srcC', 'srcAB', 'passes', 'label', 'target', 'states',
                 'dpp', 'trans', 'wide_store', 'sdata', 'lds_dma', 'uncond')
    def __init__(self, text):
        self.text = text
        t = text.split(';')[0].strip()
        self.label = None; self.target = None; self.kind = 'other'; self.op = ''
        self.dst = set(); self.src = set(); self.srcC = set(); self.srcAB = set(); self.passes = 0
        self.states = 0; self.dpp = False; self.trans = False; self.wide_store = False; self.sdata = set()
        self.lds_dma = False; self.uncond = False
        if not t: return
        if t.endswith(':'):
            self.label = t[:-1]; self.kind = 'label'; return
        if t.startswith('.'):
            self.kind = 'dir'; return
        parts = t.split(None, 1)
        op = self.op = parts[0]
        ops = []
        if len(parts) > 1:
            depth = 0; cur = ''
            for ch in parts[1]:
                if ch in '[(': depth += 1
                if ch in '])': depth -= 1
                if ch == ',' and depth == 0: ops.append(cur.strip()); cur = ''
                else: cur += ch
            ops.append(cur.strip())
        mods = ''
        if ops:
            last = ops[-1].split(None, 1)
            if len(last) > 1 and not last[0].startswith('hwreg'):
                ops[-1] = last[0]; mods = last[1]
        R = [regs_of(o) for o in ops]
        self.states = 1
        if op == 's_nop':
            self.states = int(ops[0], 0) + 1; self.kind = 'salu'; return
        if op.startswith('v_mfma') or op.startswith('v_smfmac'):
            self.kind = 'mfma'
            self.passes = 8 if '32x32' in op else (2 if '4x4x4' in op else 4)
            self.dst = R[0]
            if op.startswith('v_smfmac'):
                self.srcC = R[0]; self.srcAB = R[1] | R[2] | R[3]
            else:
                self.srcC = R[3]; self.srcAB = R[1] | R[2]
            self.src = self.srcC | self.srcAB
            return
        if op.startswith('v_'):
            self.kind = 'valu'
            self.dpp = '_dpp' in op or 'row_' in mods or 'quad_perm' in mods
            self.trans = op.startswith(TRANS)
            if 'permlane' in op and 'swap' in op:
                self.dst = R[0] | R[1]; self.src = R[0] | R[1]
            elif op.startswith(('v_add_co', 'v_sub_co', 'v_addc_co', 'v_subb_co', 'v_mad_u64')):
                self.dst = R[0] | R[1]; self.src = set().union(*R[2:])
            else:
                self.dst = R[0]; self.src = set().union(*R[1:]) if len(R) > 1 else set()
                if op.startswith(('v_fmac', 'v_pk_fmac', 'v_dot2c', 'v_writelane')) or self.dpp or 'op_sel' in mods or 'sdwa' in op:
                    self.src |= R[0]
                if op.startswith('v_cmpx'): self.dst |= {('x', 0)}
            return
        if op.startswith('ds_'):
            self.kind = 'ds'
            if op.startswith(('ds_read', 'ds_bpermute', 'ds_permute', 'ds_swizzle')) or '_rtn' in op:
                self.dst = R[0]; self.src = set().union(*R[1:])
            else:
                self.src = set().union(*R)
            return
        if op.startswith(('global_', 'buffer_', 'flat_')):
            self.kind = 'vmem'
            allm = mods + ' ' + ' '.join(o for o in ops if not regs_of(o))
            if op in ('buffer_wbl2', 'buffer_inv'): return
            if 'lds' in op or re.search(r'\blds\b', allm):
                self.lds_dma = True; self.src = set().union(*R); return
            if 'load' in op:
                self.dst = R[0]; self.src = set().union(*R[1:])
            elif 'atomic' in op:
                if 'sc0' in allm and op.startswith('global_'):
                    self.dst = R[0]; self.src = set().union(*R[1:])
                else:
                    self.src = set().union(*R)
                    if 'sc0' in allm: self.dst = R[0]
            else:
                self.src = set().union(*R)
                if op.endswith(('x3', 'x4')):
                    self.wide_store = True
                    self.sdata = R[0] if op.startswith('buffer_') else R[1]
            return
        if op.startswith('s_'):
            self.kind = 'salu'
            if op == 's_getpc_b64':
                self.dst = R[0]; return
            if op == 's_call_b64':
                self.dst = R[0]; self.states = 1; return
            if op == 's_setpc_b64':
                self.uncond = True; return
            if op.startswith(('s_branch', 's_cbranch')):
                self.target = ops[0]; self.uncond = op == 's_branch'
                return
            if op == 's_endpgm':
                self.uncond = True; return
            if op.startswith(('s_cmp', 's_bitcmp', 's_waitcnt', 's_barrier', 's_sleep', 's_setprio')):
                self.src = set().union(*R) if R else set(); return
            self.dst = R[0] if R else set()
            self.src = set().union(*R[1:]) if len(R) > 1 else set()
            if 'saveexec' in op: self.dst = self.dst | {('x', 0)}
            return
        raise ValueError('unknown instr: ' + text)

def V(s): return {r for r in s if r[0] in 'va'}
def S(s): return {r for r in s if r[0] == 's'}

def need(p, c):
    n = 0
    if p.kind == 'valu':
        vd = V(p.dst); sd = S(p.dst)
        if c.kind == 'mfma' and vd & c.src: n = max(n, 2)
        if c.kind == 'valu':
            if c.dpp and vd & c.src: n = max(n, 2)
            if 'permlane' in c.op and vd & c.src: n = max(n, 2)
            if c.op.startswith(('v_readlane', 'v_readfirstlane')) and vd & c.src: n = max(n, 1)
            if sd & c.src:
                n = max(n, 4 if c.op.startswith(('v_readlane', 'v_writelane')) else 2)
            if p.trans and not c.trans and vd & c.src: n = max(n, 1)
            if ('op_sel' in p.text or 'sdwa' in p.op) and not p.op.startswith('v_pk') and vd & (c.src | c.dst): n = max(n, 1)
            if c.op.startswith('v_div_fmas') and sd: n = max(n, 4)
        if c.kind == 'vmem' and sd & c.src: n = max(n, 5)
        if ('x', 0) in p.dst:
            if c.kind == 'mfma': n = max(n, 4)
            if c.kind == 'valu' and (c.dpp): n = max(n, 5)
            if c.kind == 'valu' and ('lane' in c.op): n = max(n, 4)
    if p.kind == 'mfma':
        k = {2: 0, 4: 1, 8: 2}[p.passes]
        if c.kind == 'mfma':
            if p.dst & c.srcAB: n = max(n, (5, 8, 12)[k])
            if p.dst & c.srcC:
                if p.dst == c.srcC and p.op == c.op: n = max(n, (2, 0, 0)[k])
                else: n = max(n, (4, 6, 10)[k])
            elif p.dst & c.dst: n = max(n, (4, 6, 10)[k])
        elif c.kind in ('valu', 'ds', 'vmem'):
            if p.dst & (c.src | c.dst): n = max(n, (5, 8, 12)[k])
            if c.kind == 'valu' and p.srcC & c.dst: n = max(n, (1, 3, 7)[k])
    if p.kind == 'vmem' and p.wide_store and p.sdata & c.dst: n = max(n, 2)
    if p.kind == 'salu' and ('m', 0) in p.dst and c.lds_dma: n = max(n, 1)
    return n

class Prog:
    def __init__(self):
        self.lines = []
        self._uid = 0
    def __call__(self, text):
        for l in text.split('\n'):
            if l.strip(): self.lines.append(l.strip())
    def uid(self, base='L'):
        self._uid += 1
        return f'{base}_{self._uid}'
    def finish(self, verbose=False):
        ins = [Ins(l) for l in self.lines]
        out = []
        labels = {}
        for i, x in enumerate(ins):
            if x.label: labels[x.label] = i
        jumpers = {}
        for i, x in enumerate(ins):
            if x.target is not None:
                jumpers.setdefault(labels[x.target], []).append(i)
        pad = [0] * len(ins)
        MAXD = 20
        changed = True
        while changed:
            changed = False
            for i, c in enumerate(ins):
                if c.kind in ('label', 'dir', 'other') or c.op == 's_nop': continue
                if c.kind == 'salu': continue
                req = 0
                stack = [(i, pad[i])]
                seen = {}
                while stack:
                    j, d = stack.pop()
                    preds = []
                    if j > 0 and not ins[j - 1].uncond: preds.append(j - 1)
                    if ins[j].label: preds += jumpers.get(j, [])
                    for p in preds:
                        x = ins[p]
                        if x.states:
                            nn = need(x, c)
                            if nn > d: req = max(req, nn - d)
                        nd = d + x.states + pad[p]
                        if nd < MAXD and seen.get(p, 99) > nd:
                            seen[p] = nd; stack.append((p, nd))
                if req > 0:
                    pad[i] += req; changed = True
        nn = 0
        for i, x in enumerate(ins):
            if pad[i]:
                k = pad[i]; nn += k
                while k > 0:
                    q = min(k, 16); out.append(f's_nop {q - 1}'); k -= q
            out.append(x.text)
        if verbose: print('nop states inserted:', nn)
        return '\n'.join((l if l.endswith(':') else ' ' + l) for l in out) + '\n'
```

```python
KNAME = 'recurrent_scan__memory_aug_recurrent_mem_tr__dense_activation_squared_relu__prompt_kernel'
OFF_A = 0
OFF_B = OFF_A + 16 * 4 * 98 * 1024
OFF_V = OFF_B + 14 * 4 * 112 * 1024
OFF_XN = OFF_V + 64 * 14 * 32768
OFF_XP = OFF_XN + 64 * 28672
OFF_PT = OFF_XP + 64 * 28672
OFF_PM = OFF_PT + 64 * 32768
OFF_G = OFF_PM + 64 * 8192
OFF_MF = OFF_G + 2048 * 896
OFF_INIT = OFF_MF + 8192
OFF_PF = OFF_MF + 64 * 8192
PSLOT = 16384
OFF_PS = OFF_PF + 64 * PSLOT
OFF_VF = OFF_PS + 64 * PSLOT
OFF_TF = OFF_VF + 64 * 1024
OFF_GF = OFF_TF + 64 * 512
OFF_GO2 = OFF_GF + 8192
NLATE = 4
OFF_PT2 = OFF_GO2 + 1024
OFF_MS1 = OFF_PT2 + NLATE * 40960
INIT_END = OFF_MS1 + 63 * 8192
INIT_PER_WAVE = -(-(INIT_END - OFF_INIT) // (1024 * 1024)) * 1024
OFF_MS0 = OFF_INIT + 1024 * INIT_PER_WAVE
OFF_MS = OFF_MS1 - 8192
OFF_CNT = OFF_MS0 + 8192
OFF_GO3 = OFF_CNT + 56 * 128
OFF_PROF = OFF_CNT + 8192
WS_END = OFF_PROF + (1 << 20)
NSTEP = 63
EM_OFF = 7168
EP_OFF = 7680

SMF = 'v_smfmac_f32_16x16x64_bf16'
SMF32 = 'v_smfmac_f32_16x16x32_bf16'
MF32 = 'v_mfma_f32_16x16x32_bf16'
MF16 = 'v_mfma_f32_16x16x16_bf16'
DPP = 'row_mask:0xf bank_mask:0xf'
SW32 = 'v_permlane32_swap_b32'
SW16 = 'v_permlane16_swap_b32'
WS = 's[64:67]'; OUT = 's[68:71]'; DBG = 's[72:75]'; XS = 's[76:79]'
R0 = 's[80:83]'; R1 = 's[84:87]'; R2 = 's[88:91]'; R3 = 's[92:95]'
FAIL = 'L_exit'
TMO = 0x80000

def vr(b, n=1): return f'v[{b}:{b + n - 1}]' if n > 1 else f'v{b}'
def ar(b, n=1): return f'a[{b}:{b + n - 1}]' if n > 1 else f'a{b}'
_OPN = {1: 'dword', 2: 'dwordx2', 4: 'dwordx4'}
def ld(dst, va, so, off=0, fl='sc1', n=4, srd=WS):
    assert 0 <= off < 4096
    o = f' offset:{off}' if off else ''
    return f'buffer_load_{_OPN[n]} {dst}, v{va}, {srd}, {so} offen{o} {fl}'.strip()
def lddma(va, so, off=0, fl='sc1', srd=WS):
    assert 0 <= off < 4096
    o = f' offset:{off}' if off else ''
    f = f' {fl}' if fl else ''
    return f'buffer_load_dwordx4 v{va}, {srd}, {so} offen{o}{f} lds'
def st(src, va, so, off=0, fl='', n=1, srd=WS):
    assert 0 <= off < 4096
    o = f' offset:{off}' if off else ''
    return f'buffer_store_{_OPN[n]} {src}, v{va}, {srd}, {so} offen{o} {fl}'.strip()
def dsr(dst, va, off=0, n=4):
    assert 0 <= off < 65536, off
    op = {1: 'b32', 2: 'b64', 4: 'b128'}[n]
    o = f' offset:{off}' if off else ''
    return f'ds_read_{op} {dst}, v{va}{o}'
def dsw(va, src, off=0, n=4):
    assert 0 <= off < 65536, off
    op = {1: 'b32', 2: 'b64', 4: 'b128'}[n]
    o = f' offset:{off}' if off else ''
    return f'ds_write_{op} v{va}, {src}{o}'
def dstr(dst, va, off=0):
    assert 0 <= off < 65536, off
    o = f' offset:{off}' if off else ''
    return f'ds_read_b64_tr_b16 {dst}, v{va}{o}'
def cvt(d, a, b=None):
    return f'v_cvt_pk_bf16_f32 v{d}, v{a}, v{a + 1 if b is None else b}'
def srd(p, reg, ptr, nbytes):
    p(f's_mov_b32 s{reg}, s{ptr}\ns_mov_b32 s{reg + 1}, s{ptr + 1}\ns_mov_b32 s{reg + 2}, {nbytes}\ns_mov_b32 s{reg + 3}, 0x20000')

def init_fill(p, va, d):
    for r in range(4): p(f'v_mov_b32 v{d + r}, -1')
    p(f's_lshl_b32 s28, s2, 2\ns_add_u32 s28, s28, s12\ns_mul_i32 s28, s28, {INIT_PER_WAVE}\ns_add_u32 s28, s28, {OFF_INIT}')
    n = INIT_PER_WAVE // 1024
    assert n <= 4
    for k in range(n): p(st(vr(d, 4), va, 's28', k * 1024, 'sc1', n=4))
    return n

def code_touch(p, first, last, slice_s, t, behind):
    lab = p.uid('L_ct')
    p(f's_getpc_b64 s[92:93]\n{lab}:')
    p(f's_lshl_b32 s3, {slice_s}, 13\nv_lshlrev_b32 v{t}, 7, v0\nv_add_u32 v{t}, s3, v{t}')
    p(f'v_cmp_gt_u32 vcc, {last}-{first}, v{t}\ns_and_saveexec_b64 s[90:91], vcc\ns_cbranch_execz {lab}_x')
    if behind: p(f's_sub_u32 s92, s92, {lab}-{first}\ns_subb_u32 s93, s93, 0')
    else: p(f's_add_u32 s92, s92, {first}-{lab}\ns_addc_u32 s93, s93, 0')
    p(f'v_mov_b32 v{t + 1}, s93\nv_add_co_u32 v{t}, vcc, s92, v{t}\nv_addc_co_u32 v{t + 1}, vcc, 0, v{t + 1}, vcc')
    p(f'global_load_dword v{t + 2}, v[{t}:{t + 1}], off')
    p(f'{lab}_x:\ns_mov_b64 exec, s[90:91]')

def walk(p, cfg):
    if not cfg.get('warm', 1): return
    lab = p.uid('L_wk')
    p(f's_cmp_lg_u32 s12, 3\ns_cbranch_scc1 {lab}\ns_call_b64 s[94:95], L_walk\n{lab}:')

def ticket(p):
    lab = p.uid('L_tk')
    p(f's_cmp_lg_u32 s12, 0\ns_cbranch_scc1 {lab}\ns_mov_b64 exec, 1\ns_lshl_b32 s3, s10, 5')
    p(f'v_mov_b32 v254, s3\nv_mov_b32 v255, 1\nbuffer_atomic_add v255, v254, {DBG}, 0 offen sc0\ns_mov_b64 exec, -1\n{lab}:')

def chk_instrs(chk, tmp):
    out = []
    regs = list(chk); cur = regs.pop(0)
    while regs:
        if len(regs) >= 2:
            out.append(f'v_max3_u32 v{tmp}, v{cur}, v{regs[0]}, v{regs[1]}'); regs = regs[2:]
        else:
            out.append(f'v_max_u32 v{tmp}, v{cur}, v{regs[0]}'); regs = regs[1:]
        cur = tmp
    out.append(f'v_cmp_eq_u32 vcc, -1, v{cur}')
    return out

def slow_poll(p, loads, chk, tmp, sleep=4, drain=True):
    lab = p.uid('L_sp')
    p(f's_mov_b32 s31, 0\ns_branch {lab}_go\n{lab}:')
    p(f's_sleep {sleep}\ns_add_u32 s31, s31, 1\ns_cmp_gt_u32 s31, {TMO}\ns_cbranch_scc1 {FAIL}')
    p(f'{lab}_go:')
    for l in loads: p(l)
    p('s_waitcnt vmcnt(0)')
    for x in chk_instrs(chk, tmp): p(x)
    p(f's_cbranch_vccnz {lab}')

def wait_word(p, srd_, off, sleep, unset, so='0'):
    lab = p.uid('L_wd')
    p(f's_cmp_lg_u32 s12, 0\ns_cbranch_scc1 {lab}_done')
    p(f'v_mov_b32 v1, {off}\ns_mov_b32 s31, 0\ns_mov_b64 exec, 1\n{lab}:')
    p(ld('v2', 1, so, n=1, srd=srd_))
    p(f's_add_u32 s31, s31, 1\ns_cmp_gt_u32 s31, {TMO}\ns_cbranch_scc1 {FAIL}')
    p(f's_waitcnt vmcnt(0)\nv_cmp_eq_u32 vcc, {unset}, v2\ns_cbranch_vccz {lab}_ok\ns_sleep {sleep}\ns_branch {lab}')
    p(f'{lab}_ok:\ns_mov_b64 exec, -1\n{lab}_done:\ns_barrier')

def cnt_zero(p):
    lab = p.uid('L_cz')
    p(f's_cmp_lg_u32 s2, 0\ns_cbranch_scc1 {lab}\ns_cmp_lg_u32 s12, 3\ns_cbranch_scc1 {lab}')
    p(f'v_lshlrev_b32 v250, 7, v0\nv_mov_b32 v251, 0\ns_mov_b32 s3, {OFF_CNT}')
    p(st('v251', 250, 's3', 0, 'sc1'))
    p(f's_waitcnt vmcnt(0)\nv_lshlrev_b32 v250, 5, v0\nv_mov_b32 v251, 0x10000\ns_mov_b64 exec, 0xff')
    p(f'buffer_atomic_add v251, v250, {DBG}, 0 offen')
    p(f's_mov_b64 exec, -1\n{lab}:')

def wait_go(p, mask, sleep, t=1, head=None):
    lab = p.uid('L_wg')
    p(f's_cmp_lg_u32 s12, 0\ns_cbranch_scc1 {lab}_done')
    p(f'v_lshlrev_b32 v{t}, 7, v0\ns_mov_b32 s31, 0\ns_mov_b32 s3, {OFF_CNT + 4096}')
    if head: p(f's_lshl_b64 exec, 1, {head}')
    else:
        lo = (0xffff if mask & 4 else 0) | (0x10000 if mask & 2 else 0) | (0x20000 if mask & 1 else 0)
        p(f's_mov_b32 exec_lo, {lo}\ns_mov_b32 exec_hi, 0')
    p(f'{lab}:')
    p(ld(f'v{t + 1}', t, 's3', n=1))
    p(f's_add_u32 s31, s31, 1\ns_cmp_gt_u32 s31, {TMO}\ns_cbranch_scc1 {FAIL}')
    p(f's_waitcnt vmcnt(0)\nv_cmp_eq_u32 vcc, 0, v{t + 1}\ns_cbranch_vccz {lab}_ok\ns_sleep {sleep}\ns_branch {lab}')
    p(f'{lab}_ok:\ns_mov_b64 exec, -1\n{lab}_done:\ns_barrier')

def prof(p, cfg, k, t=6):
    if not cfg.get('prof'): return
    lab = p.uid('L_pr')
    p(f's_cmp_lg_u32 s12, 0\ns_cbranch_scc1 {lab}')
    p(f's_memrealtime s[96:97]\nv_mov_b32 v{t}, {163584 + 4 * k}\ns_waitcnt lgkmcnt(0)')
    p(f'v_mov_b32 v{t + 1}, s96\nds_write_b32 v{t}, v{t + 1}\ns_waitcnt lgkmcnt(0)\n{lab}:')

def prof_dump(p, cfg):
    if not cfg.get('prof'): return
    lab = p.uid('L_pd')
    p(f's_cmp_lg_u32 s12, 0\ns_cbranch_scc1 {lab}')
    p(f'v_lshlrev_b32 v6, 2, v0\nv_add_u32 v7, 163584, v6\nds_read_b32 v7, v7\ns_lshl_b32 s98, s99, 8\ns_add_u32 s98, s98, {OFF_PROF}\ns_waitcnt lgkmcnt(0)')
    p(st('v7', 6, 's98') + f'\n{lab}:')

def prof_dbgout(p, cfg):
    if not cfg.get('dbgout'): return
    table = {0: {1: 13, 2: 1, 3: 2, 5: 3}, 16: {3: 6, 5: 7}, 240: {3: 9, 4: 10, 5: 11}, 32: {5: 12}, 224: {5: 14}, 255: {8: 15}}
    for rid, m in table.items():
        lab = p.uid('L_do')
        p(f's_cmp_lg_u32 s12, 0\ns_cbranch_scc1 {lab}\ns_cmp_lg_u32 s99, {rid}\ns_cbranch_scc1 {lab}')
        p('v_mov_b32 v6, 163584\nds_read_b32 v8, v6')
        for k, slot in m.items():
            p(f'ds_read_b32 v7, v6 offset:{4 * k}\ns_waitcnt lgkmcnt(0)\nv_sub_u32 v7, v7, v8\nv_mov_b32 v9, {4 * slot}')
            p(st('v7', 9, '0', 0, 'sc1', srd=DBG) + '\ns_waitcnt vmcnt(0)')
        p(f'{lab}:')

def rstamp(p, cfg, k):
    if cfg.get('rprof') and k in cfg.get('stamps', range(6)): p(f's_memtime s[{76 + 2 * k}:{77 + 2 * k}]')

def rstamp_flush(p, cfg, w, t=2):
    if not cfg.get('rprof'): return
    lab = p.uid('L_rf')
    k0 = cfg.get('rstep', 44)
    p(f's_sub_u32 s36, s30, {k0}\ns_cmp_ge_u32 s36, 2\ns_cbranch_scc1 {lab}')
    p('s_waitcnt lgkmcnt(0)\ns_mov_b64 s[52:53], s[40:41]\ns_mov_b64 s[54:55], s[42:43]\ns_mov_b64 s[56:57], s[44:45]\ns_mov_b64 s[58:59], s[46:47]')
    for k in range(6): p(f's_mov_b32 s{40 + k}, s{76 + 2 * k}')
    p(f's_mov_b32 s46, s39\ns_mov_b32 s47, s31\n{lab}:')

def rstamp_cal(p, cfg, k):
    if not cfg.get('rprof'): return
    p(f's_memtime s[88:89]\ns_memrealtime s[90:91]\ns_waitcnt lgkmcnt(0)\ns_mov_b32 s{60 + 2 * k}, s88\ns_mov_b32 s{61 + 2 * k}, s90')

def rstamp_dump(p, cfg, w):
    if not cfg.get('rprof'): return
    rstamp_cal(p, cfg, 1)
    p('s_waitcnt vmcnt(0)')
    for k in range(8): p(f'v_writelane_b32 v2, s{52 + k}, {k}\nv_writelane_b32 v2, s{40 + k}, {8 + k}')
    for k in range(4): p(f'v_writelane_b32 v2, s{60 + k}, {16 + k}')
    p(f'v_lshlrev_b32 v3, 2, v0\ns_lshl_b32 s36, s99, 10\ns_add_u32 s36, s36, {OFF_PROF + 65536 + w * 256}')
    p(st('v2', 3, 's36'))

def emit_maddr(p, dst, pc, row, t1, t2):
    p(f'v_lshrrev_b32 v{t1}, 1, v{pc}\nv_lshlrev_b32 v{t1}, 8, v{t1}\nv_and_b32 v{t2}, 1, v{pc}\nv_lshl_add_u32 v{t1}, v{t2}, 5, v{t1}')
    p(f'v_lshrrev_b32 v{t2}, 1, v{row}\nv_lshl_add_u32 v{t1}, v{t2}, 6, v{t1}\nv_and_b32 v{t2}, 1, v{row}\nv_lshl_add_u32 v{dst}, v{t2}, 4, v{t1}')

def pos_of(tok):
    return ((tok & 1) << 4) | (((tok >> 3) & 1) << 3) | (((tok >> 1) & 1) << 2) | (((tok >> 2) & 1) << 1) | (tok >> 4)

def emit_pos(p, dst, tok, t1, t2):
    p(f'v_and_b32 v{t1}, 1, v{tok}\nv_lshlrev_b32 v{dst}, 4, v{t1}\nv_and_b32 v{t1}, 8, v{tok}\nv_or_b32 v{dst}, v{dst}, v{t1}')
    p(f'v_and_b32 v{t1}, 2, v{tok}\nv_lshlrev_b32 v{t1}, 1, v{t1}\nv_and_b32 v{t2}, 4, v{tok}\nv_lshrrev_b32 v{t2}, 1, v{t2}')
    p(f'v_or_b32 v{t1}, v{t1}, v{t2}\nv_lshrrev_b32 v{t2}, 4, v{tok}\nv_or3_b32 v{dst}, v{dst}, v{t1}, v{t2}')
```

```python
from common import *
import layout as L

def fast_poll(p, loads, chk, tmp, depth, space, spec, undo, switch, early=None, ci=None, behind=None):
    lab = p.uid('L_fp')
    assert not early or depth == 1
    p('s_mov_b32 s31, 0')
    for d in range(depth - 1):
        for l in loads: p(l)
        if space: p(f's_sleep {space}')
    for l in loads: p(l)
    if behind:
        assert depth == 1 and not early
        for l in behind: p(l)
        p(f's_waitcnt vmcnt({len(behind)})\ns_branch {lab}_c')
    p(f'{lab}_w:')
    ci = ci or chk_instrs(chk, tmp)
    if early:
        for x in early:
            p(x)
            if x.startswith('v_smf') and ci: p(ci.pop(0))
    else:
        p(f's_waitcnt vmcnt({len(loads) * (depth - 1)})')
    if behind: p(f'{lab}_c:')
    for x in ci: p(x)
    for x in spec: p(x)
    p(f's_cbranch_vccnz {lab}')
    def tail():
        p(f'{lab}:')
        p(f's_add_u32 s31, s31, 1\ns_cmp_ge_u32 s31, 48\ns_cbranch_scc1 {lab}_sw')
        p(f'{lab}_r:')
        for l in loads: p(l)
        for l in undo: p(l)
        p(f's_branch {lab}_w')
        p(f'{lab}_sw:')
        p(f's_cmp_gt_u32 s31, {TMO}\ns_cbranch_scc1 {FAIL}\ns_cmp_lg_u32 s31, 48\ns_cbranch_scc1 {lab}_r')
        p('s_waitcnt vmcnt(0)')
        for x in switch: p(x)
        for d in range(depth - 1):
            for l in loads: p(l)
        p(f's_branch {lab}_r')
    return tail

def quick_poll(p, loads, chk, tmp, depth, space, shadow, switch, unroll=4, gap=0):
    lab = p.uid('L_qp')
    p('s_mov_b32 s31, 0')
    for d in range(depth - 1):
        for l in loads: p(l)
        for q in range(0, space, 16): p(f's_nop {min(16, space - q) - 1}')
    p(f'{lab}:')
    for u in range(unroll):
        for l in loads: p(l)
        p(f's_waitcnt vmcnt({len(loads) * (depth - 1)})')
        for x in chk_instrs(chk, tmp): p(x)
        for x in shadow: p(x)
        p(f's_cbranch_vccz {lab}_go')
        if gap: p(f's_nop {gap - 1}')
    p(f's_add_u32 s31, s31, 1\ns_cmp_lt_u32 s31, 16\ns_cbranch_scc1 {lab}')
    p(f's_cmp_gt_u32 s31, {TMO}\ns_cbranch_scc1 {FAIL}\ns_cmp_lg_u32 s31, 16\ns_cbranch_scc1 {lab}')
    p('s_waitcnt vmcnt(0)')
    for x in switch: p(x)
    for d in range(depth - 1):
        for l in loads: p(l)
    p(f's_branch {lab}\n{lab}_go:')
    return lambda: None

def quick_poll2(p, loads, chk, tmp, depth, space, shadow, switch):
    lab = p.uid('L_q2')
    p('s_mov_b32 s31, 0')
    for d in range(depth - 1):
        for l in loads: p(l)
        for q in range(0, space, 16): p(f's_nop {min(16, space - q) - 1}')
    for l in loads: p(l)
    p(f'{lab}_w:\ns_waitcnt vmcnt({len(loads) * (depth - 1)})')
    for x in chk_instrs(chk, tmp): p(x)
    for x in shadow: p(x)
    p(f's_cbranch_vccnz {lab}')
    def tail():
        p(f'{lab}:')
        for l in loads: p(l)
        p(f's_add_u32 s31, s31, 1\ns_cmp_lt_u32 s31, 64\ns_cbranch_scc1 {lab}_w')
        p(f's_cmp_gt_u32 s31, {TMO}\ns_cbranch_scc1 {FAIL}\ns_cmp_lg_u32 s31, 64\ns_cbranch_scc1 {lab}_w')
        p('s_waitcnt vmcnt(0)')
        for x in switch: p(x)
        for d in range(depth):
            for l in loads: p(l)
        p(f's_branch {lab}_w')
    return tail

def hint_wait(p, reg, va, so, cfg, delay, w):
    lab = p.uid('L_hw')
    if w == cfg.get('hwave', 3):
        D = cfg.get('hdepth', 4)
        l = ld(f'v{reg}', va, so, n=1)
        p('s_mov_b32 s38, 0')
        for d in range(D - 1): p(l + f'\ns_nop {cfg.get("hgap", 7)}')
        p(f'{lab}:')
        for u in range(3):
            p(f'{l}\ns_waitcnt vmcnt({D - 1})\nv_cmp_eq_u32 vcc, -1, v{reg}\ns_cbranch_vccz {lab}_go')
        p(f's_add_u32 s38, s38, 1\ns_cmp_lt_u32 s38, 64\ns_cbranch_scc1 {lab}')
        p(f'{lab}_go:')
        while delay > 0:
            q = min(delay, 16); p(f's_nop {q - 1}'); delay -= q
    p('s_barrier')

def load_A_weights(p, vL16, rot):
    def Wh(i, q): return ar(8 * i + 4 * q, 4) if i < 32 else vr(120 + 8 * (i - 32) + 4 * q, 4)
    for T in range(7):
        for sg in range(7):
            i = T * 7 + sg; o = (T * 7 + rot(sg)) * 2048
            p(f's_add_u32 s14, s13, {o}')
            p(ld(Wh(i, 0), vL16, 's14')); p(ld(Wh(i, 1), vL16, 's14', 1024))

def load_B_weights(p, vL16, rot, lds_base, note=None):
    def Wh(i, q): return ar(8 * i + 4 * q, 4) if i < 32 else vr(176 + 8 * (i - 32) + 4 * q, 4)
    for hn in range(6):
        for sg in range(7):
            i = hn * 7 + sg; o = (hn * 7 + rot(sg)) * 2048
            p(f's_add_u32 s14, s13, {o}')
            p(ld(Wh(i, 0), vL16, 's14')); p(ld(Wh(i, 1), vL16, 's14', 1024))
    for k in range(7):
        if note and k == note[0]: note[1]()
        p(f's_add_u32 m0, {lds_base}, {k * 4096}\ns_add_u32 s14, s13, {84 * 1024 + k * 4096}')
        for j in range(4): p(lddma(vL16, 's14', j * 1024))

def idx_reg(p, IDX):
    p(f'v_bfe_u32 v5, v0, 1, 1\nv_mov_b32 v6, 0x4444\nv_mov_b32 v7, 0xeeee\nv_cmp_eq_u32 vcc, 1, v5\nv_cndmask_b32 v{IDX}, v6, v7, vcc')

def gen_A(p, w, cfg):
    LM, LT, LMm, LX = 0, 7168, 11264, 13312
    mA = lambda sg: 8 + 4 * sg
    acc = lambda T: 36 + 4 * T
    Sa = lambda t: 64 + 4 * t
    Hh = lambda t: 76 + 8 * t
    SEL2, SEL1, IDX = 100, 104, 106
    vL16, vH1, vH2, vSadd, vSrd, vPt, vX1, vT0, vT1, vMadd, vX2, vMrd, vNI = range(107, 120)
    def W(T, sg):
        i = T * 7 + sg
        return ar(8 * i, 8) if i < 32 else vr(120 + 8 * (i - 32), 8)
    P_, b = w >> 1, w & 1
    rot = lambda sg: L.slot_chunk(w, sg)
    p(f'v_lshlrev_b32 v{vL16}, 4, v0')
    p(f's_mul_i32 s13, s11, {4 * 98 * 1024}\ns_add_u32 s13, s13, {OFF_A + w * 98 * 1024}')
    load_A_weights(p, vL16, rot)
    p(f'v_lshrrev_b32 v1, 4, v0\nv_and_b32 v2, 15, v0\nv_and_b32 v3, 7, v0')
    idx_reg(p, IDX)
    p(f'v_mov_b32 v6, 0x3f80\nv_mov_b32 v7, 0x3f800000\nv_and_b32 v4, 1, v0\nv_cmp_eq_u32 vcc, 1, v4\nv_cndmask_b32 v6, v6, v7, vcc')
    p(f'v_lshrrev_b32 v4, 2, v2\nv_cmp_eq_u32 vcc, v4, v1\nv_cndmask_b32 v6, 0, v6, vcc')
    for hh in range(2):
        p(f'v_cmp_eq_u32 vcc, {hh}, v5')
        for q2 in range(2): p(f'v_cndmask_b32 v{SEL2 + 2 * hh + q2}, 0, v6, vcc')
    for q2 in range(2): p(f'v_mov_b32 v{SEL1 + q2}, v{SEL2 + 2 * b + q2}')
    p(f'v_add_u32 v4, {28 * P_ + 8 * b}, v1')
    p(f'v_and_b32 v5, 1, v1\nv_mul_u32_u24 v5, {24 - 16 - 4 * b}, v5\nv_lshrrev_b32 v7, 1, v1\nv_add_u32 v5, v5, v7\nv_add_u32 v5, {28 * P_ + 16 + 4 * b}, v5')
    emit_maddr(p, vH1, 4, 3, 6, 7); emit_maddr(p, vH2, 5, 3, 6, 7)
    p(f'v_lshlrev_b32 v6, 4, v2\nv_add_u32 v6, {LX}, v6\nv_lshl_add_u32 v{vX1}, v4, 9, v6\nv_lshl_add_u32 v{vX2}, v5, 9, v6')
    p(f'v_and_b32 v4, 1, v1\nv_lshrrev_b32 v5, 1, v1')
    p(f'v_lshlrev_b32 v7, 8, v1\nv_lshlrev_b32 v3, 3, v2\nv_add_u32 v7, v7, v3\nv_add_u32 v{vSadd}, {LT + w * 1024}, v7')
    p(f'v_lshlrev_b32 v7, 7, v4\nv_add_u32 v7, v7, v3\nv_add_u32 v{vSrd}, {LT + 2 * w * 128}, v7')
    p(f'v_lshlrev_b32 v7, 7, v1\nv_lshlrev_b32 v3, 2, v2\nv_add_u32 v7, v7, v3\nv_add_u32 v{vMadd}, {LMm + w * 512}, v7')
    p(f'v_lshlrev_b32 v7, 6, v4\nv_add_u32 v7, v7, v3\nv_add_u32 v{vMrd}, {LMm + 2 * w * 64}, v7')
    p(f's_lshl_b32 s13, s11, 10\ns_add_u32 s13, s13, {w * 256}')
    p(f'v_lshrrev_b32 v6, 2, v2\nv_lshlrev_b32 v6, 5, v6\nv_lshl_add_u32 v6, v4, 4, v6')
    p(f'v_and_b32 v7, 3, v2\nv_lshl_add_u32 v6, v7, 2, v6\nv_add_u32 v{vPt}, s13, v6')
    p(f's_add_u32 s13, s13, 128\nv_bfe_u32 v6, v2, 2, 1\nv_lshlrev_b32 v6, 4, v6\nv_lshl_add_u32 v6, v4, 3, v6\nv_bfe_u32 v7, v2, 1, 1\nv_lshl_add_u32 v6, v7, 2, v6\nv_add_u32 v6, s13, v6')
    if cfg.get('pfill', 1):
        p(f'v_and_b32 v3, 1, v2\nv_lshrrev_b32 v7, 3, v2\nv_lshl_add_u32 v3, v7, 1, v3\nv_lshl_add_u32 v6, v3, 5, v6\nv_mov_b32 v7, 0x7ffffff0')
    else:
        p(f'v_and_b32 v3, 9, v2\nv_mov_b32 v7, 0x7ffffff0\nv_cmp_eq_u32 vcc, 0, v3\nv_cndmask_b32 v6, v7, v6, vcc')
    p(f'v_cmp_eq_u32 vcc, 1, v5\nv_cndmask_b32 v{vPt}, v{vPt}, v6, vcc')
    p(f's_lshl_b32 s13, s11, 2\nv_mov_b32 v5, s13\nv_cmp_eq_u32 vcc, 0, v0\nv_cndmask_b32 v5, v7, v5, vcc')
    p(f'v_min_u32 v4, 13, v2\nv_lshlrev_b32 v4, 2, v4\nv_lshrrev_b32 v1, 4, v0\nv_lshl_add_u32 v4, v1, 7, v4\nv_mov_b32 v1, 0\nv_mov_b32 v3, 0\ns_mov_b32 s23, 0x7ffffff0')
    p(f'v_mov_b32 v{vNI}, 0xff800000')
    p('s_mov_b32 s16, 0xff00ff00\ns_mov_b32 s17, 0xff00ff00')
    p('s_mov_b32 s18, 0\ns_mov_b32 s19, -1\ns_mov_b32 s35, 0x42800000\ns_mov_b32 s34, 0xfffffffe')
    t0, t1 = rot(0), rot(1)
    p(f's_mov_b32 s25, {OFF_MF}\ns_mov_b32 s26, {OFF_MS0}\ns_mov_b32 s22, {OFF_PF}\ns_mov_b32 s24, {OFF_XN + w * 7168}')
    def xgroups(sbuf):
        g = []
        for k in range(7):
            cur = []
            if (k & 3) == 0: cur.append(f's_add_u32 m0, {sbuf}, {LX + w * 7168 + (k >> 2) * 4096}')
            cur.append(lddma(vL16, 's24', (k & 3) * 1024))
            if k == 3: cur.append('s_add_u32 s24, s24, 4096')
            if k == 6: cur.append(f's_add_u32 s24, s24, {28672 - 4096}')
            g.append(cur)
        return g
    wait_go(p, 7, 4, 36)
    p('s_mov_b32 s32, 0\ns_mov_b32 s33, 28672')
    for g_ in xgroups('s32'):
        for x in g_: p(x)
    for r in range(36, 76): p(f'v_mov_b32 v{r}, 0')
    p('s_mov_b32 s30, 0\ns_waitcnt vmcnt(0) lgkmcnt(0)\ns_barrier')
    prof(p, cfg, 3)
    rstamp_cal(p, cfg, 0)
    loop = p.uid('L_Aloop')
    p(f'{loop}:')
    p(f's_add_u32 s20, s25, {t0 * 1024}\ns_add_u32 s21, s25, {t1 * 1024}')
    hint = cfg.get('hint', 1)
    if cfg.get('a_delay'): p(f's_sleep {cfg["a_delay"]}')
    if cfg.get('a_fine'): p(f's_nop {cfg["a_fine"] - 1}')
    if hint:
        p(f's_add_u32 s27, s25, {EM_OFF}')
        hint_wait(p, 6, 4, 's27', cfg, cfg.get('ah_delay', 0), w)
    chk = [mA(0) + i for i in range(8)]
    def qs(T, sg): return f'{SMF} {vr(acc(T), 4)}, {vr(mA(sg), 4)}, {W(T, sg)}, v{IDX}'
    seq = [(T, 0) for T in range(7)] + [(T, 1) for T in range(7)]
    wr = [dsw(vL16, vr(mA(0), 4), LM + t0 * 1024)]
    if w != 3: wr.append(dsw(vL16, vr(mA(1), 4), LM + t1 * 1024))
    loads = [ld(vr(mA(0), 4), vL16, 's20'), ld(vr(mA(1), 4), vL16, 's21')]
    npre = cfg.get('npre', 7); wpos = cfg.get('wpos', 2)
    pstore = st('v3', vPt, 's23', 0, 'sc1')
    sw = [pstore, f's_add_u32 s20, s26, {t0 * 1024}', f's_add_u32 s21, s26, {t1 * 1024}']
    if cfg.get('quick', 1):
        one = w == 3 and cfg.get('w3one', 1)
        if one: loads = loads[:1]
        ck = [mA(0) + 3] if one else [mA(0) + 3, mA(1) + 3]
        if cfg.get('quick', 1) == 2:
            tailA = quick_poll2(p, loads, ck, vT0, cfg.get('depth', 2), cfg.get('qspace', 24), wr[:cfg.get('ashadow', 1)], sw)
        else:
            tailA = quick_poll(p, loads, ck, vT0, cfg.get('depth', 2), cfg.get('qspace', 24), wr[:cfg.get('ashadow', 1)], sw, gap=cfg.get('agap', 0))
        rstamp(p, cfg, 0)
        rest_w = wr[cfg.get('ashadow', 1):]
        for i, a in enumerate(seq[:npre]):
            p(qs(*a))
            if rest_w and i in (0 if len(rest_w) == 2 else -1, wpos): p(rest_w.pop(0))
            if i == cfg.get('pspos', 4): p(pstore)
        assert not rest_w
    elif cfg.get('early', 1):
        ea = ['s_waitcnt vmcnt(1)', qs(*seq[0]), wr[0], 's_waitcnt vmcnt(0)', qs(*seq[1]), qs(*seq[2])] + wr[1:] + [qs(*seq[3]), qs(*seq[4])]
        tailA = fast_poll(p, loads, chk, vT0, 1, 0, [qs(*seq[5])], [f'v_mov_b32 v{r}, 0' for r in range(36, 60)], sw, early=ea)
        rstamp(p, cfg, 0)
        for a in seq[6:npre]: p(qs(*a))
    else:
        tailA = fast_poll(p, loads, chk, vT0, cfg.get('depth', 2), cfg.get('space', 2), [qs(*seq[0]), wr[0]],
                          [f'v_mov_b32 v{r}, 0' for r in range(36, 40)], sw)
        rstamp(p, cfg, 0)
        for i, a in enumerate(seq[1:npre]):
            p(qs(*a))
            if i == wpos - 1 and len(wr) > 1: p(wr[1])
    p('s_waitcnt lgkmcnt(0)\ns_barrier')
    rstamp(p, cfg, 1)
    def hreads(blk):
        r = []
        va, st_ = (vH1, 512) if blk == 0 else (vH2, 256)
        vx = vX1 if blk == 0 else vX2
        for p3 in range(2): r.append(dsr(vr(Hh(0) + 4 * p3, 4), va, LM + p3 * st_))
        for tile in range(2):
            for p3 in range(2): r.append(dsr(vr(Hh(1 + tile) + 4 * p3, 4), vx, p3 * st_ * 4 + tile * 256))
        return r
    if w == 3 and cfg.get('quick', 1) and cfg.get('w3one', 1):
        assert npre == 7
        mr = [dsr(vr(mA(sg), 4), vL16, LM + rot(sg) * 1024) for sg in range(1, 7)]
        for x in mr: p(x)
        p('s_waitcnt lgkmcnt(5)')
        for a in seq[npre:]: p(qs(*a))
    else:
        mr = [dsr(vr(mA(sg), 4), vL16, LM + rot(sg) * 1024) for sg in range(2, 7)]
        p(mr[0]); p(mr[1])
        mi = 2
        for a in seq[npre:]:
            p(qs(*a))
            if mi < 5: p(mr[mi]); mi += 1
        for x in mr[mi:]: p(x)
    fine = cfg.get('finew', 1) and not (cfg.get('rprof') and 1 in cfg.get('stamps', range(6)))
    if not fine: p('s_waitcnt lgkmcnt(0)')
    def cvt_pair(T):
        a = acc(T); return [cvt(a, a), cvt(a + 1, a + 2), cvt(a + 2, a + 4), cvt(a + 3, a + 6)]
    def tr_pair(T): return f'{MF32} {vr(acc(T + 1), 4)}, {vr(acc(T), 4)}, {vr(SEL2, 4)}, 0'
    def cvt_D(src, dst): return [cvt(dst, src), cvt(dst + 1, src + 2)]
    A2 = [acc(0), acc(4)]
    def sm(blk, t): return f'{SMF} {vr(Sa(t), 4)}, {vr(A2[blk], 4)}, {vr(Hh(t), 8)}, v{IDX}'
    fill = {k: [] for k in range(36)}
    if not cfg.get('xskip'):
        x0, xs = cfg.get('x0', 0), cfg.get('xs', 4)
        for i, g_ in enumerate(xgroups('s33')): fill[x0 + xs * i + (w if xs >= 4 else w % xs)] += g_
    hr = hreads(0)
    h0 = 5 if fine else 1
    for i in range(6): fill[h0 + i].append(hr[i])
    c0, c2, c4 = cvt_pair(0), cvt_pair(2), cvt_pair(4)
    tailv = cfg.get('tailv', 1)
    fill[9] += c0[:1]; fill[10] += c0[1:2]; fill[14] += c0[2:3]; fill[15] += c0[3:]
    fill[17] += [tr_pair(0)]
    fill[19] += c2[:1]; fill[20] += c2[1:2]
    fill[22] += cvt_D(acc(1), A2[0])[:1]; fill[23] += cvt_D(acc(1), A2[0])[1:]
    if tailv == 0:
        fill[24] += c2[2:3]; fill[25] += c2[3:]
        fill[27] += [tr_pair(2)]
        fill[29] += c4[:1]; fill[30] += c4[1:2]
        fill[32] += cvt_D(acc(3), A2[0] + 2)[:1]; fill[33] += cvt_D(acc(3), A2[0] + 2)[1:]
    else:
        fill[24] += c2[2:3]; fill[25] += c2[3:]
        fill[26] += ['s_nop 0', tr_pair(2)]
        fill[27] += c4[:1]; fill[28] += c4[1:2]
        N = 's_nop 0'
        fill[29] += [N]
        fill[30] += [N] + cvt_D(acc(3), A2[0] + 2)[:1]; fill[31] += [N] + cvt_D(acc(3), A2[0] + 2)[1:]
        fill[32] += [N] + c4[2:3]; fill[33] += c4[3:]
    k = 0
    for T in range(7):
        for sg in range(2, 7):
            if fine and T == 0: p(f's_waitcnt lgkmcnt({6 - sg})')
            p(qs(T, sg))
            for x in fill[k]: p(x)
            k += 1
    eflag = []
    epos = 9
    h2 = hreads(1)
    a6 = acc(6)
    MFs = f'{MF16} {vr(acc(1), 4)}, {vr(a6, 2)}, {vr(SEL1, 2)}, 0'
    if tailv == 0:
        p(c4[2]); p(c4[3])
        p('s_waitcnt lgkmcnt(0)')
        p(sm(0, 0)); p(tr_pair(4)); p(h2[0]); p(h2[1])
        p(cvt(a6, a6)); p(cvt(a6 + 1, a6 + 2))
        p(sm(0, 1)); p(h2[2])
        p(MFs)
        p(h2[3])
        p(sm(0, 2)); p(h2[4]); p(h2[5])
        for x in cvt_D(acc(5), A2[1]): p(x)
        for x in cvt_D(acc(1), A2[1] + 2): p(x)
    else:
        p('s_waitcnt lgkmcnt(0)\ns_nop 0')
        p(sm(0, 0)); p(h2[0]); p(h2[1]); p('s_nop 0')
        p(tr_pair(4)); p('s_nop 0')
        p(cvt(a6, a6)); p(cvt(a6 + 1, a6 + 2))
        p(MFs)
        p('s_nop 0\ns_nop 0')
        p(sm(0, 1)); p(h2[2]); p(h2[3]); p(cvt_D(acc(5), A2[1])[0])
        p(sm(0, 2)); p(h2[4]); p(h2[5]); p(cvt_D(acc(5), A2[1])[1])
        for x in cvt_D(acc(1), A2[1] + 2): p(x)
    lk = (lambda n: 0) if (cfg.get('rprof') and 3 in cfg.get('stamps', range(6))) else (lambda n: n)
    p('s_waitcnt lgkmcnt(4)'); p(sm(1, 0))
    p('s_waitcnt lgkmcnt(2)'); p(sm(1, 1))
    p('s_waitcnt lgkmcnt(0)'); p(sm(1, 2))
    rstamp(p, cfg, 2)
    if epos == -1:
        for x in eflag: p(x)
    m_, t0_, t1_ = Sa(0), Sa(1), Sa(2)
    p(f'v_pk_add_f32 v[{m_}:{m_ + 1}], v[{m_}:{m_ + 1}], v[{m_ + 2}:{m_ + 3}]')
    p(f'v_add_f32 v36, v{t0_}, v{t0_ + 2}\nv_add_f32 v38, v{t0_ + 1}, v{t0_ + 3}')
    p(f'ds_write2_b32 v{vMadd}, v{m_}, v{m_ + 1} offset0:0 offset1:16')
    p(f'v_add_f32 v37, v{t1_}, v{t1_ + 2}\nv_add_f32 v39, v{t1_ + 1}, v{t1_ + 3}')
    p(f'ds_write2_b64 v{vSadd}, v[36:37], v[38:39] offset0:0 offset1:16')
    p('s_waitcnt lgkmcnt(0)\ns_barrier')
    rstamp(p, cfg, 3)
    p(f'ds_read2st64_b32 v[84:85], v{vMrd} offset0:0 offset1:2\nds_read2st64_b32 v[86:87], v{vMrd} offset0:4 offset1:6')
    for wv in range(4): p(dsr(vr(76 + 2 * wv, 2), vSrd, wv * 1024, 2))
    if epos == 0:
        for x in eflag: p(x)
    p(f's_waitcnt lgkmcnt({lk(4)})')
    p('v_pk_add_f32 v[84:85], v[84:85], v[86:87]\nv_add_f32 v84, v84, v85')
    s0, s1, s2 = 84, 76, 77
    e0, e1, e2 = 85, 78, 79
    p(f'v_exp_f32 v{e0}, v{s0}')
    p(f's_waitcnt lgkmcnt({lk(2)})')
    p('v_pk_add_f32 v[76:77], v[76:77], v[78:79]')
    p(f'v_cndmask_b32 v{e0}, v{e0}, 0, s[16:17]')
    p('s_waitcnt lgkmcnt(0)')
    p('v_pk_add_f32 v[80:81], v[80:81], v[82:83]\nv_pk_add_f32 v[76:77], v[76:77], v[80:81]')
    rstamp(p, cfg, 4)
    if epos == 1:
        for x in eflag: p(x)
    lab = p.uid('L_sm')
    p(f'v_max3_f32 v{vT0}, abs(v{s0}), abs(v{s1}), abs(v{s2})')
    p(f'v_cmp_nge_f32 vcc, s35, v{vT0}')
    p(f'v_exp_f32 v{e1}, v{s1}\nv_exp_f32 v{e2}, v{s2}')
    p(f's_cbranch_vccnz {lab}_max\n{lab}:')
    p(f'v_add_f32 v{vT0}, v{e0}, v{e1}\nv_add_f32 v{vT0}, v{vT0}, v{e2}')
    p(f'v_mov_b32_dpp v{vT1}, v{e0} quad_perm:[1,0,3,2] {DPP}')
    p(f'v_cndmask_b32 v{e1}, v{e1}, v{e0}, s[18:19]')
    p(f'v_add_f32_dpp v{vT0}, v{vT0}, v{vT0} row_ror:8 {DPP}')
    p(f'v_cndmask_b32 v{e2}, v{e2}, v{vT1}, s[18:19]')
    for sh in (4, 2, 1): p(f'v_add_f32_dpp v{vT0}, v{vT0}, v{vT0} row_ror:{sh} {DPP}')
    p(f'v_rcp_f32 v{vT0}, v{vT0}')
    p(f'v_mul_f32 v{e1}, v{e1}, v{vT0}\nv_mul_f32 v{e2}, v{e2}, v{vT0}')
    p(f'v_cvt_pk_bf16_f32 v{e1}, v{e1}, v{e2}\nv_min_u32 v{e1}, s34, v{e1}')
    p(st(f'v{e1}', vPt, 's22'))
    rstamp(p, cfg, 5)
    p(f's_add_u32 s23, s22, {OFF_PS - OFF_PF}\nv_mov_b32 v3, v{e1}')
    if cfg.get('pspos', 4) == -1: p(pstore)
    for r in range(36, 76): p(f'v_mov_b32 v{r}, 0')
    if cfg.get('pspos', 4) == -2: p(pstore)
    p(f's_sub_u32 s36, s33, s32\nv_add_u32 v{vX1}, s36, v{vX1}\nv_add_u32 v{vX2}, s36, v{vX2}\ns_mov_b32 s36, s32\ns_mov_b32 s32, s33\ns_mov_b32 s33, s36')
    p(f's_add_u32 s25, s25, 8192\ns_add_u32 s26, s25, {OFF_MS - OFF_MF}\ns_add_u32 s22, s22, {PSLOT}')
    rstamp_flush(p, cfg, w, 84)
    if cfg.get('sprof') and w == 0:
        p('s_memtime s[88:89]\ns_memrealtime s[90:91]\ns_lshl_b32 s36, s30, 3\ns_add_u32 s36, s36, 131072\nv_mov_b32 v84, s36\ns_waitcnt lgkmcnt(0)\nv_mov_b32 v86, s88\nv_mov_b32 v87, s90\nds_write_b64 v84, v[86:87]')
    p(f's_add_u32 s30, s30, 1\ns_cmp_lt_u32 s30, {NSTEP}\ns_cbranch_scc1 {loop}')
    p(pstore)
    if cfg.get('sprof') and w == 0:
        p(f's_waitcnt vmcnt(0) lgkmcnt(0)\nv_lshlrev_b32 v2, 3, v0\nv_add_u32 v3, 131072, v2\nds_read_b64 v[8:9], v3\ns_lshl_b32 s36, s11, 9\ns_add_u32 s36, s36, {OFF_PROF + 131072}\ns_waitcnt lgkmcnt(0)')
        p(st('v[8:9]', 2, 's36', n=2))
    rstamp_dump(p, cfg, w)
    p('s_branch L_exit')
    tailA()
    p(f'{lab}_max:')
    p(f'v_cndmask_b32 v{s0}, v{s0}, v{vNI}, s[16:17]')
    p(f'v_max3_f32 v{vT0}, v{s0}, v{s1}, v{s2}')
    for sh in (8, 4, 2, 1): p(f'v_max_f32_dpp v{vT0}, v{vT0}, v{vT0} row_ror:{sh} {DPP}')
    for s_ in (s0, s1, s2): p(f'v_sub_f32 v{s_}, v{s_}, v{vT0}')
    for e_, s_ in ((e0, s0), (e1, s1), (e2, s2)): p(f'v_exp_f32 v{e_}, v{s_}')
    p(f's_branch {lab}')

def y_phase(p, mA, Ya, Ww, W, IDX, vLW, rot, extra, Yop, mid=None, transpose=False, dense=0, pre_mid=()):
    def wread(sg):
        return [dsr(vr(Ww(2 * sg + nt) + 4 * q_, 4), vLW, ((nt * 7 + rot(sg)) * 2 + q_) * 1024) for nt in range(2) for q_ in range(2)]
    def fin(hh, nt):
        a = Ya(hh, nt)
        return [f'v_pk_add_f32 v[{a}:{a + 1}], v[{a}:{a + 1}], v[{a + 2}:{a + 3}]', cvt(Yop(nt) + ph[hh], a)]
    ph = (0, 2, 1, 3) if transpose else (0, 1, 2, 3)
    vi = iter(extra)
    cnt = [0]
    def after():
        cnt[0] += 1
        if dense and cnt[0] % dense == 0:
            x = next(vi, None)
            if x: p(x)
    for sg in range(7):
        if sg >= 2: p('s_waitcnt lgkmcnt(4)' if sg < 6 else 's_waitcnt lgkmcnt(0)')
        for nt in range(2):
            p(f'{SMF} {vr(Ya(3, nt), 4)}, {vr(mA(sg), 4)}, {vr(Ww(2 * sg + nt), 8)}, v{IDX}'); after()
        wrd = wread(sg + 2) if sg + 2 < 7 else []
        if sg == 0 and mid: wrd = []
        for hh in range(3):
            for nt in range(2):
                p(f'{SMF} {vr(Ya(hh, nt), 4)}, {vr(mA(sg), 4)}, {W(hh, nt, sg)}, v{IDX}')
                if wrd: p(wrd.pop(0))
                after()
                if not dense and (hh, nt) in ((0, 1), (2, 1)) and not (sg == 0 and mid):
                    x = next(vi, None)
                    if x: p(x)
        if sg == 0 and mid:
            for x in list(pre_mid) + mid + wread(2): p(x)
    for x in vi: p(x)
    for hh in (3, 0, 1, 2):
        for nt in range(2): p(fin(hh, nt)[0])
    for hh in (3, 0, 1, 2):
        for nt in range(2): p(fin(hh, nt)[1])
    if transpose:
        for nt in range(2):
            for a, b in ((0, 2), (1, 3)): p(f'{SW32} v{Yop(nt) + ph[a]}, v{Yop(nt) + ph[b]}')
        for nt in range(2):
            for a, b in ((0, 1), (2, 3)): p(f'{SW16} v{Yop(nt) + ph[a]}, v{Yop(nt) + ph[b]}')

def gen_B(p, w, cfg):
    LM, LO, LW = 0, 7168, 12288
    mA = lambda sg: 8 + 4 * sg
    Ya = lambda hh, nt: 36 + 8 * hh + 4 * nt
    Yop = lambda nt: 68 + 4 * nt
    Vi = lambda u, nt: 84 + 16 * u + 8 * nt
    Pt = lambda u: 116 + 4 * u
    Pm = 124
    Oa = lambda nt: 128 + 4 * nt
    Ww = lambda i: 136 + 8 * (i & 3)
    IDX, vL16, vPt, vPm, vOadd, vOrd, vL8, vLW = range(168, 176)
    vT0, vM, vF, vZ = 6, 5, 7, 4
    vEw, vEr, vEm = 76, 77, 78
    hint = cfg.get('hint', 1)
    lk = (lambda n: 0) if (cfg.get('rprof') and 4 in cfg.get('stamps', range(6))) else (lambda n: n)
    rot = lambda sg: L.slot_chunk(w, sg)
    def W(hh, nt, sg):
        i = (hh * 2 + nt) * 7 + sg
        return ar(8 * i, 8) if i < 32 else vr(176 + 8 * (i - 32), 8)
    p(f'v_lshlrev_b32 v{vL16}, 4, v0')
    p(f's_mul_i32 s13, s11, {4 * 112 * 1024}\ns_add_u32 s13, s13, {OFF_B + w * 112 * 1024}\ns_mov_b32 s15, {LW + w * 28672}')
    if cfg.get('b_hold'): p(f's_sleep {cfg["b_hold"]}')
    def announce():
        lab0 = p.uid('L_go3')
        p(f's_cmp_lg_u32 s11, 0\ns_cbranch_scc1 {lab0}\ns_mov_b32 s14, {OFF_GO3}\ns_mov_b64 exec, 1\nv_mov_b32 v1, 0\nv_mov_b32 v2, 1')
        p(st('v2', 1, 's14', 0, 'sc1') + f'\ns_mov_b64 exec, -1\n{lab0}:')
    load_B_weights(p, vL16, rot, 's15', (cfg.get('go3', 3), announce) if w == 0 else None)
    p(f'v_add_u32 v{vLW}, {LW + w * 28672}, v{vL16}')
    idx_reg(p, IDX)
    p(f'v_lshrrev_b32 v1, 4, v0\nv_and_b32 v2, 15, v0')
    p(f'v_lshrrev_b32 v4, 2, v2\nv_lshlrev_b32 v4, 8, v4\nv_add_u32 v4, {w * 4096}, v4\nv_and_b32 v6, 3, v0')
    p(f'v_lshl_add_u32 v{vPm}, v6, 3, v4\nv_lshl_add_u32 v{vPm}, v1, 10, v{vPm}\nv_add_u32 v{vPm}, 128, v{vPm}')
    p(f'v_lshl_add_u32 v4, v6, 4, v4\nv_lshrrev_b32 v6, 1, v1\nv_lshl_add_u32 v4, v6, 10, v4\nv_and_b32 v6, 1, v1\nv_lshl_add_u32 v{vPt}, v6, 6, v4')
    p(f'v_mul_u32_u24 v4, 320, v1\nv_lshlrev_b32 v6, 2, v2\nv_add_u32 v4, v4, v6\nv_add_u32 v{vOadd}, {LO + w * 1280}, v4')
    p(f'v_lshlrev_b32 v4, 1, v1\nv_bfe_u32 v6, v0, 2, 1\nv_add_u32 v4, v4, v6\nv_mul_u32_u24 v4, 160, v4\nv_bfe_u32 v6, v0, 3, 1\nv_lshlrev_b32 v6, 5, v6\nv_and_b32 v7, 3, v0\nv_lshlrev_b32 v7, 3, v7')
    p(f'v_add3_u32 v4, v4, v6, v7\nv_add_u32 v{vOrd}, {LO + (w & 1) * 64}, v4')
    p(f's_lshl_b32 s13, s11, 2\ns_add_u32 s13, s13, {128 * w}\nv_mov_b32 v{vEw}, s13\nv_mov_b32 v7, 0x7ffffff0\nv_cmp_eq_u32 vcc, 0, v0\nv_cndmask_b32 v{vEw}, v7, v{vEw}, vcc')
    p(f'v_lshlrev_b32 v{vEr}, 2, v2\nv_min_u32 v4, 13, v2\nv_lshlrev_b32 v4, 2, v4\nv_lshl_add_u32 v{vEm}, v1, 7, v4')
    p(f'v_lshlrev_b32 v{vL8}, 2, v0\nv_add_u32 v{vL8}, {(w & 1) * 256}, v{vL8}')
    p(f's_mov_b32 s34, 0xfffffffe\nv_mov_b32 v{vZ}, 0\nv_mov_b32 v{vM}, 0')
    t0, t1 = rot(0), rot(1)
    p(f's_mov_b32 s25, {OFF_MF}\ns_mov_b32 s26, {OFF_MS0}\ns_mov_b32 s27, {OFF_PF}')
    p(f's_mul_i32 s13, s11, 32768\ns_add_u32 s24, s13, {OFF_V + w * 8192}')
    p(f's_lshl_b32 s13, s11, 9\ns_add_u32 s28, s13, {OFF_MF + 8192}\ns_mov_b32 s29, 0x7ffffff0')
    p(f's_lshl_b32 s13, s11, 6\ns_add_u32 s33, s13, {OFF_VF + 4 * w}')
    for r in list(range(36, 68)) + list(range(128, 136)): p(f'v_mov_b32 v{r}, 0')
    wait_go(p, 7, 4, 1)
    if w == 0:
        lab0 = p.uid('L_go2')
        p(f's_cmp_lg_u32 s11, 0\ns_cbranch_scc1 {lab0}\ns_mov_b32 s13, {OFF_GO2}\ns_mov_b64 exec, 1')
        p(st(f'v{vZ}', vZ, 's13', 0, 'sc1') + f'\ns_mov_b64 exec, -1\n{lab0}:')
    slow_poll(p, [ld(f'v{vF}', vZ, 's33', n=1)], [vF], vT0, sleep=4)
    p('s_add_u32 s33, s33, 1024')
    p('s_mov_b32 s30, 0\ns_waitcnt vmcnt(0) lgkmcnt(0)\ns_barrier')
    prof(p, cfg, 3)
    rstamp_cal(p, cfg, 0)
    vl = []
    for k in range(8):
        vl.append(ld(vr(84 + 4 * k, 4), vL16, 's24', (k & 3) * 1024) + (f'\ns_add_u32 s24, s24, {4096 if k == 3 else 14 * 32768 - 4096}' if (k & 3) == 3 else ''))
    if cfg.get('nov'): vl = vl[:8 - cfg['nov']]
    mstore = [st(f'v{vM}', vL8, 's29', 0, 'sc1')] if w < 2 else []
    loop = p.uid('L_Bloop')
    p(f'{loop}:')
    p(f's_add_u32 s20, s25, {t0 * 1024}\ns_add_u32 s21, s25, {t1 * 1024}\ns_mov_b32 s22, s27')
    for sg in range(2):
        for nt in range(2):
            for q_ in range(2): p(dsr(vr(Ww(2 * sg + nt) + 4 * q_, 4), vLW, ((nt * 7 + rot(sg)) * 2 + q_) * 1024))
    if cfg.get('b_delay'): p(f's_sleep {cfg["b_delay"]}')
    vfirst = cfg.get('vfirst', 0)
    if cfg.get('bmhint', 1) and hint:
        p(f's_add_u32 s23, s25, {EM_OFF}')
        hint_wait(p, vF, vEm, 's23', cfg, cfg.get('bm_delay', 32), w)
    chk = [mA(0) + i for i in range(8)] + [vF]
    tailM = fast_poll(p, [ld(vr(mA(0), 4), vL16, 's20'), ld(vr(mA(1), 4), vL16, 's21'), ld(f'v{vF}', vZ, 's33', n=1)], chk, vT0,
              cfg.get('bdepth', 1), cfg.get('space', 2), [], [],
              mstore + [f's_add_u32 s20, s26, {t0 * 1024}', f's_add_u32 s21, s26, {t1 * 1024}'], behind=vl if vfirst else None)
    rstamp(p, cfg, 0)
    p('s_mov_b32 s39, s31\ns_waitcnt lgkmcnt(0)')
    p(dsw(vL16, vr(mA(0), 4), LM + t0 * 1024))
    if w != 3: p(dsw(vL16, vr(mA(1), 4), LM + t1 * 1024))
    npre_v = 8 if not cfg.get('vspread') else cfg.get('vpre', 0)
    if not vfirst:
        for x in vl[:npre_v]: p(x)
    dense = cfg.get('vdense', 0)
    if not dense:
        for x in mstore: p(x)
    mid = ['s_waitcnt lgkmcnt(0)', 's_barrier'] + [dsr(vr(mA(sg), 4), vL16, LM + rot(sg) * 1024) for sg in range(2, 7)]
    y_phase(p, mA, Ya, Ww, W, IDX, vLW, rot, ([] if vfirst else vl[npre_v:]), Yop, mid, True, dense, mstore if dense else ())
    rstamp(p, cfg, 1)
    if cfg.get('p_delay'): p(f's_sleep {cfg["p_delay"]}')
    if cfg.get('p_fine'): p(f's_nop {cfg["p_fine"] - 1}')
    p(f's_add_u32 s23, s25, {8192 + EP_OFF}\ns_add_u32 s32, s25, {8192 + EM_OFF}')
    if hint: hint_wait(p, vF, vEr, 's23', cfg, cfg.get('bh_delay', 0), w)
    rstamp(p, cfg, 2)
    loads = [ld(vr(Pt(0), 4), vPt, 's22'), ld(vr(Pt(1), 4), vPt, 's22', 2048), ld(vr(Pm, 2), vPm, 's22', n=2)]
    om = []
    for u in range(2):
        for nt in range(2): om.append(f'{SMF} {vr(Oa(nt), 4)}, {vr(Pt(u), 4)}, {vr(Vi(u, nt), 8)}, v{IDX}')
    for nt in range(2): om.append(f'{SMF32} {vr(Oa(nt), 4)}, {vr(Pm, 2)}, {vr(Yop(nt), 4)}, v{IDX}')
    undo = [f'v_mov_b32 v{r}, 0' for r in range(128, 136)]
    sw = [f's_add_u32 s22, s27, {OFF_PS - OFF_PF}']
    eflag = [st(f'v{vZ}', vEw, 's32')] if hint else []
    epos = cfg.get('b_epos', 0)
    o0, o1 = Oa(0), Oa(1)
    if cfg.get('quick', 1):
        if epos == -2:
            for x in eflag: p(x)
        if cfg.get('quick', 1) == 2:
            tailP = quick_poll2(p, loads, [119, 123, 125], vT0, cfg.get('pdepth', 2), cfg.get('pspace', 24), [], sw)
        else:
            tailP = quick_poll(p, loads, [119, 123, 125], vT0, cfg.get('pdepth', 2), cfg.get('pspace', 24), [], sw, gap=cfg.get('pgap', 0))
        rstamp(p, cfg, 3)
        if epos in (0, -1):
            for x in eflag: p(x)
        if cfg.get('oord', 1):
            for i in (4, 5, 0, 2, 1, 3): p(om[i])
        else:
            for x in om: p(x)
    elif cfg.get('early', 1):
        if epos == -2:
            for x in eflag: p(x)
        ea = ['s_waitcnt vmcnt(2)', om[0], om[1], 's_waitcnt vmcnt(1)', om[2], om[3], 's_waitcnt vmcnt(0)'] + (eflag if epos == -1 else []) + [om[4], om[5]]
        ci = [f'v_max3_u32 v{vT0}, v116, v117, v118', f'v_max_u32 v{vT0}, v{vT0}, v119'] + \
             [f'v_max3_u32 v{vT0}, v{vT0}, v{r}, v{r + 1}' for r in (120, 122, 124)] + [f'v_cmp_eq_u32 vcc, -1, v{vT0}']
        tailP = fast_poll(p, loads, None, vT0, 1, 0, [], undo, sw, early=ea, ci=ci)
        rstamp(p, cfg, 3)
        if epos == 0:
            for x in eflag: p(x)
    else:
        tailP = fast_poll(p, loads, list(range(116, 126)), vT0, cfg.get('pdepth', 2), cfg.get('space', 2), om[:2], undo, sw)
        rstamp(p, cfg, 3)
        if epos == 0:
            for x in eflag: p(x)
        for x in om[2:]: p(x)
    p(f'v_pk_add_f32 v[{o0}:{o0 + 1}], v[{o0}:{o0 + 1}], v[{o0 + 2}:{o0 + 3}]')
    p(f'ds_write2_b32 v{vOadd}, v{o0}, v{o0 + 1} offset0:0 offset1:40')
    p(f'v_pk_add_f32 v[{o1}:{o1 + 1}], v[{o1}:{o1 + 1}], v[{o1 + 2}:{o1 + 3}]')
    p(f'ds_write2_b32 v{vOadd}, v{o1}, v{o1 + 1} offset0:16 offset1:56')
    if epos == 1:
        for x in eflag: p(x)
    p('s_waitcnt lgkmcnt(0)\ns_barrier')
    rstamp(p, cfg, 4)
    if w < 2:
        for wv in range(4): p(dsr(vr(36 + 2 * wv, 2), vOrd, wv * 1280, 2))
        p(f's_waitcnt lgkmcnt({lk(2)})\nv_pk_add_f32 v[36:37], v[36:37], v[38:39]\ns_waitcnt lgkmcnt(0)\nv_pk_add_f32 v[40:41], v[40:41], v[42:43]')
        p('v_pk_add_f32 v[36:37], v[36:37], v[40:41]')
        p(f'v_cvt_pk_bf16_f32 v{vM}, v36, v37\nv_min_u32 v{vM}, s34, v{vM}')
        p(st(f'v{vM}', vL8, 's28'))
    rstamp(p, cfg, 5)
    p(f's_add_u32 s29, s28, {OFF_MS - OFF_MF}\ns_add_u32 s28, s28, 8192')
    if not cfg.get('rprof'): p(f's_cmp_eq_u32 s30, {NSTEP - 1}\ns_cbranch_scc1 {loop}_x')
    for r in list(range(36, 68)) + list(range(128, 136)): p(f'v_mov_b32 v{r}, 0')
    p(f's_add_u32 s25, s25, 8192\ns_add_u32 s26, s25, {OFF_MS - OFF_MF}\ns_add_u32 s27, s27, {PSLOT}\ns_add_u32 s33, s33, 1024')
    rstamp_flush(p, cfg, w)
    p(f's_add_u32 s30, s30, 1\ns_cmp_lt_u32 s30, {NSTEP}\ns_cbranch_scc1 {loop}')
    p(f'{loop}_x:')
    for x in mstore: p(x)
    if cfg.get('tprof'): prof(p, cfg, 18, 2)
    rstamp_dump(p, cfg, w)
    p('s_branch L_exit')
    tailM(); tailP()

def gen_pref(p, cfg):
    ahead = cfg.get('ahead', 2)
    if cfg.get('pf_go2', 1): wait_word(p, WS, OFF_GO3, 4, 0)
    p('s_lshl_b32 s11, s11, 2\ns_add_u32 s11, s11, s12')
    if cfg.get('ctouch', 1) >= 2: code_touch(p, 'L_A0', 'L_TB', 's11', 20, False)
    p('v_lshlrev_b32 v1, 7, v0')
    p(f's_mul_i32 s13, s11, {28 * 128}\ns_add_u32 s13, s13, {OFF_XN}\nv_add_u32 v2, s13, v1\nv_mov_b32 v3, 28672')
    p(f's_lshl_b32 s13, s11, 11\ns_add_u32 s13, s13, {OFF_PF - 28 * 128}\nv_add_u32 v4, s13, v1\nv_mov_b32 v5, {PSLOT}')
    p('v_cmp_lt_u32 vcc, 27, v0\nv_cndmask_b32 v2, v2, v4, vcc\nv_cndmask_b32 v3, v3, v5, vcc')
    p(f's_lshl_b32 s13, s11, 10\ns_add_u32 s13, s13, {OFF_MF + 8192 - 44 * 128}\nv_add_u32 v4, s13, v1\nv_mov_b32 v5, 8192')
    p('v_cmp_lt_u32 vcc, 43, v0\nv_cndmask_b32 v2, v2, v4, vcc\nv_cndmask_b32 v3, v3, v5, vcc')
    p(f's_lshl_b32 s13, s11, 7\ns_add_u32 s13, s13, {OFF_VF + 1024 - 52 * 128}\nv_add_u32 v4, s13, v1\nv_mov_b32 v5, 1024')
    p('v_cmp_lt_u32 vcc, 51, v0\nv_cndmask_b32 v2, v2, v4, vcc\nv_cndmask_b32 v3, v3, v5, vcc')
    p(f'v_mov_b32 v6, 0\ns_mov_b32 s20, {OFF_MS}\ns_mov_b32 s30, 0')
    nv = cfg.get('prefv', 0)
    p(f'v_lshrrev_b32 v9, 3, v0\nv_min_u32 v9, 6, v9\nv_lshlrev_b32 v9, 13, v9\nv_and_b32 v10, 7, v0\nv_lshl_add_u32 v9, v10, 7, v9')
    p(f's_mul_i32 s13, s11, {7 * 8192}\ns_add_u32 s24, s13, {OFF_V + (8 - nv) * 1024}')
    loop = p.uid('L_pf')
    p(f'{loop}:')
    p(f's_cmp_le_u32 s30, {ahead}\ns_cbranch_scc1 {loop}_go')
    p(f's_add_u32 s20, s20, 8192\ns_sub_u32 s21, s20, {OFF_MS - OFF_MF}\ns_mov_b32 s31, 0')
    p(f'{loop}_poll:')
    p(f's_sleep {cfg.get("pf_sleep", 8)}\ns_mov_b64 exec, 1\n' + ld('v7', 6, 's21', n=1))
    p(f's_add_u32 s31, s31, 1\ns_cmp_ge_u32 s31, 16\ns_cselect_b32 s21, s20, s21\ns_cmp_gt_u32 s31, {TMO}\ns_cbranch_scc1 {FAIL}\ns_waitcnt vmcnt(0)')
    p(f'v_cmp_eq_u32 vcc, -1, v7\ns_mov_b64 exec, -1\ns_cbranch_vccnz {loop}_poll')
    p(f'{loop}_go:')
    p('s_mov_b32 exec_hi, 0x1fffff\n' + ld('v8', 2, '0', n=1) + '\nv_add_u32 v2, v2, v3\ns_mov_b64 exec, -1')
    for k in range(nv): p(ld(f'v{11 + k}', 9, 's24', k * 1024, n=1))
    p(f's_add_u32 s24, s24, {14 * 32768}')
    p(f's_add_u32 s30, s30, 1\ns_cmp_lt_u32 s30, {NSTEP}\ns_cbranch_scc1 {loop}')
    p('s_branch L_exit')
```

```python
from common import *
from rroles import load_A_weights, load_B_weights, idx_reg, y_phase

NREP = 4
ident = lambda sg: sg

def dma_linear(p, vL16, so, lds_sreg, n):
    out = []
    for k in range(n):
        if (k & 3) == 0: out.append(f's_add_u32 m0, {lds_sreg}, {k * 1024}')
        out.append(lddma(vL16, so, (k & 3) * 1024))
        if (k & 3) == 3 and k + 1 < n: out.append(f's_add_u32 {so}, {so}, 4096')
    for x in out: p(x)

def tprof(p, cfg, k, t):
    if cfg.get('tprof'): prof(p, cfg, k, t)

def pt_base(p, seg, late):
    if late: p(f's_mul_i32 s21, {seg}, 40960\ns_add_u32 s21, s21, {OFF_PT2 - (64 - NLATE) * 40960}\ns_add_u32 s22, s21, 32768')
    else: p(f's_lshl_b32 s21, {seg}, 15\ns_add_u32 s21, s21, {OFF_PT}\ns_lshl_b32 s22, {seg}, 13\ns_add_u32 s22, s22, {OFF_PM}')

def ms_off(p, dst, seg):
    p(f's_lshl_b32 {dst}, {seg}, 13\ns_add_u32 {dst}, {dst}, {OFF_MS}\ns_cmp_eq_u32 {seg}, 0\ns_cselect_b32 {dst}, {OFF_MS0}, {dst}')

def gen_TA(p, cfg):
    LP, LN, LR = 0, 28672, 57344
    acc = lambda T: 8 + 4 * T
    Q = lambda qt, u: 36 + 16 * qt + 4 * u
    Xw = lambda b: 68 + 4 * b
    Sm = lambda qt: 76 + 4 * qt
    S00, S01, S11 = 84, 88, 92
    Hw = lambda i: 96 + 4 * i
    vL16, vHa, vHb, vHc, vMa, vMb, vMc, vT0, vZ, vPM, vQ = range(108, 119)
    def Wh(T, ks):
        i = T * 7 + (ks >> 1); q = ks & 1
        return ar(8 * i + 4 * q, 4) if i < 32 else vr(120 + 8 * (i - 32) + 4 * q, 4)
    p(f'v_lshlrev_b32 v{vL16}, 4, v0\nv_mov_b32 v{vZ}, 0')
    if cfg.get('ta_wait', 1) == 1: wait_word(p, WS, OFF_GO2, 32, -1)
    if cfg.get('ta_wait', 1) >= 2:
        p(f's_mul_i32 s14, s37, {cfg.get("ta_step", 4) * 8192}')
        wait_word(p, WS, OFF_MS + (cfg['ta_wait'] - 1) * 8192, 32, -1, so='s14')
    p(f's_lshl_b32 s13, s11, 2\ns_add_u32 s13, s13, s12\ns_mul_i32 s13, s13, {98 * 1024}\ns_add_u32 s13, s13, {OFF_A}')
    load_A_weights(p, vL16, ident)
    p('v_lshrrev_b32 v1, 4, v0\nv_and_b32 v2, 15, v0')
    emit_pos(p, 3, 2, 4, 5)
    p('s_lshr_b32 s13, s12, 1\ns_mul_i32 s13, s13, 28\ns_and_b32 s14, s12, 1\ns_lshl_b32 s15, s14, 3\ns_add_u32 s15, s15, s13')
    p('v_lshlrev_b32 v4, 1, v1\nv_add_u32 v4, s15, v4')
    p('s_lshl_b32 s15, s14, 2\ns_add_u32 s15, s15, s13\ns_add_u32 s15, s15, 16\nv_add_u32 v5, s15, v1')
    p('s_add_u32 s15, s13, 24\nv_add_u32 v6, s15, v1')
    p(f'v_lshlrev_b32 v3, 4, v3\nv_add_u32 v3, {LN}, v3')
    p(f'v_lshrrev_b32 v7, 2, v2\nv_lshlrev_b32 v7, 1, v7\nv_and_b32 v8, 1, v0\nv_add_u32 v7, v7, v8')
    for d, m_, s_ in ((vHa, vMa, 4), (vHb, vMb, 5), (vHc, vMc, 6)):
        p(f'v_lshl_add_u32 v{d}, v{s_}, 9, v3')
        emit_maddr(p, m_, s_, 7, 8, 9)
    p('s_cmp_eq_u32 s14, 0\ns_cselect_b64 s[16:17], -1, 0')
    p(f'v_lshlrev_b32 v4, 2, v1\nv_sub_u32 v{vQ}, v2, v4')
    p(f'v_lshlrev_b32 v{vPM}, 2, v0')
    p('s_mul_i32 s26, s12, 7168\ns_mov_b32 s30, s37')
    p(f's_add_u32 s27, s26, {LN}\ns_mov_b32 s35, 0xff800000')
    def xissue(seg):
        p(f's_mul_i32 s13, {seg}, 28672\ns_add_u32 s13, s13, s26\ns_add_u32 s24, s13, {OFF_XP}\ns_add_u32 s25, s13, {OFF_XN}')
        dma_linear(p, vL16, 's24', 's26', 7); dma_linear(p, vL16, 's25', 's27', 7)
    xissue('s30')
    loop = p.uid('L_TA')
    p(f'{loop}:')
    p('s_waitcnt vmcnt(0)\ns_barrier')
    for qt in range(2):
        p(dsr(vr(Xw(0), 4), vL16, LP + qt * 1024))
        for ks in range(14):
            if ks < 13: p(dsr(vr(Xw((ks + 1) & 1), 4), vL16, LP + (ks + 1) * 2048 + qt * 1024))
            p(f's_waitcnt lgkmcnt({1 if ks < 13 else 0})')
            for T in range(7):
                p(f'{MF32} {vr(acc(T), 4)}, {Wh(T, ks)}, {vr(Xw(ks & 1), 4)}, {"0" if ks == 0 else vr(acc(T), 4)}')
        for u in range(3):
            for rp in range(2):
                for n4 in range(2): p(cvt(Q(qt, u) + 2 * rp + n4, acc(2 * u + n4) + 2 * rp))
        for rp in range(2):
            p(cvt(vT0, acc(6) + 2 * rp))
            p(f'v_cndmask_b32 v{Q(qt, 3) + 2 * rp}, 0, v{vT0}, s[16:17]\nv_cndmask_b32 v{Q(qt, 3) + 2 * rp + 1}, v{vT0}, 0, s[16:17]')
    haddr = [(vHa, 0), (vHa, 512), (vHb, 0), (vHc, 0)]
    for u in range(4):
        va, o = haddr[u]
        p(dsr(vr(Hw(0), 4), va, o)); p(dsr(vr(Hw(1), 4), va, o + 16))
        c = lambda r: '0' if u == 0 else vr(r, 4)
        p('s_waitcnt lgkmcnt(1)')
        p(f'{MF32} {vr(S00, 4)}, {vr(Hw(0), 4)}, {vr(Q(0, u), 4)}, {c(S00)}')
        p(f'{MF32} {vr(S01, 4)}, {vr(Hw(0), 4)}, {vr(Q(1, u), 4)}, {c(S01)}')
        p('s_waitcnt lgkmcnt(0)')
        p(f'{MF32} {vr(S11, 4)}, {vr(Hw(1), 4)}, {vr(Q(1, u), 4)}, {c(S11)}')
    p('s_barrier')
    lab = p.uid('L_TAx')
    p(f's_add_u32 s29, s30, {NREP}\ns_cmp_lt_u32 s29, 64\ns_cbranch_scc0 {lab}')
    xissue('s29')
    p(f'{lab}:')
    ms_off(p, 's20', 's30')
    maddr = [(vMa, 0), (vMa, 32), (vMb, 0), (vMc, 0)]
    slow_poll(p, [ld(vr(8 + 4 * u, 4), maddr[u][0], 's20', maddr[u][1]) for u in range(4)], list(range(8, 24)), vT0, sleep=cfg.get('t_sleep', 4))
    tprof(p, cfg, 18, 104)
    for u in range(4):
        for qt in range(2):
            p(f'{MF32} {vr(Sm(qt), 4)}, {vr(8 + 4 * u, 4)}, {vr(Q(qt, u), 4)}, {"0" if u == 0 else vr(Sm(qt), 4)}')
    p(f's_mul_i32 s13, s12, 5120\ns_add_u32 s13, s13, {LR}\nv_add_u32 v1, s13, v{vL16}')
    for i, r in enumerate((S00, S01, S11, Sm(0), Sm(1))): p(dsw(1, vr(r, 4), 1024 * i))
    p('s_waitcnt lgkmcnt(0)\ns_barrier')
    tprof(p, cfg, 19, 104)
    skip = p.uid('L_TAs')
    p(f's_cmp_gt_u32 s12, 1\ns_cbranch_scc1 {skip}')
    p(f's_lshl_b32 s13, s12, 10\ns_add_u32 s13, s13, {LR}\nv_add_u32 v1, s13, v{vL16}\nv_add_u32 v2, {LR}, v{vL16}')
    for wv in range(4):
        p(dsr(vr(8 + 12 * wv, 4), 1, wv * 5120 + 3072)); p(dsr(vr(12 + 12 * wv, 4), 1, wv * 5120)); p(dsr(vr(16 + 12 * wv, 4), 2, wv * 5120 + 2048))
    p('s_waitcnt lgkmcnt(0)')
    for r in range(0, 12, 2):
        p(f'v_pk_add_f32 v[{8 + r}:{9 + r}], v[{8 + r}:{9 + r}], v[{20 + r}:{21 + r}]\nv_pk_add_f32 v[{32 + r}:{33 + r}], v[{32 + r}:{33 + r}], v[{44 + r}:{45 + r}]')
    for r in range(0, 12, 2): p(f'v_pk_add_f32 v[{8 + r}:{9 + r}], v[{8 + r}:{9 + r}], v[{32 + r}:{33 + r}]')
    p('v_mov_b32 v3, s35\nv_mov_b32 v10, v8\nv_mov_b32 v11, v9')
    p(f's_lshl_b32 s13, s12, 4\nv_add_u32 v4, s13, v{vQ}\nv_subrev_u32 v5, 16, v4')
    for r in range(4):
        p(f'v_cmp_le_i32 vcc, {r}, v4\nv_cndmask_b32 v{12 + r}, v3, v{12 + r}, vcc')
        p(f'v_cmp_le_i32 vcc, {r}, v5\nv_cndmask_b32 v{16 + r}, v3, v{16 + r}, vcc')
    def allred(op, r):
        p(f'v_mov_b32 v7, v{r}\n{SW16} v{r}, v7\n{op} v{r}, v{r}, v7\nv_mov_b32 v7, v{r}\n{SW32} v{r}, v7\n{op} v{r}, v{r}, v7')
    p('v_max_f32 v6, v10, v11')
    for r in range(12, 20, 2): p(f'v_max3_f32 v6, v6, v{r}, v{r + 1}')
    allred('v_max_f32', 6)
    for r in range(10, 20): p(f'v_sub_f32 v{r}, v{r}, v6')
    for r in range(10, 20): p(f'v_exp_f32 v{r}, v{r}')
    p('v_add_f32 v6, v10, v11')
    for r in range(12, 20): p(f'v_add_f32 v6, v6, v{r}')
    allred('v_add_f32', 6)
    p('v_rcp_f32 v6, v6')
    for r in range(10, 20): p(f'v_mul_f32 v{r}, v{r}, v6')
    p(cvt(24, 10))
    for r in range(4): p(cvt(20 + r, 12 + 2 * r))
    p('s_mov_b32 s15, 0xfffffffe')
    for r in range(20, 25): p(f'v_min_u32 v{r}, s15, v{r}')
    p(f's_lshl_b32 s13, s11, 1\ns_add_u32 s13, s13, s12')
    def pstores(late):
        pt_base(p, 's30', late)
        p(f's_lshl_b32 s14, s13, 10\ns_add_u32 s14, s14, s21')
        p(st('v[20:23]', vL16, 's14', 0, '' if late else 'sc1', n=4))
        p(f's_lshl_b32 s14, s13, 8\ns_add_u32 s14, s14, s22')
        p(st('v24', vPM, 's14', 0, '' if late else 'sc1'))
    nl = p.uid('L_nl')
    p(f's_cmp_lt_u32 s30, {64 - NLATE}\ns_cbranch_scc1 {nl}')
    pstores(True)
    p(f'{nl}:')
    pstores(False)
    tprof(p, cfg, 20, 104)
    p(f's_lshl_b32 s14, s30, 5\ns_add_u32 s13, s13, s14')
    p(f's_lshr_b32 s14, s13, 3\ns_lshl_b32 s14, s14, 7\ns_and_b32 s13, s13, 7\ns_lshl_b32 s13, s13, 2\ns_add_u32 s13, s13, s14\ns_add_u32 s13, s13, {OFF_TF}\ns_waitcnt vmcnt(0)\ns_mov_b64 exec, 1')
    p(st(f'v{vZ}', vZ, 's13', 0, 'sc1'))
    p(f's_mov_b64 exec, -1\n{skip}:')
    p(f's_add_u32 s30, s30, {NREP}\ns_cmp_lt_u32 s30, 64\ns_cbranch_scc1 {loop}')
    p('s_branch L_exit')

def gen_TB(p, cfg):
    LW, LP = 0, 114688
    acc = lambda hh, nt, tt: 8 + 16 * hh + 8 * nt + 4 * tt
    Xw = lambda b, tt: 72 + 8 * b + 4 * tt
    W1 = lambda b, nt: 88 + 8 * b + 4 * nt
    Vi = lambda u, nt: 104 + 16 * u + 8 * nt
    mA = lambda sg: 8 + 4 * sg
    Ya = lambda hh, nt: 36 + 8 * hh + 4 * nt
    Yop = lambda nt: 68 + 4 * nt
    Oa = lambda qt, nt: 84 + 8 * qt + 4 * nt
    Ww = lambda i: 136 + 8 * (i & 3)
    IDX, vL16, vLW, vXr, vZ, vT0, vPM, vRw = range(168, 176)
    vRr, vXo, vFl, vMl, vGo = 100, 101, 102, 103, 76
    def Wreg(hh, nt, sg):
        i = (hh * 2 + nt) * 7 + sg
        return ar(8 * i, 8) if i < 32 else vr(176 + 8 * (i - 32), 8)
    def Wh(hh, nt, ks):
        i = (hh * 2 + nt) * 7 + (ks >> 1); q = ks & 1
        return ar(8 * i + 4 * q, 4) if i < 32 else vr(176 + 8 * (i - 32) + 4 * q, 4)
    p(f'v_lshlrev_b32 v{vL16}, 4, v0\nv_mov_b32 v{vZ}, 0')
    p(f's_lshl_b32 s26, s12, 12\ns_mul_i32 s27, s12, 3072\ns_add_u32 s27, s27, 16384\ns_mov_b32 s30, s37')
    def xpart(seg, part):
        so = 's26' if part == 0 else 's27'
        out = [f's_mul_i32 s13, {seg}, 28672\ns_add_u32 s13, s13, {so}\ns_add_u32 s24, s13, {OFF_XP}\ns_add_u32 m0, {so}, {LP}']
        out += [lddma(vL16, 's24', k * 1024) for k in range(4 - part)]
        return out
    def xissue(seg):
        for x in xpart(seg, 0) + xpart(seg, 1): p(x)
    p(f's_lshl_b32 s13, s11, 2\ns_add_u32 s13, s13, s12\ns_mul_i32 s13, s13, {112 * 1024}\ns_add_u32 s13, s13, {OFF_B}\ns_mul_i32 s15, s12, 28672')
    if cfg.get('tb_hold'):
        lab = p.uid('L_h'); p(f's_cmp_lt_u32 s37, {cfg.get("tb_hold_from", 0)}\ns_cbranch_scc1 {lab}')
        for _ in range(cfg['tb_hold']): p('s_sleep 32')
        p(f'{lab}:')
    load_B_weights(p, vL16, ident, 's15')
    wait_go(p, 3 if cfg.get('prep2', 1) else 7, 4, 1)
    xissue('s30')
    p(f'v_add_u32 v{vLW}, s15, v{vL16}\nv_add_u32 v{vXr}, {LP}, v{vL16}')
    idx_reg(p, IDX)
    p(f's_lshl_b32 s13, s11, 15\ns_lshl_b32 s14, s12, 13\ns_add_u32 s13, s13, s14\ns_add_u32 s28, s13, {OFF_V}')
    p(f's_lshl_b32 s13, s11, 6\ns_lshl_b32 s14, s12, 2\ns_add_u32 s13, s13, s14\ns_add_u32 s29, s13, {OFF_VF}')
    if cfg.get('tb_stagger', 1):
        pass
    p('s_mov_b32 s33, 0x7ffffff0\ns_waitcnt vmcnt(0)')
    prof(p, cfg, 3)
    loop = p.uid('L_TB1')
    p(f'{loop}:')
    p('s_barrier')
    def rd(ks):
        b = ks & 1
        return [dsr(vr(Xw(b, tt), 4), vXr, ks * 2048 + tt * 1024) for tt in range(2)] + \
               [dsr(vr(W1(b, nt), 4), vLW, (nt * 14 + ks) * 1024) for nt in range(2)]
    for x in rd(0): p(x)
    p(f's_add_u32 s32, s30, {NREP}\ns_min_u32 s14, s32, 63')
    for ks in range(14):
        p('s_waitcnt lgkmcnt(0)')
        nxt = rd(ks + 1) if ks < 13 else []
        if ks == 7:
            p('s_waitcnt vmcnt(8)\ns_barrier')
            nxt = nxt + xpart('s14', 0)
        for hh in range(4):
            for nt in range(2):
                for tt in range(2):
                    wop = Wh(hh, nt, ks) if hh < 3 else vr(W1(ks & 1, nt), 4)
                    p(f'{MF32} {vr(acc(hh, nt, tt), 4)}, {vr(Xw(ks & 1, tt), 4)}, {wop}, {"0" if ks == 0 else vr(acc(hh, nt, tt), 4)}')
                    if nxt: p(nxt.pop(0))
    p('s_barrier')
    if cfg.get('prof'):
        l2 = p.uid('L_x'); p(f's_cmp_ge_u32 s30, {NREP}\ns_cbranch_scc1 {l2}'); prof(p, cfg, 16); p(f'{l2}:')
    p('s_waitcnt vmcnt(4)\ns_mov_b64 exec, 1')
    p(st(f'v{vZ}', vZ, 's33', 0, 'sc1'))
    p('s_mov_b64 exec, -1')
    for x in xpart('s14', 1): p(x)
    for hh in range(4):
        for nt in range(2):
            for tt in range(2):
                for rp in range(2): p(cvt(Vi(hh >> 1, nt) + 4 * (hh & 1) + 2 * tt + rp, acc(hh, nt, tt) + 2 * rp))
    p(f's_mul_i32 s13, s30, {14 * 32768}\ns_add_u32 s13, s13, s28')
    for k in range(8):
        p(st(vr(104 + 4 * k, 4), vL16, 's13', (k & 3) * 1024, cfg.get('stV', 'sc1'), n=4))
        if k == 3: p('s_add_u32 s13, s13, 4096')
    p(f's_lshl_b32 s13, s30, 10\ns_add_u32 s33, s13, s29')
    lab = p.uid('L_TBf')
    p(f's_cmp_ge_u32 s30, {2 * NREP}\ns_cbranch_scc1 {lab}')
    p('s_waitcnt vmcnt(0)\ns_mov_b64 exec, 1')
    p(st(f'v{vZ}', vZ, 's33', 0, 'sc1'))
    p(f's_mov_b64 exec, -1\ns_mov_b32 s33, 0x7ffffff0')
    if cfg.get('prof'):
        l2 = p.uid('L_x'); p(f's_cmp_ge_u32 s30, {NREP}\ns_cbranch_scc1 {l2}'); prof(p, cfg, 17); p(f'{l2}:')
    p(f'{lab}:')
    p(f's_waitcnt vmcnt(12)\ns_mov_b32 s30, s32\ns_cmp_lt_u32 s30, 64\ns_cbranch_scc1 {loop}')
    p('s_waitcnt vmcnt(0)\ns_mov_b64 exec, 1')
    p(st(f'v{vZ}', vZ, 's33', 0, 'sc1'))
    p('s_mov_b64 exec, -1\ns_barrier')
    prof(p, cfg, 4)
    p('v_lshrrev_b32 v1, 4, v0\nv_and_b32 v2, 15, v0')
    p(f'v_lshlrev_b32 v{vPM}, 2, v0')
    p(f's_mul_i32 s13, s12, 4608\ns_add_u32 s13, s13, {LP}\nv_mul_u32_u24 v3, 144, v2\nv_lshlrev_b32 v4, 4, v1\nv_add3_u32 v{vRw}, v3, v4, s13')
    p(f's_lshl_b32 s13, s12, 3\nv_lshrrev_b32 v3, 3, v0\nv_add_u32 v3, s13, v3\nv_and_b32 v4, 7, v0')
    p(f'v_mul_u32_u24 v5, 144, v3\nv_lshlrev_b32 v6, 4, v4\nv_add_u32 v5, v5, v6\nv_add_u32 v{vRr}, {LP}, v5')
    p(f's_lshl_b32 s13, s11, 6\nv_mul_u32_u24 v5, 896, v3\nv_lshlrev_b32 v6, 3, v4\nv_add3_u32 v{vXo}, v5, v6, s13')
    p(f'v_lshrrev_b32 v5, 2, v4\nv_lshlrev_b32 v5, 10, v5\nv_and_b32 v6, 3, v4\nv_lshl_add_u32 v5, v6, 7, v5\nv_lshrrev_b32 v6, 4, v3\nv_lshl_add_u32 v5, v6, 9, v5')
    p(f'v_and_b32 v6, 15, v3\nv_lshl_add_u32 v5, v6, 3, v5\ns_lshl_b32 s13, s11, 11\nv_add_u32 v{vGo}, s13, v5')
    p(f's_lshl_b32 s13, s12, 7\nv_and_b32 v3, 7, v0\nv_lshlrev_b32 v3, 2, v3\nv_add_u32 v{vFl}, s13, v3')
    p(f'v_min_u32 v3, 27, v0\nv_lshlrev_b32 v{vMl}, 8, v3')
    p('s_mov_b32 s30, s37\ns_mov_b32 s34, 0xffff0000')
    mloads = [ld(vr(mA(t), 4), vL16, 's20' if t < 4 else 's22', (t & 3) * 1024) for t in range(7)]
    def ahead(seg):
        ms_off(p, 's20', seg)
        p(f's_add_u32 s22, s20, 4096\ns_lshl_b32 s21, {seg}, 7\ns_add_u32 s21, s21, {OFF_GF}')
        for x in mloads: p(x)
        p(ld('v77', vZ, 's21', n=1))
        p(f's_mul_i32 s13, {seg}, {14 * 32768}\ns_add_u32 s13, s13, s28')
        for k in range(8):
            p(ld(vr(104 + 4 * k, 4), vL16, 's13', (k & 3) * 1024))
            if k == 3: p('s_add_u32 s13, s13, 4096')
    ahead('s30')
    p('s_waitcnt vmcnt(8)')
    loop = p.uid('L_TB2')
    p(f'{loop}:')
    for sg in range(2):
        for nt in range(2):
            for q_ in range(2): p(dsr(vr(Ww(2 * sg + nt) + 4 * q_, 4), vLW, ((nt * 7 + sg) * 2 + q_) * 1024))
    for r in range(36, 68): p(f'v_mov_b32 v{r}, 0')
    ok = p.uid('L_mok')
    p('s_waitcnt vmcnt(9)')
    for x in chk_instrs(list(range(8, 36)) + [77], vT0): p(x)
    p(f's_cbranch_vccz {ok}')
    lab = p.uid('L_mlate')
    p(f's_cmp_ge_u32 s30, {64 - NLATE}\ns_cbranch_scc1 {lab}')
    slow_poll(p, [ld('v1', vMl, 's20', n=1)], [1], vT0, sleep=cfg.get('t_sleep', 4))
    p(f'{lab}:')
    slow_poll(p, mloads + [ld('v77', vZ, 's21', n=1)], list(range(8, 36)) + [77], vT0, sleep=cfg.get('m_sleep', 2))
    p(f'{ok}:')
    tprof(p, cfg, 18, 78)
    p(f's_mul_i32 s23, s30, 28672\ns_add_u32 s25, s23, {OFF_G}\ns_lshl_b32 s21, s30, 9\ns_add_u32 s21, s21, {OFF_TF}')
    p(ld('v[2:3]', vXo, 's23', fl='', n=2, srd=XS)); p(ld('v[4:5]', vGo, 's25', n=2)); p(ld('v1', vFl, 's21', n=1))
    p('s_waitcnt lgkmcnt(0)')
    y_phase(p, mA, Ya, Ww, Wreg, IDX, vLW, ident, [], Yop)
    tprof(p, cfg, 19, 78)
    PT = lambda hh, qt: 8 + 8 * hh + 4 * qt
    PMm = lambda qt: 40 + 4 * qt
    ploads = [ld(vr(8 + 4 * k, 4), vL16, 's21' if k < 4 else 's24', (k & 3) * 1024) for k in range(8)] + \
             [ld(vr(PMm(k & 1) + (k >> 1)), vPM, 's22', k * 256, n=1) for k in range(8)]
    def pbase(late):
        pt_base(p, 's30', late)
        p(f's_lshl_b32 s14, s12, 13\ns_add_u32 s21, s21, s14\ns_add_u32 s24, s21, 4096\ns_lshl_b32 s14, s12, 11\ns_add_u32 s22, s22, s14')
    lab = p.uid('L_late')
    p(f's_cmp_lt_u32 s30, {64 - NLATE}\ns_cbranch_scc1 {lab}_f')
    pbase(True)
    p(f's_mov_b32 s31, 0\n{lab}_q:')
    for x in ploads: p(x)
    p('s_waitcnt vmcnt(0)')
    for x in chk_instrs([11 + 4 * k for k in range(8)] + list(range(40, 48)), vT0): p(x)
    p(f's_cbranch_vccz {lab}_d\ns_add_u32 s31, s31, 1\ns_cmp_lt_u32 s31, 24\ns_cbranch_scc1 {lab}_q')
    p(f'{lab}_f:\ns_waitcnt vmcnt(0)\nv_cmp_eq_u32 vcc, -1, v1\ns_cbranch_vccz {lab}')
    p(f's_lshl_b32 s21, s30, 9\ns_add_u32 s21, s21, {OFF_TF}')
    slow_poll(p, [ld('v1', vFl, 's21', n=1)], [1], vT0, sleep=cfg.get('t_sleep', 4))
    p(f'{lab}:')
    pbase(False)
    for x in ploads: p(x)
    p(f's_waitcnt vmcnt(0)\n{lab}_d:')
    tprof(p, cfg, 20, 78)
    for hh in range(4):
        for qt in range(2):
            for nt in range(2):
                p(f'{MF32} {vr(Oa(qt, nt), 4)}, {vr(Vi(hh >> 1, nt) + 4 * (hh & 1), 4)}, {vr(PT(hh, qt), 4)}, {"0" if hh == 0 else vr(Oa(qt, nt), 4)}')
    for qt in range(2):
        for nt in range(2):
            p(f'{MF32} {vr(Oa(qt, nt), 4)}, {vr(Yop(nt), 4)}, {vr(PMm(qt), 4)}, {vr(Oa(qt, nt), 4)}')
    p('s_barrier')
    for qt in range(2):
        for nt in range(2): p(dsw(vRw, vr(Oa(qt, nt), 4), qt * 16 * 144 + nt * 64))
    nolook = p.uid('L_na')
    p(f's_add_u32 s32, s30, {NREP}\ns_cmp_ge_u32 s32, 64\ns_cbranch_scc1 {nolook}')
    ahead('s32')
    p(f'{nolook}:')
    p('s_waitcnt lgkmcnt(0)\ns_barrier')
    F = 40
    for wv in range(4): p(dsr(vr(F + 4 * wv, 4), vRr, wv * 4608))
    p(f'v_lshlrev_b32 v{F + 16}, 16, v2\nv_and_b32 v{F + 17}, s34, v2\nv_lshlrev_b32 v{F + 18}, 16, v3\nv_and_b32 v{F + 19}, s34, v3')
    p(f'v_lshlrev_b32 v{F + 20}, 16, v4\nv_and_b32 v{F + 21}, s34, v4\nv_lshlrev_b32 v{F + 22}, 16, v5\nv_and_b32 v{F + 23}, s34, v5')
    p('s_waitcnt lgkmcnt(0)')
    pk = lambda op, d, a_, b_: p(f'v_pk_{op}_f32 v[{F + d}:{F + d + 1}], v[{F + a_}:{F + a_ + 1}], v[{F + b_}:{F + b_ + 1}]')
    pk('add', 0, 0, 4); pk('add', 2, 2, 6); pk('add', 8, 8, 12); pk('add', 10, 10, 14); pk('add', 0, 0, 8); pk('add', 2, 2, 10)
    def rnd():
        p(cvt(F + 4, F)); p(cvt(F + 5, F + 2))
        p(f'v_lshlrev_b32 v{F}, 16, v{F + 4}\nv_and_b32 v{F + 1}, s34, v{F + 4}\nv_lshlrev_b32 v{F + 2}, 16, v{F + 5}\nv_and_b32 v{F + 3}, s34, v{F + 5}')
    rnd()
    pk('mul', 0, 0, 20); pk('mul', 2, 2, 22)
    rnd()
    pk('add', 0, 0, 16); pk('add', 2, 2, 18)
    p(cvt(6, F)); p(cvt(7, F + 2))
    p(st('v[6:7]', vXo, 's23', 0, cfg.get('stO', ''), n=2, srd=OUT))
    tprof(p, cfg, 21, 78)
    p(f's_mov_b32 s30, s32\ns_cmp_lt_u32 s30, 64\ns_cbranch_scc1 {loop}')
    p('s_branch L_exit')

def gen_FFN(p, cfg):
    LB = 131072
    Ga = lambda nt, tt: 8 * nt + 4 * tt
    Ha = lambda ft, tt: 8 + 8 * ft + 4 * tt
    Hop = lambda ks, tt: 40 + 8 * ks + 4 * tt
    Wf = lambda b, i: 56 + 16 * b + 4 * i
    Xf = lambda ks, tt: 128 + 8 * ks + 4 * tt
    vL16, vS1, vS2, vB, vZ = 88, 89, 91, 92, 93
    vR1, vR2 = 96, 100
    srd(p, 80, 56, 448 * 3584); srd(p, 84, 60, 1792 * 896); srd(p, 88, 58, 3584); srd(p, 92, 62, 896)
    p(f'v_lshlrev_b32 v{vL16}, 4, v0\nv_mov_b32 v{vZ}, 0')
    if cfg.get('ffn_wait', 1): wait_word(p, WS, OFF_GO2, 32, -1)
    p(f's_lshl_b32 s13, s12, 10\ns_add_u32 m0, s13, {LB}')
    p(lddma(vL16, 's13', fl='', srd=R2))
    p(f's_mov_b32 m0, {LB + 4096}')
    p(lddma(vL16, '0', fl='', srd=R3))
    p('v_lshrrev_b32 v1, 4, v0\nv_and_b32 v2, 15, v0')
    emit_pos(p, 3, 2, 4, 5)
    p(f'v_lshlrev_b32 v3, 4, v3\nv_lshl_add_u32 v3, v1, 9, v3\ns_mul_i32 s13, s11, 28672\ns_add_u32 s13, s13, {OFF_XN}')
    for ks in range(14):
        for tt in range(2): p(ld(vr(Xf(ks, tt), 4), 3, 's13', (ks & 1) * 2048 + tt * 16))
        if ks & 1: p('s_add_u32 s13, s13, 4096')
    for r in range(224): p(f'v_accvgpr_write_b32 a{r}, 0')
    p('v_lshrrev_b32 v4, 3, v0\nv_and_b32 v5, 7, v0')
    p(f'v_and_b32 v6, 2, v4\nv_xor_b32 v6, v6, v5\nv_lshlrev_b32 v6, 4, v6\nv_mul_u32_u24 v7, 3584, v4\nv_add_u32 v{vS1}, v6, v7\nv_xor_b32 v{vS1 + 1}, 64, v{vS1}')
    p(f'v_and_b32 v6, 6, v4\nv_xor_b32 v6, v6, v5\nv_lshlrev_b32 v6, 4, v6\nv_mul_u32_u24 v7, 896, v4\nv_add_u32 v{vS2}, v6, v7')
    p('s_lshl_b32 s26, s12, 15\nv_lshrrev_b32 v4, 2, v2\nv_and_b32 v5, 3, v0\nv_lshlrev_b32 v5, 3, v5\nv_add_u32 v5, s26, v5')
    p('v_lshrrev_b32 v6, 1, v4\nv_and_b32 v7, 1, v1\nv_lshl_add_u32 v6, v7, 1, v6')
    p('v_lshl_add_u32 v7, v1, 3, v4\nv_lshl_add_u32 v8, v7, 7, v5\nv_lshl_add_u32 v7, v1, 2, v4\nv_lshl_add_u32 v9, v7, 7, v5')
    for i in range(4):
        p(f'v_xor_b32 v7, {i}, v6\nv_lshl_add_u32 v{vR1 + i}, v7, 5, v8\nv_lshl_add_u32 v{vR2 + i}, v7, 5, v9')
    p(f's_mul_i32 s13, s12, 896\ns_add_u32 s13, s13, {LB}\nv_lshlrev_b32 v7, 3, v1\nv_add_u32 v{vB}, s13, v7')
    p('s_mul_i32 s13, s11, 147\ns_lshr_b32 s13, s13, 10\ns_mul_i32 s13, s13, 7\ns_sub_u32 s27, s11, s13')
    if not cfg.get('ffn_rot', 1): p('s_mov_b32 s27, 0')
    p(f's_lshl_b32 s13, s27, 7\nv_add_u32 v{vB}, s13, v{vB}')
    p('s_mul_i32 s22, s12, 896\ns_mul_i32 s23, s12, 401408')
    def grp_offsets():
        p(f's_lshl_b32 s13, s27, 7\ns_add_u32 s20, s22, s13\ns_mul_i32 s13, s27, {64 * 896}\ns_add_u32 s21, s23, s13')
        p('s_add_u32 s27, s27, 1\ns_mov_b32 s29, 128\ns_cmp_eq_u32 s27, 7\ns_cselect_b32 s27, 0, s27\ns_cselect_b32 s29, -768, s29')
        p('s_lshl_b32 s13, s27, 7\ns_add_u32 s28, s22, s13')
    grp_offsets()
    p('s_mov_b32 s34, 0xffff0000')
    def issue(n, nxt):
        def f(ring):
            j = n % 7
            for i in range(8):
                p(f's_add_u32 m0, s26, {ring * 8192 + i * 1024}')
                if n < 7:
                    p(f's_add_u32 s13, {"s28" if nxt else "s20"}, {(64 * j + 8 * i) * 3584}')
                    p(lddma(vS1 + (i & 1), 's13', fl='', srd=R0))
                else:
                    p(f's_add_u32 s13, s21, {8 * i * 896 + 128 * j + (64 * 896 if nxt else 0)}')
                    p(lddma(vS2, 's13', fl='', srd=R1))
        return f
    for n in range(3): issue(n, False)(n)
    p('s_waitcnt vmcnt(24)\ns_barrier\ns_mov_b32 s30, 0')
    loop = p.uid('L_ffn')
    p(f'{loop}:')
    for half in range(2):
        for n in range(14):
            ring = (half * 14 + n) & 3
            p('s_waitcnt vmcnt(16)')
            def rd(ks):
                out = []
                for i in range(4):
                    for hf in range(2):
                        if n < 7: out.append(dstr(vr(Wf(ks, i) + 2 * hf, 2), vR1 + i, ring * 8192 + (32 * ks + 4 * hf) * 128))
                        else: out.append(dstr(vr(Wf(ks, i) + 2 * hf, 2), vR2 + i, ring * 8192 + (32 * ks + 16 * hf) * 128))
                return out
            for x in rd(0): p(x)
            n3 = n + 3
            issue(n3 % 14, n3 >= 14)((ring + 3) & 3)
            if n == 7:
                for ft in range(4): p(dsr(vr(104 + 2 * ft, 2), vB, 32 * ft, 2))
                p('s_waitcnt lgkmcnt(0)')
                for ft in range(4):
                    p(f'v_lshlrev_b32 v112, 16, v{104 + 2 * ft}\nv_and_b32 v113, s34, v{104 + 2 * ft}\nv_lshlrev_b32 v114, 16, v{105 + 2 * ft}\nv_and_b32 v115, s34, v{105 + 2 * ft}')
                    for tt in range(2):
                        a = Ha(ft, tt)
                        def rnd():
                            p(cvt(116, a)); p(cvt(117, a + 2))
                            p(f'v_lshlrev_b32 v{a}, 16, v116\nv_and_b32 v{a + 1}, s34, v116\nv_lshlrev_b32 v{a + 2}, 16, v117\nv_and_b32 v{a + 3}, s34, v117')
                        rnd()
                        p(f'v_pk_add_f32 v[{a}:{a + 1}], v[{a}:{a + 1}], v[112:113]\nv_pk_add_f32 v[{a + 2}:{a + 3}], v[{a + 2}:{a + 3}], v[114:115]')
                        rnd()
                        for r in range(4): p(f'v_max_f32 v{a + r}, 0, v{a + r}')
                        p(f'v_pk_mul_f32 v[{a}:{a + 1}], v[{a}:{a + 1}], v[{a}:{a + 1}]\nv_pk_mul_f32 v[{a + 2}:{a + 3}], v[{a + 2}:{a + 3}], v[{a + 2}:{a + 3}]')
                        d = Hop(ft >> 1, tt) + 2 * (ft & 1)
                        p(cvt(d, a)); p(cvt(d + 1, a + 2))
                p(f'v_add_u32 v{vB}, s29, v{vB}')
            for ks in range(2):
                p('s_waitcnt lgkmcnt(0)')
                nxt = rd(1) if ks == 0 else []
                for i in range(4):
                    for tt in range(2):
                        if n < 7:
                            c = '0' if (n == 0 and ks == 0) else vr(Ha(i, tt), 4)
                            p(f'{MF32} {vr(Ha(i, tt), 4)}, {vr(Wf(ks, i), 4)}, {vr(Xf(2 * n + ks, tt), 4)}, {c}')
                        else:
                            g_ = ar(Ga(4 * (n - 7) + i, tt), 4)
                            p(f'{MF32} {g_}, {vr(Wf(ks, i), 4)}, {vr(Hop(ks, tt), 4)}, {g_}')
                        if nxt: p(nxt.pop(0))
        grp_offsets()
        p('s_add_u32 s30, s30, 1')
        if half == 0: p(f's_cmp_eq_u32 s30, 7\ns_cbranch_scc1 {loop}_end')
        else: p(f's_branch {loop}')
    p(f'{loop}_end:')
    p('s_waitcnt vmcnt(0)\ns_barrier')
    p(f's_mul_i32 s13, s12, 28672\nv_add_u32 v3, s13, v{vL16}\ns_mul_i32 s13, s12, 7168\nv_add_u32 v4, s13, v{vL16}\nv_add_u32 v5, 57344, v4')
    p(f's_mul_i32 s13, s12, 224\ns_add_u32 s14, s13, {LB + 4096}\nv_lshlrev_b32 v7, 3, v1\nv_add_u32 v{vB}, s14, v7')
    p(f's_mul_i32 s13, s12, 7168\nv_lshlrev_b32 v6, 3, v0\nv_add_u32 v6, s13, v6\ns_mul_i32 s22, s11, 28672\ns_add_u32 s22, s22, {OFF_G}\ns_add_u32 s23, s22, 4096')
    p('s_mov_b32 s24, 0xbfb8aa3b')
    for tt in range(2):
        for nt in range(28): p(dsw(3, ar(Ga(nt, tt), 4), nt * 1024))
        p('s_waitcnt lgkmcnt(0)\ns_barrier')
        for T in range(7):
            for wv in range(4): p(dsr(vr(8 + 4 * wv, 4), 4 if wv < 2 else 5, (wv & 1) * 28672 + T * 1024))
            p(dsr('v[24:25]', vB, 32 * T, 2))
            p('s_waitcnt lgkmcnt(0)')
            p('v_pk_add_f32 v[8:9], v[8:9], v[12:13]\nv_pk_add_f32 v[10:11], v[10:11], v[14:15]\nv_pk_add_f32 v[16:17], v[16:17], v[20:21]\nv_pk_add_f32 v[18:19], v[18:19], v[22:23]')
            p('v_pk_add_f32 v[8:9], v[8:9], v[16:17]\nv_pk_add_f32 v[10:11], v[10:11], v[18:19]')
            p('v_lshlrev_b32 v16, 16, v24\nv_and_b32 v17, s34, v24\nv_lshlrev_b32 v18, 16, v25\nv_and_b32 v19, s34, v25')
            def rnd():
                p(cvt(12, 8)); p(cvt(13, 10))
                p('v_lshlrev_b32 v8, 16, v12\nv_and_b32 v9, s34, v12\nv_lshlrev_b32 v10, 16, v13\nv_and_b32 v11, s34, v13')
            rnd()
            p('v_pk_add_f32 v[8:9], v[8:9], v[16:17]\nv_pk_add_f32 v[10:11], v[10:11], v[18:19]')
            rnd()
            for r in range(4): p(f'v_mul_f32 v{12 + r}, s24, v{8 + r}')
            for r in range(4): p(f'v_exp_f32 v{12 + r}, v{12 + r}')
            for r in range(4): p(f'v_add_f32 v{12 + r}, 1.0, v{12 + r}')
            for r in range(4): p(f'v_rcp_f32 v{12 + r}, v{12 + r}')
            for r in range(4): p(f'v_mul_f32 v{8 + r}, v{8 + r}, v{12 + r}')
            d = 26 + 2 * (T & 1)
            p(cvt(d, 8)); p(cvt(d + 1, 10))
            p(st(vr(d, 2), 6, 's22' if T < 4 else 's23', 1024 * (T & 3) + 512 * tt, 'sc1', n=2))
        if tt == 0: p('s_barrier')
    p(f's_waitcnt vmcnt(0)\ns_barrier\ns_cmp_lg_u32 s12, 0\ns_cbranch_scc1 L_exit')
    p(f's_lshl_b32 s13, s11, 7\ns_add_u32 s13, s13, {OFF_GF}\ns_mov_b64 exec, 1')
    p(st(f'v{vZ}', vZ, 's13', 0, 'sc1'))
    p('s_branch L_exit')
```

```python
import sys, os, json
sys.path.insert(0, os.path.dirname(os.path.abspath(__file__)))
from asm import Prog
from common import *
import prep, rroles, troles

DEFAULT = dict(ctouch=0, bfirst=0, t_sleep=2, quick=2, go3=6, qspace=32, pspace=32, pspos=-2, dbg_sleep=2, ffn_wait=0, flK='nt', flX='nt', flN='nt', a_delay=11, b_delay=2, p_delay=2, hint=0, early=0, vspread=1, vdense=2, vpre=0, xs=3)

def gen(cfg=None):
    c = dict(DEFAULT); c.update(cfg or {}); cfg = c
    p = Prog()
    p('''s_cmp_ge_u32 s2, 256
s_cbranch_scc1 L_end''')
    if cfg.get('padto'): p('s_memrealtime s[100:101]')
    p('''s_load_dwordx16 s[40:55], s[0:1], 0
s_load_dwordx8 s[56:63], s[0:1], 64
s_load_dwordx4 s[4:7], s[0:1], 96
s_load_dwordx2 s[8:9], s[0:1], 112
s_getreg_b32 s10, hwreg(HW_REG_XCC_ID, 0, 3)
v_lshrrev_b32 v1, 6, v0
v_and_b32 v0, 63, v0
s_mov_b32 s99, s2
s_waitcnt lgkmcnt(0)
v_readfirstlane_b32 s12, v1''')
    if cfg.get('xcc_mix'): p('s_lshr_b32 s10, s2, 5')
    if cfg.get('xcc_skew'): p('s_lshr_b32 s10, s10, 1')
    srd(p, 64, 8, WS_END); srd(p, 68, 4, 2048 * 896); srd(p, 72, 6, 256); srd(p, 76, 40, 2048 * 896)
    prof(p, cfg, 0)
    cnt_zero(p)
    if cfg.get('ctouch', 1):
        p('s_cmp_lg_u32 s12, 1\ns_cbranch_scc1 L_noct\ns_lshr_b32 s14, s2, 3')
        code_touch(p, KNAME, 'L_last', 's14', 246, True)
        p('L_noct:')
    p(f'''s_and_b32 s13, s2, 7
s_lshr_b32 s14, s2, 3
s_cmp_lt_u32 s14, 28
s_cbranch_scc1 L_isgemm
s_lshl_b32 s13, s13, 2
s_add_u32 s13, s13, s14
s_sub_u32 s13, s13, 28
s_branch L_ln
''')
    NPAD = 13
    if cfg.get('warm', 1):
        p('L_walk:\ns_lshr_b32 s3, s2, 3\ns_and_b32 s3, s3, 15')
        for i in range(NPAD): p(f's_cmp_eq_u32 s3, {i}\ns_cbranch_scc1 L_pad{i}')
        p('s_setpc_b64 s[94:95]')
    p(f'''L_isgemm:
s_mul_i32 s13, s13, 28
s_add_u32 s13, s13, s14
s_cmp_ge_u32 s13, 112
s_cselect_b32 s16, 112, 0
s_sub_u32 s13, s13, s16
s_mul_i32 s14, s13, 147
s_lshr_b32 s14, s14, 10
s_mul_i32 s15, s14, 7
s_sub_u32 s15, s13, s15
s_cmp_lg_u32 s16, 0
s_cbranch_scc{0 if cfg.get('bfirst', 1) else 1} L_gemmB''')
    prep.gen_gemm(p, False, cfg)
    p('s_branch L_prepdone\nL_gemmB:')
    prep.gen_gemm(p, True, cfg)
    p('s_branch L_prepdone\nL_ln:')
    prep.gen_ln(p, cfg)
    pads = []
    def pad():
        if cfg.get('warm', 1):
            pads.append(f'L_pad{len(pads)}'); p(f'{pads[-1]}:\ns_setpc_b64 s[94:95]')
    p('s_branch L_prepdone'); pad()
    p('L_prepdone:')
    prof(p, cfg, 7)
    p('s_waitcnt vmcnt(0) lgkmcnt(0)')
    prof(p, cfg, 8)
    p(f'''s_barrier
s_cmp_lg_u32 s12, 0
s_cbranch_scc1 L_role_w
s_mov_b64 exec, 1
v_cmp_lt_u32 vcc, 0xffff, v255
s_cbranch_vccz L_czw
L_czok:
s_lshl_b32 s23, s23, 7
s_add_u32 s23, s23, {OFF_CNT}
v_mov_b32 v4, 0
v_mov_b32 v5, 1
buffer_atomic_add v5, v4, {WS}, s23 offen sc0
s_add_u32 s23, s23, 4096
v_readfirstlane_b32 s11, v255
s_and_b32 s11, s11, 0xffff
s_lshl_b32 s13, s10, 5
s_add_u32 s13, s13, s11
s_cmp_lt_u32 s11, 32
s_cbranch_scc0 L_overflow
L_role_ok:
v_mov_b32 v2, s13
ds_write_b32 v4, v2
s_waitcnt vmcnt(0) lgkmcnt(0)
v_cmp_ne_u32 vcc, s24, v5
s_cbranch_vccnz L_notlast
buffer_store_dword v5, v4, {WS}, s23 offen sc1
L_notlast:
s_mov_b64 exec, -1
L_role_w:
s_barrier
v_mov_b32 v1, 0
ds_read_b32 v2, v1
s_waitcnt lgkmcnt(0)
v_readfirstlane_b32 s13, v2
s_barrier
s_and_b32 s11, s13, 31
s_lshr_b32 s10, s13, 5
s_and_b32 s10, s10, 7''')
    if cfg.get('prof') or cfg.get('rprof'): p('s_mov_b32 s99, s13\nv_mov_b32 v6, 163584 + 40\nv_mov_b32 v7, s2\nds_write_b32 v6, v7')
    prof(p, cfg, 1)
    if cfg.get('only_prep'): p('s_branch L_exit')
    fast_s, slow_s = cfg.get('dbg_sleep', 8), cfg.get('dbg_slow', 48)
    r0, f0, sp = cfg.get('map', (2, 6, 1))
    p(f'''s_cmp_eq_u32 s10, {sp}
s_cbranch_scc1 L_exit
s_sub_u32 s13, s10, {f0}
s_cmp_lt_u32 s13, 2
s_cbranch_scc1 L_FFN
s_sub_u32 s37, s10, {r0}
s_cmp_ge_u32 s11, 30
s_cbranch_scc1 L_spare
s_cmp_ge_u32 s11, 16
s_cbranch_scc1 L_colrole
s_cmp_lg_u32 s10, 0
s_cbranch_scc1 L_TAw''')
    wait_go(p, 4, fast_s, head='s11')
    prof(p, cfg, 2)
    for w in range(3): p(f's_cmp_eq_u32 s12, {w}\ns_cbranch_scc1 L_A{w}')
    p('s_branch L_A3'); pad()
    p('L_colrole:\ns_sub_u32 s11, s11, 16')
    wait_go(p, 2, fast_s)
    prof(p, cfg, 2)
    p('s_cmp_lg_u32 s10, 0\ns_cbranch_scc1 L_TB')
    for w in range(3): p(f's_cmp_eq_u32 s12, {w}\ns_cbranch_scc1 L_B{w}')
    p('s_branch L_B3')
    p('L_TAw:')
    wait_go(p, 7, slow_s)
    prof(p, cfg, 2)
    p('s_branch L_TA')
    p('L_spare:\ns_cmp_lg_u32 s10, 0\ns_cbranch_scc1 L_exit\ns_sub_u32 s11, s11, 30')
    wait_go(p, 7, slow_s)
    rroles.gen_pref(p, cfg)
    p('L_exit:\ns_mov_b64 exec, -1\ns_waitcnt vmcnt(0) lgkmcnt(0)')
    prof(p, cfg, 5)
    if cfg.get('padto'):
        p(f'L_padt:\ns_sleep 1\ns_memrealtime s[96:97]\ns_waitcnt lgkmcnt(0)\ns_sub_u32 s96, s96, s100\ns_cmp_lt_u32 s96, {cfg["padto"]}\ns_cbranch_scc1 L_padt')
    prof_dump(p, cfg)
    prof_dbgout(p, cfg)
    p('s_waitcnt vmcnt(0)\nL_end:\ns_endpgm')
    p(f'''L_czw:
s_mov_b32 s31, 0
L_czl:
v_mov_b32 v252, 0
v_mov_b32 v253, 0
buffer_atomic_add v253, v252, {DBG}, 0 offen sc0
s_add_u32 s31, s31, 1
s_cmp_gt_u32 s31, {TMO}
s_cbranch_scc1 L_exit
s_waitcnt vmcnt(0)
v_cmp_lt_u32 vcc, 0xffff, v253
s_cbranch_vccnz L_czok
s_branch L_czl
L_overflow:
v_mov_b32 v1, 24
v_mov_b32 v3, 1
buffer_atomic_add v3, v1, {DBG}, 0 offen sc0
s_mov_b64 exec, 0xff
v_lshlrev_b32 v1, 5, v0
s_mov_b32 s31, 0
L_ovf:
{ld('v2', 1, '0', n=1, srd=DBG)}
s_add_u32 s31, s31, 1
s_cmp_gt_u32 s31, {TMO}
s_cbranch_scc1 L_exit
s_waitcnt vmcnt(0)
s_mov_b32 s14, 0''')
    for x in range(8): p(f'v_readlane_b32 s{76 + x}, v2, {x}' if False else f'v_readlane_b32 s{25 + x}, v2, {x}')
    for x in range(8): p(f's_and_b32 s{25 + x}, s{25 + x}, 0xffff\ns_add_u32 s14, s14, s{25 + x}')
    p('''s_cmp_lt_u32 s14, 256
s_cbranch_scc1 L_ovf
v_readfirstlane_b32 s15, v3
s_mov_b64 exec, 1
s_mov_b32 s13, 255''')
    for x in range(8):
        p(f'''s_min_u32 s14, s{25 + x}, 32
s_add_u32 s16, s14, s15
s_add_u32 s17, s16, {32 * x}
s_cmp_lt_u32 s16, 32
s_cselect_b32 s13, s17, s13
s_cbranch_scc1 L_role_ok
s_sub_u32 s15, s16, 32''')
    p('s_branch L_role_ok')
    for w in range(4):
        pad(); p(f'L_A{w}:'); rroles.gen_A(p, w, cfg)
    for w in range(4):
        pad(); p(f'L_B{w}:'); rroles.gen_B(p, w, cfg)
    pad(); p('L_TB:'); troles.gen_TB(p, cfg)
    pad(); p('L_TA:'); troles.gen_TA(p, cfg)
    pad(); p('L_FFN:\ns_lshl_b32 s13, s13, 5\ns_add_u32 s11, s11, s13')
    wait_go(p, 7, slow_s)
    prof(p, cfg, 2)
    troles.gen_FFN(p, cfg)
    assert len(pads) in (0, NPAD)
    p('L_last:\ns_endpgm')
    body = p.finish(cfg.get('verbose'))
    hdr = open(os.path.join(os.path.dirname(os.path.abspath(__file__)), 'header.txt')).read()
    return hdr + f'''.amdgcn_target "amdgcn-amd-amdhsa--gfx950"
.text
.globl {KNAME}
.p2align 8
.type {KNAME},@function
{KNAME}:
''' + body + f'''.section .rodata,"a"
.p2align 6
.amdhsa_kernel {KNAME}
  .amdhsa_next_free_vgpr 512
  .amdhsa_next_free_sgpr 102
  .amdhsa_accum_offset 256
  .amdhsa_group_segment_fixed_size 0
  .amdhsa_kernarg_size 120
  .amdhsa_user_sgpr_count 2
  .amdhsa_user_sgpr_kernarg_segment_ptr 1
  .amdhsa_system_sgpr_workgroup_id_x 1
.end_amdhsa_kernel
'''

if __name__ == '__main__':
    cfg = json.loads(sys.argv[2]) if len(sys.argv) > 2 else {}
    cfg['verbose'] = 1
    s = gen(cfg)
    open(sys.argv[1], 'w').write(s)
    print(len(s), 'bytes')
```

```python
KNAME = 'recurrent_scan__memory_aug_recurrent_mem_tr__dense_activation_squared_relu__prompt_kernel'
OFF_A = 0
OFF_B = OFF_A + 16 * 4 * 98 * 1024
OFF_V = OFF_B + 14 * 4 * 112 * 1024
OFF_XN = OFF_V + 64 * 14 * 32768
OFF_XP = OFF_XN + 64 * 28672
OFF_PT = OFF_XP + 64 * 28672
OFF_PM = OFF_PT + 64 * 32768
OFF_G = OFF_PM + 64 * 8192
OFF_MF = OFF_G + 2048 * 896
OFF_INIT = OFF_MF + 8192
OFF_PF = OFF_MF + 64 * 8192
PSLOT = 10240
OFF_PS = OFF_PF + 64 * PSLOT
OFF_VF = OFF_PS + 64 * PSLOT
OFF_TF = OFF_VF + 64 * 1024
OFF_GF = OFF_TF + 64 * 512
OFF_GO2 = OFF_GF + 8192
NLATE = 4
OFF_PT2 = OFF_GO2 + 1024
OFF_MS1 = OFF_PT2 + NLATE * 40960
INIT_END = OFF_MS1 + 63 * 8192
INIT_PER_WAVE = -(-(INIT_END - OFF_INIT) // (1024 * 1024)) * 1024
OFF_MS0 = OFF_INIT + 1024 * INIT_PER_WAVE
OFF_MS = OFF_MS1 - 8192
OFF_CNT = OFF_MS0 + 8192
OFF_GO3 = OFF_CNT + 60 * 128
OFF_PROF = OFF_CNT + 16384
WS_END = OFF_PROF + (1 << 20)
NSTEP = 63
EM_OFF = 7168
EP_OFF = 7680

SMF = 'v_smfmac_f32_16x16x64_bf16'
SMF32 = 'v_smfmac_f32_16x16x32_bf16'
MF32 = 'v_mfma_f32_16x16x32_bf16'
MF16 = 'v_mfma_f32_16x16x16_bf16'
DPP = 'row_mask:0xf bank_mask:0xf'
SW32 = 'v_permlane32_swap_b32'
SW16 = 'v_permlane16_swap_b32'
WS = 's[64:67]'; OUT = 's[68:71]'; DBG = 's[72:75]'; XS = 's[76:79]'
R0 = 's[80:83]'; R1 = 's[84:87]'; R2 = 's[88:91]'; R3 = 's[92:95]'
FAIL = 'L_exit'
TMO = 0x80000

def vr(b, n=1): return f'v[{b}:{b + n - 1}]' if n > 1 else f'v{b}'
def ar(b, n=1): return f'a[{b}:{b + n - 1}]' if n > 1 else f'a{b}'
_OPN = {1: 'dword', 2: 'dwordx2', 4: 'dwordx4'}
def ld(dst, va, so, off=0, fl='sc1', n=4, srd=WS):
    assert 0 <= off < 4096
    o = f' offset:{off}' if off else ''
    return f'buffer_load_{_OPN[n]} {dst}, v{va}, {srd}, {so} offen{o} {fl}'.strip()
def lddma(va, so, off=0, fl='sc1', srd=WS):
    assert 0 <= off < 4096
    o = f' offset:{off}' if off else ''
    f = f' {fl}' if fl else ''
    return f'buffer_load_dwordx4 v{va}, {srd}, {so} offen{o}{f} lds'
def st(src, va, so, off=0, fl='', n=1, srd=WS):
    assert 0 <= off < 4096
    o = f' offset:{off}' if off else ''
    return f'buffer_store_{_OPN[n]} {src}, v{va}, {srd}, {so} offen{o} {fl}'.strip()
def dsr(dst, va, off=0, n=4):
    assert 0 <= off < 65536, off
    op = {1: 'b32', 2: 'b64', 4: 'b128'}[n]
    o = f' offset:{off}' if off else ''
    return f'ds_read_{op} {dst}, v{va}{o}'
def dsw(va, src, off=0, n=4):
    assert 0 <= off < 65536, off
    op = {1: 'b32', 2: 'b64', 4: 'b128'}[n]
    o = f' offset:{off}' if off else ''
    return f'ds_write_{op} v{va}, {src}{o}'
def dstr(dst, va, off=0):
    assert 0 <= off < 65536, off
    o = f' offset:{off}' if off else ''
    return f'ds_read_b64_tr_b16 {dst}, v{va}{o}'
def cvt(d, a, b=None):
    return f'v_cvt_pk_bf16_f32 v{d}, v{a}, v{a + 1 if b is None else b}'
def srd(p, reg, ptr, nbytes):
    p(f's_mov_b32 s{reg}, s{ptr}\ns_mov_b32 s{reg + 1}, s{ptr + 1}\ns_mov_b32 s{reg + 2}, {nbytes}\ns_mov_b32 s{reg + 3}, 0x20000')

def init_fill(p, va, d):
    for r in range(4): p(f'v_mov_b32 v{d + r}, -1')
    p(f's_lshl_b32 s28, s2, 2\ns_add_u32 s28, s28, s12\ns_mul_i32 s28, s28, {INIT_PER_WAVE}\ns_add_u32 s28, s28, {OFF_INIT}')
    n = INIT_PER_WAVE // 1024
    assert n <= 4
    for k in range(n): p(st(vr(d, 4), va, 's28', k * 1024, 'sc1', n=4))
    return n

def code_touch(p, first, last, slice_s, t, behind):
    lab = p.uid('L_ct')
    p(f's_getpc_b64 s[92:93]\n{lab}:')
    p(f's_lshl_b32 s3, {slice_s}, 13\nv_lshlrev_b32 v{t}, 7, v0\nv_add_u32 v{t}, s3, v{t}')
    p(f'v_cmp_gt_u32 vcc, {last}-{first}, v{t}\ns_and_saveexec_b64 s[90:91], vcc\ns_cbranch_execz {lab}_x')
    if behind: p(f's_sub_u32 s92, s92, {lab}-{first}\ns_subb_u32 s93, s93, 0')
    else: p(f's_add_u32 s92, s92, {first}-{lab}\ns_addc_u32 s93, s93, 0')
    p(f'v_mov_b32 v{t + 1}, s93\nv_add_co_u32 v{t}, vcc, s92, v{t}\nv_addc_co_u32 v{t + 1}, vcc, 0, v{t + 1}, vcc')
    p(f'global_load_dword v{t + 2}, v[{t}:{t + 1}], off')
    p(f'{lab}_x:\ns_mov_b64 exec, s[90:91]')

def walk(p, cfg):
    if not cfg.get('warm', 1): return
    lab = p.uid('L_wk')
    p(f's_cmp_lg_u32 s12, 3\ns_cbranch_scc1 {lab}\ns_call_b64 s[94:95], L_walk\n{lab}:')

def ticket(p):
    lab = p.uid('L_tk')
    p(f's_cmp_lg_u32 s12, 0\ns_cbranch_scc1 {lab}\ns_mov_b64 exec, 1\ns_lshr_b32 s3, s2, 7\ns_and_b32 s3, s3, 1\ns_lshl_b32 s31, s10, 1\ns_add_u32 s3, s3, s31\ns_lshl_b32 s3, s3, 4')
    p(f'v_mov_b32 v254, s3\nv_mov_b32 v255, 1\nbuffer_atomic_add v255, v254, {DBG}, 0 offen sc0\ns_mov_b64 exec, -1\n{lab}:')

def chk_instrs(chk, tmp):
    out = []
    regs = list(chk); cur = regs.pop(0)
    while regs:
        if len(regs) >= 2:
            out.append(f'v_max3_u32 v{tmp}, v{cur}, v{regs[0]}, v{regs[1]}'); regs = regs[2:]
        else:
            out.append(f'v_max_u32 v{tmp}, v{cur}, v{regs[0]}'); regs = regs[1:]
        cur = tmp
    out.append(f'v_cmp_eq_u32 vcc, -1, v{cur}')
    return out

def slow_poll(p, loads, chk, tmp, sleep=4, drain=True):
    lab = p.uid('L_sp')
    p(f's_mov_b32 s31, 0\ns_branch {lab}_go\n{lab}:')
    p(f's_sleep {sleep}\ns_add_u32 s31, s31, 1\ns_cmp_gt_u32 s31, {TMO}\ns_cbranch_scc1 {FAIL}')
    p(f'{lab}_go:')
    for l in loads: p(l)
    p('s_waitcnt vmcnt(0)')
    for x in chk_instrs(chk, tmp): p(x)
    p(f's_cbranch_vccnz {lab}')

def wait_word(p, srd_, off, sleep, unset, so='0'):
    lab = p.uid('L_wd')
    p(f's_cmp_lg_u32 s12, 0\ns_cbranch_scc1 {lab}_done')
    p(f'v_mov_b32 v1, {off}\ns_mov_b32 s31, 0\ns_mov_b64 exec, 1\n{lab}:')
    p(ld('v2', 1, so, n=1, srd=srd_))
    p(f's_add_u32 s31, s31, 1\ns_cmp_gt_u32 s31, {TMO}\ns_cbranch_scc1 {FAIL}')
    p(f's_waitcnt vmcnt(0)\nv_cmp_eq_u32 vcc, {unset}, v2\ns_cbranch_vccz {lab}_ok\ns_sleep {sleep}\ns_branch {lab}')
    p(f'{lab}_ok:\ns_mov_b64 exec, -1\n{lab}_done:\ns_barrier')

def cnt_zero(p):
    lab = p.uid('L_cz')
    p(f's_cmp_lg_u32 s2, 0\ns_cbranch_scc1 {lab}\ns_cmp_lg_u32 s12, 3\ns_cbranch_scc1 {lab}')
    p(f'v_lshlrev_b32 v250, 7, v0\nv_mov_b32 v251, 0\ns_mov_b32 s3, {OFF_CNT}')
    p(st('v251', 250, 's3', 0, 'sc1'))
    p('s_add_u32 s3, s3, 8192')
    p(st('v251', 250, 's3', 0, 'sc1'))
    p(f's_waitcnt vmcnt(0)\nv_lshlrev_b32 v250, 4, v0\ns_lshl_b32 s3, s10, 20\ns_add_u32 s3, s3, 0x10000\nv_mov_b32 v251, s3\ns_mov_b64 exec, 0xffff')
    p(f'buffer_atomic_add v251, v250, {DBG}, 0 offen')
    p(f's_mov_b64 exec, -1\n{lab}:')

BMASK = [0xffff0000]

def wait_go(p, mask, sleep, t=1, head=None):
    lab = p.uid('L_wg')
    p(f's_cmp_lg_u32 s12, 0\ns_cbranch_scc1 {lab}_done')
    p(f'v_lshlrev_b32 v{t}, 7, v0\ns_mov_b32 s31, 0\ns_mov_b32 s3, {OFF_CNT + 8192}')
    if head: p(f's_lshl_b64 exec, 1, {head}')
    else:
        lo = (0xffff if mask & 4 else 0) | (BMASK[0] if mask & 2 else 0)
        p(f's_mov_b32 exec_lo, {lo}\ns_mov_b32 exec_hi, {mask & 1}')
    p(f'{lab}:')
    p(ld(f'v{t + 1}', t, 's3', n=1))
    p(f's_add_u32 s31, s31, 1\ns_cmp_gt_u32 s31, {TMO}\ns_cbranch_scc1 {FAIL}')
    p(f's_waitcnt vmcnt(0)\nv_cmp_eq_u32 vcc, 0, v{t + 1}\ns_cbranch_vccz {lab}_ok\ns_sleep {sleep}\ns_branch {lab}')
    p(f'{lab}_ok:\ns_mov_b64 exec, -1\n{lab}_done:\ns_barrier')

def prof(p, cfg, k, t=6):
    if not cfg.get('prof'): return
    lab = p.uid('L_pr')
    p(f's_cmp_lg_u32 s12, 0\ns_cbranch_scc1 {lab}')
    p(f's_memrealtime s[96:97]\nv_mov_b32 v{t}, {163584 + 4 * k}\ns_waitcnt lgkmcnt(0)')
    p(f'v_mov_b32 v{t + 1}, s96\nds_write_b32 v{t}, v{t + 1}\ns_waitcnt lgkmcnt(0)\n{lab}:')

def prof_dump(p, cfg):
    if not cfg.get('prof'): return
    lab = p.uid('L_pd')
    p(f's_cmp_lg_u32 s12, 0\ns_cbranch_scc1 {lab}')
    p(f'v_lshlrev_b32 v6, 2, v0\nv_add_u32 v7, 163584, v6\nds_read_b32 v7, v7\ns_lshl_b32 s98, s99, 8\ns_add_u32 s98, s98, {OFF_PROF}\ns_waitcnt lgkmcnt(0)')
    p(st('v7', 6, 's98') + f'\n{lab}:')

def prof_dbgout(p, cfg):
    if not cfg.get('dbgout'): return
    table = {0: {1: 13, 2: 1, 3: 2, 5: 3}, 16: {3: 6, 5: 7}, 240: {3: 9, 4: 10, 5: 11}, 32: {5: 12}, 224: {5: 14}, 255: {8: 15}}
    for rid, m in table.items():
        lab = p.uid('L_do')
        p(f's_cmp_lg_u32 s12, 0\ns_cbranch_scc1 {lab}\ns_cmp_lg_u32 s99, {rid}\ns_cbranch_scc1 {lab}')
        p('v_mov_b32 v6, 163584\nds_read_b32 v8, v6')
        for k, slot in m.items():
            p(f'ds_read_b32 v7, v6 offset:{4 * k}\ns_waitcnt lgkmcnt(0)\nv_sub_u32 v7, v7, v8\nv_mov_b32 v9, {4 * slot}')
            p(st('v7', 9, '0', 0, 'sc1', srd=DBG) + '\ns_waitcnt vmcnt(0)')
        p(f'{lab}:')

def rstamp(p, cfg, k):
    if cfg.get('rprof') and k in cfg.get('stamps', range(6)): p(f's_memtime s[{76 + 2 * k}:{77 + 2 * k}]')

def rstamp_flush(p, cfg, w, t=2):
    if not cfg.get('rprof'): return
    lab = p.uid('L_rf')
    k0 = cfg.get('rstep', 44)
    p(f's_sub_u32 s36, s30, {k0}\ns_cmp_ge_u32 s36, 2\ns_cbranch_scc1 {lab}')
    p('s_waitcnt lgkmcnt(0)\ns_mov_b64 s[52:53], s[40:41]\ns_mov_b64 s[54:55], s[42:43]\ns_mov_b64 s[56:57], s[44:45]\ns_mov_b64 s[58:59], s[46:47]')
    for k in range(6): p(f's_mov_b32 s{40 + k}, s{76 + 2 * k}')
    p(f's_mov_b32 s46, s39\ns_mov_b32 s47, s31\n{lab}:')

def rstamp_cal(p, cfg, k):
    if not cfg.get('rprof'): return
    p(f's_memtime s[88:89]\ns_memrealtime s[90:91]\ns_waitcnt lgkmcnt(0)\ns_mov_b32 s{60 + 2 * k}, s88\ns_mov_b32 s{61 + 2 * k}, s90')

def rstamp_dump(p, cfg, w):
    if not cfg.get('rprof'): return
    rstamp_cal(p, cfg, 1)
    p('s_waitcnt vmcnt(0)')
    for k in range(8): p(f'v_writelane_b32 v2, s{52 + k}, {k}\nv_writelane_b32 v2, s{40 + k}, {8 + k}')
    for k in range(4): p(f'v_writelane_b32 v2, s{60 + k}, {16 + k}')
    p(f'v_lshlrev_b32 v3, 2, v0\ns_lshl_b32 s36, s99, 10\ns_add_u32 s36, s36, {OFF_PROF + 65536 + w * 256}')
    p(st('v2', 3, 's36'))

def emit_maddr(p, dst, pc, row, t1, t2):
    p(f'v_lshrrev_b32 v{t1}, 1, v{pc}\nv_lshlrev_b32 v{t1}, 8, v{t1}\nv_and_b32 v{t2}, 1, v{pc}\nv_lshl_add_u32 v{t1}, v{t2}, 5, v{t1}')
    p(f'v_lshrrev_b32 v{t2}, 1, v{row}\nv_lshl_add_u32 v{t1}, v{t2}, 6, v{t1}\nv_and_b32 v{t2}, 1, v{row}\nv_lshl_add_u32 v{dst}, v{t2}, 4, v{t1}')

def pos_of(tok):
    return ((tok & 1) << 4) | (((tok >> 3) & 1) << 3) | (((tok >> 1) & 1) << 2) | (((tok >> 2) & 1) << 1) | (tok >> 4)

def emit_pos(p, dst, tok, t1, t2):
    p(f'v_and_b32 v{t1}, 1, v{tok}\nv_lshlrev_b32 v{dst}, 4, v{t1}\nv_and_b32 v{t1}, 8, v{tok}\nv_or_b32 v{dst}, v{dst}, v{t1}')
    p(f'v_and_b32 v{t1}, 2, v{tok}\nv_lshlrev_b32 v{t1}, 1, v{t1}\nv_and_b32 v{t2}, 4, v{tok}\nv_lshrrev_b32 v{t2}, 1, v{t2}')
    p(f'v_or_b32 v{t1}, v{t1}, v{t2}\nv_lshrrev_b32 v{t2}, 4, v{tok}\nv_or3_b32 v{dst}, v{dst}, v{t1}, v{t2}')
```

```python
from common import *

def gen_ln(p, cfg):
    LN_, LP_ = 0, 57344
    p('v_lshlrev_b32 v1, 4, v0')
    p(f'v_lshrrev_b32 v2, 2, v0\nv_and_b32 v3, 3, v0')
    p(f's_lshl_b32 s14, s13, 6\ns_lshl_b32 s15, s12, 4\ns_add_u32 s14, s14, s15\ns_mul_i32 s20, s14, 896')
    p('v_mul_u32_u24 v176, 896, v2\nv_lshlrev_b32 v177, 4, v3\nv_add_u32 v176, v176, v177')
    for k in range(14): p(ld(vr(8 + 4 * k, 4), 176, 's20', 64 * k, fl=cfg.get('flX', ''), srd=XS))
    ns = init_fill(p, 1, 4)
    walk(p, cfg)
    lab = p.uid('L_m0')
    p(f's_cmp_lg_u32 s13, 0\ns_cbranch_scc1 {lab}\ns_cmp_gt_u32 s12, 1\ns_cbranch_scc1 {lab}')
    srd(p, 80, 42, 7168)
    p(f's_mov_b32 s22, {OFF_MS0}\ns_cmp_eq_u32 s12, 0\ns_cselect_b32 s22, {OFF_MF}, s22')
    p('v_bfe_u32 v178, v0, 2, 2\nv_lshlrev_b32 v178, 1, v178\nv_and_b32 v179, 1, v0\nv_add_u32 v178, v178, v179\nv_mul_u32_u24 v178, 896, v178')
    p('v_lshrrev_b32 v179, 4, v0\nv_lshl_add_u32 v178, v179, 5, v178\nv_bfe_u32 v179, v0, 1, 1\nv_lshl_add_u32 v178, v179, 4, v178')
    for k in range(7): p(ld(vr(180 + 4 * k, 4), 178, '0', 128 * k, fl='', srd=R0))
    p('s_mov_b32 s34, 0xfffffffe\ns_waitcnt vmcnt(0)')
    for k in range(28): p(f'v_min_u32 v{180 + k}, s34, v{180 + k}')
    for k in range(7):
        p(st(vr(180 + 4 * k, 4), 1, 's22', (k & 3) * 1024, 'sc1', n=4))
        if k == 3: p('s_add_u32 s22, s22, 4096')
    p('v_mov_b32 v182, 0\nv_mov_b32 v183, 0\nv_lshlrev_b32 v181, 3, v0')
    p(st('v[182:183]', 181, 's22', EM_OFF - 4096, 'sc1', n=2))
    p(f's_waitcnt vmcnt(0)\n{lab}:')
    p(f's_waitcnt vmcnt({min(ns, 63)})')
    prof(p, cfg, 11, 212)
    F = 64
    p('s_mov_b32 s34, 0xffff0000\ns_mov_b32 s35, 0x3f803f80')
    p('v_mov_b32 v208, 0\nv_mov_b32 v209, 0\nv_mov_b32 v210, s35')
    for r in range(0, 56, 2):
        p(f'v_dot2c_f32_bf16 v208, v{8 + r}, v210\nv_dot2c_f32_bf16 v209, v{9 + r}, v210')
    for r in range(56):
        p(f'v_lshlrev_b32 v{F + 2 * r}, 16, v{8 + r}\nv_and_b32 v{F + 2 * r + 1}, s34, v{8 + r}')
    def quad_sum():
        p(f'v_add_f32_dpp v8, v8, v8 quad_perm:[1,0,3,2] {DPP}\nv_add_f32_dpp v8, v8, v8 quad_perm:[2,3,0,1] {DPP}')
        p(f'v_mul_f32 v8, 0x{0x3b124925:x}, v8')
    p('v_add_f32 v8, v208, v209')
    quad_sum()
    p('v_mov_b32 v12, v8\nv_mov_b32 v13, v8')
    p('v_cvt_pk_bf16_f32 v14, v8, v8\nv_and_b32 v14, s34, v14\nv_mov_b32 v15, v14')
    p('v_mov_b32 v8, 0\nv_mov_b32 v9, 0\nv_mov_b32 v10, 0\nv_mov_b32 v11, 0')
    for r in range(0, 56, 2):
        p(f'v_pk_add_f32 v[16:17], v[{F + 2 * r}:{F + 2 * r + 1}], v[12:13] neg_lo:[0,1] neg_hi:[0,1]')
        p(f'v_pk_add_f32 v[18:19], v[{F + 2 * r + 2}:{F + 2 * r + 3}], v[12:13] neg_lo:[0,1] neg_hi:[0,1]')
        p('v_pk_fma_f32 v[8:9], v[16:17], v[16:17], v[8:9]\nv_pk_fma_f32 v[10:11], v[18:19], v[18:19], v[10:11]')
    p('v_pk_add_f32 v[8:9], v[8:9], v[10:11]\nv_add_f32 v8, v8, v9')
    quad_sum()
    p('v_cvt_pk_bf16_f32 v8, v8, v8\nv_and_b32 v8, s34, v8\nv_add_f32 v8, 0x3727c5ac, v8')
    p('v_cvt_pk_bf16_f32 v8, v8, v8\nv_and_b32 v8, s34, v8\nv_sqrt_f32 v8, v8')
    p('v_cvt_pk_bf16_f32 v8, v8, v8\nv_and_b32 v8, s34, v8\nv_rcp_f32 v12, v8\nv_mov_b32 v13, v12')
    p('s_and_b32 s14, s12, 1\ns_lshl_b32 s14, s14, 4\nv_add_u32 v4, s14, v2')
    emit_pos(p, 5, 4, 6, 7)
    p(f's_lshr_b32 s14, s12, 1\ns_mul_i32 s14, s14, 28672')
    p('v_lshlrev_b32 v5, 4, v5\nv_lshlrev_b32 v6, 9, v3\nv_add3_u32 v178, v5, v6, s14')
    p('s_and_b32 s15, s12, 1\ns_lshl_b32 s15, s15, 10\ns_add_u32 s14, s14, s15')
    p(f's_add_u32 s14, s14, {LP_}')
    p('v_lshrrev_b32 v5, 1, v3\nv_lshlrev_b32 v5, 9, v5\nv_and_b32 v6, 1, v3\nv_lshlrev_b32 v6, 2, v6\nv_lshlrev_b32 v7, 4, v2')
    p('v_add3_u32 v5, v5, v6, v7\nv_add_u32 v179, s14, v5')
    for k in range(14):
        d = 16 + 4 * (k & 1)
        for q in range(4):
            a = F + 8 * k + 2 * q
            p(f'v_pk_add_f32 v[{a}:{a + 1}], v[{a}:{a + 1}], v[14:15] neg_lo:[0,1] neg_hi:[0,1]')
            p(f'v_cvt_pk_bf16_f32 v24, v{a}, v{a + 1}\nv_lshlrev_b32 v{a}, 16, v24\nv_and_b32 v{a + 1}, s34, v24')
            p(f'v_pk_mul_f32 v[{a}:{a + 1}], v[{a}:{a + 1}], v[12:13]')
            p(cvt(d + q, a))
        p(dsw(178, vr(d, 4), 2048 * k))
        p(f'v_add_u32 v25, {2048 * k}, v179')
        p(f'ds_write2_b32 v25, v{d}, v{d + 1} offset0:0 offset1:2\nds_write2_b32 v25, v{d + 2}, v{d + 3} offset0:64 offset1:66')
    p('s_waitcnt lgkmcnt(0)\ns_barrier')
    prof(p, cfg, 15, 212)
    p(f's_mul_i32 s14, s12, 28672\nv_add_u32 v2, s14, v1')
    p(f's_mul_i32 s20, s13, 57344\ns_add_u32 s20, s20, s14\ns_mov_b32 s15, {OFF_XP - 57344}\ns_cmp_lt_u32 s12, 2\ns_cselect_b32 s15, {OFF_XN}, s15\ns_add_u32 s20, s20, s15')
    for k in range(28): p(dsr(vr(8 + 4 * k, 4), 2, 1024 * k))
    for k in range(28):
        if k % 7 == 0: p(f's_waitcnt lgkmcnt({min(15, 21 - k)})' if k < 21 else 's_waitcnt lgkmcnt(0)')
        p(st(vr(8 + 4 * k, 4), 1, 's20', (k & 3) * 1024, 'sc1', n=4))
        if (k & 3) == 3: p('s_add_u32 s20, s20, 4096')
    ticket(p)
    p('s_mov_b32 s23, 32\ns_mov_b32 s24, 31')

def gen_gemm(p, isB, cfg):
    acc = lambda T, tt: 8 + 16 * T + 4 * tt
    KF = lambda b, tt: 120 + 44 * b + 4 * tt
    NF = lambda b, T: 120 + 44 * b + 16 + 4 * T
    vK0, vK1, vKr0, vKr1, vL16 = 208, 209, 210, 211, 212
    vN = 214
    vR = 230
    flK = cfg.get('flK', ''); flN = cfg.get('flN', '')
    srd(p, 80, 48 if isB else 44, 448 * 8192)
    srd(p, 84, 50 if isB else 46, 448 * 8192)
    p(f'v_lshlrev_b32 v{vL16}, 4, v0')
    p('v_and_b32 v1, 7, v0\nv_lshrrev_b32 v2, 4, v0\nv_xor_b32 v1, v1, v2\nv_lshlrev_b32 v1, 4, v1')
    p('v_bfe_u32 v3, v0, 3, 1\nv_bfe_u32 v4, v0, 4, 1\nv_bfe_u32 v5, v0, 5, 1')
    p(f'v_lshlrev_b32 v6, 3, v4\nv_lshlrev_b32 v7, 2, v5\nv_add3_u32 v6, v6, v7, v3\nv_lshlrev_b32 v6, 13, v6\nv_add_u32 v{vK0}, v6, v1\nv_xor_b32 v{vK1}, 64, v{vK0}')
    p('s_lshr_b32 s20, s12, 1\ns_lshl_b32 s20, s20, 5\ns_and_b32 s21, s12, 1\ns_lshl_b32 s21, s21, 1\ns_add_u32 s20, s20, s21')
    p('s_lshl_b32 s21, s15, 6\ns_add_u32 s20, s20, s21\ns_lshl_b32 s20, s20, 13\ns_lshl_b32 s21, s14, 9\ns_add_u32 s20, s20, s21')
    p('s_lshl_b32 s26, s12, 11\ns_mul_i32 s27, s12, 14336\ns_add_u32 s27, s27, 32768')
    if isB: p('s_mul_i32 s22, s14, 229376')
    def nsetup():
        if not isB:
            p(f'v_lshlrev_b32 v6, 4, v5\nv_lshlrev_b32 v7, 2, v4\nv_add3_u32 v6, v6, v7, v3\nv_lshlrev_b32 v6, 13, v6\nv_add_u32 v{vN}, v6, v1\nv_xor_b32 v{vN + 1}, 64, v{vN}')
            p(f'v_lshlrev_b32 v6, 3, v5\nv_add3_u32 v6, v6, v7, v3\nv_lshlrev_b32 v6, 13, v6\nv_add_u32 v{vN + 2}, v6, v1\nv_xor_b32 v{vN + 3}, 64, v{vN + 2}')
            p('s_lshr_b32 s22, s12, 1\ns_mul_i32 s22, s22, 224\ns_and_b32 s25, s12, 1')
            p('s_lshl_b32 s23, s25, 5\ns_add_u32 s23, s23, s22\ns_add_u32 s23, s23, 128')
            p('s_lshl_b32 s24, s25, 1\ns_add_u32 s24, s24, s22\ns_add_u32 s24, s24, 192')
            p('s_lshl_b32 s25, s25, 6\ns_add_u32 s22, s22, s25')
            for r in (22, 23, 24): p(f's_lshl_b32 s{r}, s{r}, 13\ns_add_u32 s{r}, s{r}, s21')
        else:
            p('s_mul_i32 s24, s12, 896\ns_mov_b32 s25, 0x4924925')
            for i in range(14):
                p(f's_add_u32 s23, s24, {64 * i}\nv_add_u32 v6, s23, v0\nv_mul_hi_u32 v7, s25, v6')
                p('v_mul_u32_u24 v8, 56, v7\nv_sub_u32 v6, v6, v8\nv_bfe_u32 v8, v7, 1, 1\nv_bfe_u32 v9, v7, 3, 1\nv_lshlrev_b32 v9, 1, v9\nv_or_b32 v8, v8, v9')
                p(f'v_lshlrev_b32 v8, 1, v8\nv_xor_b32 v6, v6, v8\nv_lshlrev_b32 v6, 4, v6\nv_mul_u32_u24 v7, 896, v7\nv_add_u32 v{vN + i}, v6, v7')

    def qsel(q):
        if cfg.get('qrot', 0): p(f's_add_u32 s29, s15, {q}\ns_and_b32 s29, s29, 3')
        else: p(f's_mov_b32 s29, {q}')
        p(f's_mul_i32 s33, s29, {64 * 896}\ns_lshl_b32 s29, s29, 7')
    def touch():
        if isB:
            p(f's_lshl_b32 s28, s15, 15\ns_add_u32 s28, s28, s22\ns_lshl_b32 s29, s12, 13\ns_add_u32 s28, s28, s29\nv_lshlrev_b32 v6, 7, v0')
        else:
            p(f's_lshl_b32 s28, s15, 19\ns_add_u32 s28, s28, s21\ns_lshl_b32 s29, s12, 17\ns_add_u32 s28, s28, s29')
            p('v_lshrrev_b32 v6, 2, v0\nv_lshlrev_b32 v6, 13, v6\nv_and_b32 v7, 3, v0\nv_lshl_add_u32 v6, v7, 7, v6')
        p(ld('v244', 6, 's28', fl=flN, n=1, srd=R1))
    def issueK():
        for q in range(4):
            qsel(q)
            for ii in range(2):
                p(f's_add_u32 m0, s26, {q * 8192 + ii * 1024}\ns_add_u32 s28, s20, {ii * 16 * 8192}\ns_add_u32 s28, s28, s29')
                p(lddma(vK0 + ii, 's28', fl=flK, srd=R0))
    def issue_groups(q):
        b = (q & 1) * 57344
        sq, sb_ = (29, 33) if q & 1 == 0 else (35, 36)
        pre = []
        if cfg.get('qrot', 0): pre.append(f's_add_u32 s{sq}, s15, {q}\ns_and_b32 s{sq}, s{sq}, 3')
        else: pre.append(f's_mov_b32 s{sq}, {q}')
        pre.append(f's_mul_i32 s{sb_}, s{sq}, {64 * 896}\ns_lshl_b32 s{sq}, s{sq}, 7')
        if isB: pre.append(f's_add_u32 s{sb_}, s22, s{sb_}')
        out = []
        for i in range(14):
            g = pre if i == 0 else []
            g = g + [f's_add_u32 m0, s27, {b + i * 1024}']
            if isB:
                g.append(lddma(vN + i, f's{sb_}', fl=flN, srd=R1))
            else:
                T, ii = i >> 1, i & 1
                if T < 4: sb, rc, va = 22, 8 * (4 * ii + (T >> 1)) + 2 * (T & 1), vN + ii
                elif T < 6: sb, rc, va = 23, 16 * ii + 2 * (T & 1), vN + 2 + ii
                else: sb, rc, va = 24, 16 * ii, vN + 2 + ii
                g.append(f's_add_u32 s28, s{sb}, {rc * 8192}\ns_add_u32 s28, s28, s{sq}')
                g.append(lddma(va, 's28', fl=flN, srd=R1))
            out.append('\n'.join(g))
        return out
    def issue(q):
        for g in issue_groups(q): p(g)
    prof(p, cfg, 9)
    if cfg.get('gtouch', 1): touch()
    issueK(); walk(p, cfg); nsetup(); issue(0); issue(1)
    ni = init_fill(p, vL16, 240)
    prof(p, cfg, 6)
    p('v_and_b32 v1, 15, v0\nv_lshrrev_b32 v2, 4, v0\nv_lshrrev_b32 v3, 1, v1\nv_xor_b32 v3, v3, v2\nv_lshlrev_b32 v3, 4, v3\nv_lshlrev_b32 v4, 7, v1')
    p(f'v_add_u32 v{vKr0}, v3, v4\nv_xor_b32 v{vKr1}, 64, v{vKr0}')
    if not isB:
        p(f'v_add_u32 v{vR}, s27, v{vKr0}\nv_add_u32 v{vR + 1}, s27, v{vKr1}')
        nR = 2
    else:
        p('v_lshrrev_b32 v3, 2, v1\nv_and_b32 v4, 3, v0\nv_lshlrev_b32 v5, 3, v2\nv_add_u32 v5, v5, v3\nv_mul_u32_u24 v5, 896, v5\nv_lshlrev_b32 v4, 3, v4\nv_add_u32 v5, v5, v4')
        p('v_add_u32 v5, 32768, v5\nv_lshrrev_b32 v3, 1, v3\nv_and_b32 v4, 1, v2\nv_lshlrev_b32 v4, 1, v4\nv_or_b32 v3, v3, v4\ns_mul_i32 s23, s12, 7')
        for T in range(7):
            p(f's_add_u32 s24, s23, {T}\nv_xor_b32 v4, s24, v3\nv_lshlrev_b32 v4, 5, v4\nv_add_u32 v{vR + T}, v4, v5')
        nR = 7
    def reads(b, es, q):
        r = [dsr(vr(KF(b, tt), 4), vKr0 + es, 8192 * q + 2048 * tt) for tt in range(4)]
        for T in range(7):
            if isB:
                r += [dstr(vr(NF(b, T) + 2 * hf, 2), vR + T, (32 * es + 4 * hf) * 896) for hf in range(2)]
            else:
                r.append(dsr(vr(NF(b, T), 4), vR + es, 2048 * T))
        return r
    def mfmas(b, first, extra, dma=(), tail=None):
        extra = list(extra); dma = list(dma); k = 0
        for T in range(7):
            tl = tail(T - 2) if (tail and T >= 2) else []
            for tt in range(4):
                c = '0' if first else vr(acc(T, tt), 4)
                p(f'{MF32} {vr(acc(T, tt), 4)}, {vr(KF(b, tt), 4)}, {vr(NF(b, T), 4)}, {c}')
                if extra: p(extra.pop(0))
                if dma and k % 4 == 1: p(dma.pop(0))
                n = -(-len(tl) // (4 - tt))
                for x in tl[:n]: p(x)
                tl = tl[n:]
                k += 1
        assert not extra and not dma
    def epi(T):
        o = 164 + 8 * (T & 1) if False else 120 + 8 * (T & 1)
        out = []
        for tt in range(4):
            a = acc(T, tt)
            if not isB:
                out += [f'v_pk_mul_f32 v[{a}:{a + 1}], v[{a}:{a + 1}], s[24:25]', f'v_pk_mul_f32 v[{a + 2}:{a + 3}], v[{a + 2}:{a + 3}], s[24:25]']
            out += [cvt(o + 2 * tt, a), cvt(o + 2 * tt + 1, a + 2)]
        if isB:
            out.append(f's_add_u32 s24, s23, {T}\ns_lshr_b32 s25, s24, 1\ns_mul_i32 s25, s25, {448 * 1024}\ns_and_b32 s24, s24, 1\ns_mul_i32 s24, s24, 14336\ns_add_u32 s22, s26, s25\ns_add_u32 s22, s22, s24')
        out += [st(vr(o, 4), vL16, 's22', 0, cfg.get('stW', 'sc1'), n=4), st(vr(o + 4, 4), vL16, 's22', 1024, cfg.get('stW', 'sc1'), n=4)]
        if not isB: out.append('s_add_u32 s22, s22, 14336')
        return out
    carry = []
    xp = cfg.get('xpre', 1)
    def sync(q):
        p(f's_waitcnt vmcnt({(14 + ni, 7 + ni, 7, 0)[q] if not xp else (14 + ni, ni, 0, 0)[q]})\ns_barrier')
        if q == 3: ticket(p)
        prof(p, cfg, 11 + q)
    def bump(q):
        for r in [vR + i for i in range(nR)]: p(f'v_add_u32 v{r}, {57344 if q & 1 == 0 else -57344}, v{r}')
    for q in range(4):
        if not xp or q == 0:
            sync(q)
            for x in reads(0, 0, q): p(x)
        p('s_waitcnt lgkmcnt(0)')
        mfmas(0, q == 0, reads(1, 1, q), carry)
        carry = []
        p('s_waitcnt lgkmcnt(0)')
        if xp and q < 3:
            sync(q + 1); bump(q)
            g = issue_groups(q + 2) if q < 2 else []
            carry = g[7:]
            mfmas(1, False, reads(0, 0, q + 1), g[:7])
        elif q < 2:
            p('s_barrier')
            g = issue_groups(q + 2); carry = g[7:]
            mfmas(1, False, [], g[:7])
        elif q == 2:
            mfmas(1, False, [])
        else:
            if not isB:
                p(f's_mov_b32 s24, 0x{0x3db8aa3b:x}\ns_mov_b32 s25, s24')
                p(f's_lshl_b32 s22, s14, 2\ns_add_u32 s22, s22, s12\ns_mul_i32 s22, s22, {98 * 1024}\ns_lshl_b32 s23, s15, 11\ns_add_u32 s22, s22, s23\ns_add_u32 s22, s22, {OFF_A}')
            else:
                p(f's_mul_i32 s26, s14, 28672\ns_lshl_b32 s23, s15, 11\ns_add_u32 s26, s26, s23\ns_add_u32 s26, s26, {OFF_B}\ns_mul_i32 s23, s12, 7')
            mfmas(1, False, [], tail=epi)
            prof(p, cfg, 15)
            for T in (5, 6):
                for x in epi(T): p(x)
        if q < 3 and not xp: bump(q)
    nb = cfg.get('nbcnt', 1)
    p(f's_and_b32 s23, s14, {nb - 1}\ns_add_u32 s23, s23, 16\ns_mov_b32 s24, {112 // nb - 1}' if isB else 's_mov_b32 s23, s14\ns_mov_b32 s24, 6')
```

```python
from common import *

acc = lambda T, tt: 8 + 8 * T + 4 * tt
KF = lambda b, tt: 64 + 36 * b + 4 * tt
NF = lambda b, T: 64 + 36 * b + 8 + 4 * T
vK0, vK1, vKr0, vKr1, vL16 = 140, 141, 142, 143, 144
vN = 146
vR = 154
vO = 164
NB = 32768

def unit_decode(p, u):
    p(f's_mul_i32 s14, {u}, 293\ns_lshr_b32 s14, s14, 12\ns_mul_i32 s15, s14, 14\ns_sub_u32 s17, {u}, s15\ns_lshr_b32 s15, s17, 1\ns_and_b32 s16, s17, 1')

def lane_setup(p):
    p(f'v_lshlrev_b32 v{vL16}, 4, v0')
    p('v_and_b32 v1, 7, v0\nv_lshrrev_b32 v2, 4, v0\nv_xor_b32 v1, v1, v2\nv_lshlrev_b32 v1, 4, v1')
    p('v_bfe_u32 v3, v0, 3, 1\nv_bfe_u32 v4, v0, 4, 1\nv_bfe_u32 v5, v0, 5, 1')
    p(f'v_lshlrev_b32 v6, 3, v4\nv_lshlrev_b32 v7, 2, v5\nv_add3_u32 v6, v6, v7, v3\nv_lshlrev_b32 v6, 13, v6\nv_add_u32 v{vK0}, v6, v1\nv_xor_b32 v{vK1}, 64, v{vK0}')
    p('s_and_b32 s18, s12, 1\ns_lshr_b32 s19, s12, 1\ns_lshl_b32 s26, s12, 11')
    p('v_and_b32 v6, 15, v0\nv_lshrrev_b32 v7, 1, v6\nv_xor_b32 v7, v7, v2\nv_lshlrev_b32 v7, 4, v7\nv_lshl_add_u32 v7, v6, 7, v7')
    p(f's_lshl_b32 s3, s19, 12\nv_add_u32 v{vKr0}, s3, v7\nv_xor_b32 v{vKr1}, 64, v{vKr0}')

def touch(p, isB, fl, dst):
    lab = p.uid('L_tc')
    srd(p, 80, 48 if isB else 44, 448 * 8192); srd(p, 84, 50 if isB else 46, 448 * 8192)
    p('v_lshrrev_b32 v6, 2, v0\nv_lshlrev_b32 v6, 13, v6\nv_and_b32 v7, 3, v0\nv_lshl_add_u32 v6, v7, 7, v6')
    p('s_lshl_b32 s28, s17, 18\ns_lshl_b32 s29, s18, 17\ns_add_u32 s28, s28, s29\ns_lshl_b32 s29, s14, 9\ns_add_u32 s28, s28, s29')
    p(f's_cmp_lg_u32 s19, 0\ns_cbranch_scc1 {lab}_n')
    p(ld(f'v{dst}', 6, 's28', fl=fl, n=1, srd=R0))
    p(f's_branch {lab}\n{lab}_n:')
    if isB:
        p('s_mul_i32 s28, s14, 229376\ns_lshl_b32 s29, s17, 14\ns_add_u32 s28, s28, s29\ns_lshl_b32 s29, s18, 13\ns_add_u32 s28, s28, s29\nv_lshlrev_b32 v6, 7, v0')
    p(ld(f'v{dst}', 6, 's28', fl=fl, n=1, srd=R1))
    p(f'{lab}:')

def issue_all(p, isB, cfg, between=None, after0=None, after1=None):
    flK = cfg.get('flK', ''); flN = cfg.get('flN', '')
    srd(p, 80, 48 if isB else 44, 448 * 8192); srd(p, 84, 50 if isB else 46, 448 * 8192)
    p('s_lshl_b32 s20, s19, 5\ns_lshl_b32 s21, s18, 1\ns_add_u32 s20, s20, s21')
    p('s_lshl_b32 s21, s15, 6\ns_add_u32 s20, s20, s21\ns_lshl_b32 s20, s20, 13\ns_lshl_b32 s21, s14, 9\ns_add_u32 s20, s20, s21')
    def kq(q):
        for ii in range(2):
            p(f's_add_u32 m0, s26, {q * 8192 + ii * 1024}\ns_add_u32 s28, s20, {ii * 16 * 8192 + q * 128}')
            p(lddma(vK0 + ii, 's28', fl=flK, srd=R0))
    kq(0)
    if between: between()
    if isB:
        p(f's_mul_i32 s27, s12, 7168\ns_add_u32 s27, s27, {NB}\ns_mul_i32 s24, s12, 448\ns_mov_b32 s25, 0x924924a')
        for j in range(7):
            p(f's_add_u32 s23, s24, {64 * j}\nv_add_u32 v6, s23, v0\nv_mul_hi_u32 v7, s25, v6\nv_mul_u32_u24 v8, 28, v7\nv_sub_u32 v6, v6, v8')
            p(f'v_bfe_u32 v8, v7, 3, 1\nv_lshlrev_b32 v8, 1, v8\nv_xor_b32 v6, v6, v8\nv_lshlrev_b32 v6, 4, v6\nv_mul_u32_u24 v7, 896, v7\nv_add_u32 v{vN + j}, v6, v7')
        p('s_mul_i32 s22, s14, 229376\ns_mul_i32 s23, s16, 448\ns_add_u32 s22, s22, s23')
        qs = 64 * 896
    else:
        p(f's_mul_i32 s27, s18, 14336\ns_mul_i32 s23, s19, 7168\ns_add_u32 s27, s27, s23\ns_add_u32 s27, s27, {NB}')
        p('v_lshlrev_b32 v7, 2, v4\nv_lshlrev_b32 v6, 4, v5\nv_add3_u32 v8, v6, v7, v3\nv_lshlrev_b32 v6, 3, v5\nv_add3_u32 v9, v6, v7, v3\nv_xor_b32 v10, 64, v1')
        p('s_mul_i32 s22, s16, 224\ns_lshl_b32 s23, s18, 5\ns_add_u32 s23, s23, s22\ns_add_u32 s23, s23, 128')
        p('s_lshl_b32 s24, s18, 1\ns_add_u32 s24, s24, s22\ns_add_u32 s24, s24, 192\ns_lshl_b32 s25, s18, 6\ns_add_u32 s22, s22, s25')
        lab = p.uid('L_kh')
        p(f's_cmp_lg_u32 s19, 0\ns_cbranch_scc1 {lab}_1')
        for kh in range(2):
            if kh: p(f's_branch {lab}\n{lab}_1:')
            for j in range(7):
                i = 7 * kh + j; T, ii = i >> 1, i & 1
                if T < 4: sb, rc, lp = 22, 8 * (4 * ii + (T >> 1)) + 2 * (T & 1), 8
                elif T < 6: sb, rc, lp = 23, 16 * ii + 2 * (T & 1), 9
                else: sb, rc, lp = 24, 16 * ii, 9
                p(f's_add_u32 s25, s{sb}, {rc}\nv_add_u32 v6, s25, v{lp}\nv_lshl_add_u32 v{vN + j}, v6, 13, v{10 if ii else 1}')
        p(f'{lab}:\ns_mov_b32 s22, s21')
        qs = 128
    for q in range(4):
        if q: kq(q)
        p(f's_add_u32 s28, s22, {q * qs}')
        for j in range(7):
            p(f's_add_u32 m0, s27, {q * 28672 + j * 1024}')
            p(lddma(vN + j, 's28', fl=flN, srd=R1))
        if q == 0 and after0: after0()
        if q == 1 and after1: after1()

def compute(p, isB, cfg, extra_ops, hooks):
    if isB:
        p('v_and_b32 v6, 15, v0\nv_lshrrev_b32 v7, 2, v6\nv_lshl_add_u32 v7, v2, 3, v7\nv_mul_u32_u24 v7, 448, v7\nv_and_b32 v6, 3, v0\nv_lshl_add_u32 v7, v6, 3, v7')
        p(f'v_add_u32 v7, {NB}, v7\nv_and_b32 v6, 1, v2\ns_mul_i32 s23, s18, 7')
        for T in range(7):
            p(f's_add_u32 s24, s23, {T}\nv_xor_b32 v8, s24, v6\nv_lshl_add_u32 v{vR + T}, v8, 5, v7')
        nR = 7
    else:
        p(f's_mul_i32 s23, s18, 14336\ns_lshl_b32 s24, s19, 12\ns_sub_u32 s23, s23, s24\ns_add_u32 s23, s23, {NB}\nv_add_u32 v{vR}, s23, v{vKr0}\nv_add_u32 v{vR + 1}, s23, v{vKr1}')
        nR = 2
    def reads(b, es, q):
        r = [dsr(vr(KF(b, tt), 4), vKr0 + es, 8192 * q + 2048 * tt) for tt in range(2)]
        for T in range(7):
            if isB: r += [dstr(vr(NF(b, T) + 2 * hf, 2), vR + T, (32 * es + 4 * hf) * 448) for hf in range(2)]
            else: r.append(dsr(vr(NF(b, T), 4), vR + es, 2048 * T))
        return r
    def epi(T):
        o = vO + 4 * (T & 1); out = []
        for tt in range(2):
            a = acc(T, tt)
            if not isB: out += [f'v_pk_mul_f32 v[{a}:{a + 1}], v[{a}:{a + 1}], s[24:25]', f'v_pk_mul_f32 v[{a + 2}:{a + 3}], v[{a + 2}:{a + 3}], s[24:25]']
            out += [cvt(o + 2 * tt, a), cvt(o + 2 * tt + 1, a + 2)]
        if isB:
            out.append(f's_add_u32 s24, s23, {T}\ns_lshr_b32 s25, s24, 1\ns_mul_i32 s25, s25, {448 * 1024}\ns_and_b32 s24, s24, 1\ns_mul_i32 s24, s24, 14336\ns_add_u32 s22, s29, s25\ns_add_u32 s22, s22, s24')
        out.append(st(vr(o, 4), vL16, 's22', 0, 'sc1', n=4))
        if not isB: out.append('s_add_u32 s22, s22, 14336')
        return out
    def mfmas(b, first, extra, tail=None):
        extra = list(extra)
        for T in range(7):
            tl = tail(T - 3) if (tail and T >= 3) else []
            for tt in range(2):
                c = '0' if first else vr(acc(T, tt), 4)
                p(f'{MF32} {vr(acc(T, tt), 4)}, {vr(KF(b, tt), 4)}, {vr(NF(b, T), 4)}, {c}')
                for _ in range(2):
                    if extra: p(extra.pop(0))
                n = -(-len(tl) // (2 - tt))
                for x in tl[:n]: p(x)
                tl = tl[n:]
        assert not extra
    def sync(q):
        p(f's_waitcnt vmcnt({9 * (3 - q) + extra_ops})\ns_barrier')
        if hooks.get(q): hooks[q]()
    sync(0)
    for x in reads(0, 0, 0): p(x)
    for q in range(4):
        p('s_waitcnt lgkmcnt(0)')
        mfmas(0, q == 0, reads(1, 1, q))
        p('s_waitcnt lgkmcnt(0)')
        if q < 3:
            sync(q + 1)
            for r in range(vR, vR + nR): p(f'v_add_u32 v{r}, 28672, v{r}')
            mfmas(1, False, reads(0, 0, q + 1))
        else:
            p('s_barrier')
            if not isB:
                p(f's_mov_b32 s24, 0x{0x3db8aa3b:x}\ns_mov_b32 s25, s24')
                p(f's_lshl_b32 s22, s14, 2\ns_lshl_b32 s23, s16, 1\ns_add_u32 s22, s22, s23\ns_add_u32 s22, s22, s18\ns_mul_i32 s22, s22, {98 * 1024}')
                p(f's_lshl_b32 s23, s15, 11\ns_add_u32 s22, s22, s23\ns_lshl_b32 s23, s19, 10\ns_add_u32 s22, s22, s23\ns_add_u32 s22, s22, {OFF_A}')
            else:
                p(f's_mul_i32 s29, s14, 28672\ns_lshl_b32 s23, s15, 11\ns_add_u32 s29, s29, s23\ns_lshl_b32 s23, s19, 10\ns_add_u32 s29, s29, s23\ns_add_u32 s29, s29, {OFF_B}')
                p('s_mul_i32 s23, s16, 14\ns_mul_i32 s24, s18, 7\ns_add_u32 s23, s23, s24')
            mfmas(1, False, [], tail=epi)
            for T in (4, 5, 6):
                for x in epi(T): p(x)

def arrive(p, cnt, vdst):
    lab = p.uid('L_ar')
    p(f's_cmp_lg_u32 s12, 0\ns_cbranch_scc1 {lab}\ns_mov_b64 exec, 1\nv_cmp_lt_u32 vcc, 0xffff, v255\ns_cbranch_vccnz {lab}_ok\ns_mov_b32 s31, 0')
    p(f'{lab}_w:\nv_mov_b32 v252, 0\nv_mov_b32 v253, 0\nbuffer_atomic_add v253, v252, {DBG}, 0 offen sc0')
    p(f's_add_u32 s31, s31, 1\ns_cmp_gt_u32 s31, {TMO}\ns_cbranch_scc1 {FAIL}\ns_waitcnt vmcnt(0)\nv_cmp_lt_u32 vcc, 0xffff, v253\ns_cbranch_vccz {lab}_w\nv_and_b32 v253, 0xffff0000, v253\nv_or_b32 v255, v255, v253')
    p(f'{lab}_ok:\ns_lshl_b32 s36, {cnt}, 7\ns_add_u32 s36, s36, {OFF_CNT}\nv_mov_b32 v252, 0\nv_mov_b32 v{vdst}, 1')
    p(f'buffer_atomic_add v{vdst}, v252, {WS}, s36 offen sc0\ns_mov_b64 exec, -1\n{lab}:')

def raise_flag(p, last, vdst):
    lab = p.uid('L_rf')
    p(f's_cmp_lg_u32 s12, 0\ns_cbranch_scc1 {lab}\ns_mov_b64 exec, 1\nv_cmp_ne_u32 vcc, {last}, v{vdst}\ns_cbranch_vccnz {lab}_n')
    p(f's_add_u32 s36, s36, 8192\nv_mov_b32 v252, 0\nbuffer_store_dword v{vdst}, v252, {WS}, s36 offen sc1\n{lab}_n:\ns_mov_b64 exec, -1\n{lab}:')

def gen(p, cfg):
    p('s_mov_b32 s34, s13')
    unit_decode(p, 's34')
    lane_setup(p)
    fl = cfg.get('flN', '')
    skipmask = cfg.get('skipmask', 0b00111101)
    p(f's_lshr_b32 s39, {skipmask}, s35\ns_and_b32 s39, s39, 1\ns_cmp_ge_u32 s38, 16\ns_cselect_b32 s39, s39, 0')
    p(f's_lshr_b32 s3, {skipmask}, s35\ns_and_b32 s3, s3, 1\ns_cmp_lt_u32 s38, 12\ns_cselect_b32 s3, s3, 0')
    p('s_add_u32 s37, s34, 16\ns_cmp_lg_u32 s3, 0\ns_cselect_b32 s37, s37, -1')
    touch(p, True, fl, 172)
    issue_all(p, True, cfg, between=lambda: walk(p, cfg))
    lab = p.uid('L_p2')
    touch(p, False, fl, 173)
    ni = init_fill(p, vL16, 176)
    prof(p, cfg, 6)
    compute(p, True, cfg, ni + 1, {0: lambda: prof(p, cfg, 11), 2: lambda: ticket(p)})
    prof(p, cfg, 12)
    p(f's_add_u32 s23, s14, 16\ns_mov_b32 s24, 13\ns_cmp_lg_u32 s39, 0\ns_cbranch_scc1 L_prepdone')
    p('s_mov_b32 s33, s23')
    p(f'{lab}:')
    def a0():
        p('s_waitcnt vmcnt(9)\ns_barrier')
        prof(p, cfg, 13)
        arrive(p, 's33', 251)
    def a1():
        p('s_waitcnt vmcnt(9)')
        raise_flag(p, 13, 251)
        prof(p, cfg, 14)
    issue_all(p, False, cfg, after0=a0, after1=a1)
    compute(p, False, cfg, 0, {})
    prof(p, cfg, 15)
    p(f's_mov_b32 s23, s14\ns_mov_b32 s24, 13\ns_cmp_eq_u32 s37, -1\ns_cbranch_scc1 L_prepdone')
    p('s_mov_b32 s33, s14\ns_mov_b32 s34, s37\ns_mov_b32 s37, -1')
    unit_decode(p, 's34')
    p(f's_branch {lab}')
```

```python
from common import *
import layout as L

def fast_poll(p, loads, chk, tmp, depth, space, spec, undo, switch, early=None, ci=None, behind=None):
    lab = p.uid('L_fp')
    assert not early or depth == 1
    p('s_mov_b32 s31, 0')
    for d in range(depth - 1):
        for l in loads: p(l)
        if space: p(f's_sleep {space}')
    for l in loads: p(l)
    if behind:
        assert depth == 1 and not early
        for l in behind: p(l)
        p(f's_waitcnt vmcnt({len(behind)})\ns_branch {lab}_c')
    p(f'{lab}_w:')
    ci = ci or chk_instrs(chk, tmp)
    if early:
        for x in early:
            p(x)
            if x.startswith('v_smf') and ci: p(ci.pop(0))
    else:
        p(f's_waitcnt vmcnt({len(loads) * (depth - 1)})')
    if behind: p(f'{lab}_c:')
    for x in ci: p(x)
    for x in spec: p(x)
    p(f's_cbranch_vccnz {lab}')
    def tail():
        p(f'{lab}:')
        p(f's_add_u32 s31, s31, 1\ns_cmp_ge_u32 s31, 48\ns_cbranch_scc1 {lab}_sw')
        p(f'{lab}_r:')
        for l in loads: p(l)
        for l in undo: p(l)
        p(f's_branch {lab}_w')
        p(f'{lab}_sw:')
        p(f's_cmp_gt_u32 s31, {TMO}\ns_cbranch_scc1 {FAIL}\ns_cmp_lg_u32 s31, 48\ns_cbranch_scc1 {lab}_r')
        p('s_waitcnt vmcnt(0)')
        for x in switch: p(x)
        for d in range(depth - 1):
            for l in loads: p(l)
        p(f's_branch {lab}_r')
    return tail

def quick_poll(p, loads, chk, tmp, depth, space, shadow, switch, unroll=4, gap=0):
    lab = p.uid('L_qp')
    p('s_mov_b32 s31, 0')
    for d in range(depth - 1):
        for l in loads: p(l)
        for q in range(0, space, 16): p(f's_nop {min(16, space - q) - 1}')
    p(f'{lab}:')
    for u in range(unroll):
        for l in loads: p(l)
        p(f's_waitcnt vmcnt({len(loads) * (depth - 1)})')
        for x in chk_instrs(chk, tmp): p(x)
        for x in shadow: p(x)
        p(f's_cbranch_vccz {lab}_go')
        if gap: p(f's_nop {gap - 1}')
    p(f's_add_u32 s31, s31, 1\ns_cmp_lt_u32 s31, 16\ns_cbranch_scc1 {lab}')
    p(f's_cmp_gt_u32 s31, {TMO}\ns_cbranch_scc1 {FAIL}\ns_cmp_lg_u32 s31, 16\ns_cbranch_scc1 {lab}')
    p('s_waitcnt vmcnt(0)')
    for x in switch: p(x)
    for d in range(depth - 1):
        for l in loads: p(l)
    p(f's_branch {lab}\n{lab}_go:')
    return lambda: None

def quick_poll2(p, loads, chk, tmp, depth, space, shadow, switch):
    lab = p.uid('L_q2')
    p('s_mov_b32 s31, 0')
    for d in range(depth - 1):
        for l in loads: p(l)
        for q in range(0, space, 16): p(f's_nop {min(16, space - q) - 1}')
    for l in loads: p(l)
    p(f'{lab}_w:\ns_waitcnt vmcnt({len(loads) * (depth - 1)})')
    for x in chk_instrs(chk, tmp): p(x)
    for x in shadow: p(x)
    p(f's_cbranch_vccnz {lab}')
    def tail():
        p(f'{lab}:')
        for l in loads: p(l)
        p(f's_add_u32 s31, s31, 1\ns_cmp_lt_u32 s31, 64\ns_cbranch_scc1 {lab}_w')
        p(f's_cmp_gt_u32 s31, {TMO}\ns_cbranch_scc1 {FAIL}\ns_cmp_lg_u32 s31, 64\ns_cbranch_scc1 {lab}_w')
        p('s_waitcnt vmcnt(0)')
        for x in switch: p(x)
        for d in range(depth):
            for l in loads: p(l)
        p(f's_branch {lab}_w')
    return tail

def hint_wait(p, reg, va, so, cfg, delay, w):
    lab = p.uid('L_hw')
    if w == cfg.get('hwave', 3):
        D = cfg.get('hdepth', 4)
        l = ld(f'v{reg}', va, so, n=1)
        p('s_mov_b32 s38, 0')
        for d in range(D - 1): p(l + f'\ns_nop {cfg.get("hgap", 7)}')
        p(f'{lab}:')
        for u in range(3):
            p(f'{l}\ns_waitcnt vmcnt({D - 1})\nv_cmp_eq_u32 vcc, -1, v{reg}\ns_cbranch_vccz {lab}_go')
        p(f's_add_u32 s38, s38, 1\ns_cmp_lt_u32 s38, 64\ns_cbranch_scc1 {lab}')
        p(f'{lab}_go:')
        while delay > 0:
            q = min(delay, 16); p(f's_nop {q - 1}'); delay -= q
    p('s_barrier')

def load_A_weights(p, vL16, rot):
    def Wh(i, q): return ar(8 * i + 4 * q, 4) if i < 32 else vr(120 + 8 * (i - 32) + 4 * q, 4)
    for T in range(7):
        for sg in range(7):
            i = T * 7 + sg; o = (T * 7 + rot(sg)) * 2048
            p(f's_add_u32 s14, s13, {o}')
            p(ld(Wh(i, 0), vL16, 's14')); p(ld(Wh(i, 1), vL16, 's14', 1024))

def load_B_weights(p, vL16, rot, lds_base, note=None):
    def Wh(i, q): return ar(8 * i + 4 * q, 4) if i < 32 else vr(176 + 8 * (i - 32) + 4 * q, 4)
    for hn in range(6):
        for sg in range(7):
            i = hn * 7 + sg; o = (hn * 7 + rot(sg)) * 2048
            p(f's_add_u32 s14, s13, {o}')
            p(ld(Wh(i, 0), vL16, 's14')); p(ld(Wh(i, 1), vL16, 's14', 1024))
    for k in range(7):
        if note and k == note[0]: note[1]()
        p(f's_add_u32 m0, {lds_base}, {k * 4096}\ns_add_u32 s14, s13, {84 * 1024 + k * 4096}')
        for j in range(4): p(lddma(vL16, 's14', j * 1024))

def idx_reg(p, IDX):
    p(f'v_bfe_u32 v5, v0, 1, 1\nv_mov_b32 v6, 0x4444\nv_mov_b32 v7, 0xeeee\nv_cmp_eq_u32 vcc, 1, v5\nv_cndmask_b32 v{IDX}, v6, v7, vcc')

def gen_A(p, w, cfg):
    LM, LT, LMm, LX = 0, 7168, 11264, 13312
    mA = lambda sg: 8 + 4 * sg
    acc = lambda T: 36 + 4 * T
    Sa = lambda t: 64 + 4 * t
    Hh = lambda t: 76 + 8 * t
    SEL2, SEL1, IDX = 100, 104, 106
    vL16, vH1, vH2, vSadd, vSrd, vPt, vX1, vT0, vT1, vMadd, vX2, vMrd, vNI = range(107, 120)
    def W(T, sg):
        i = T * 7 + sg
        return ar(8 * i, 8) if i < 32 else vr(120 + 8 * (i - 32), 8)
    P_, b = w >> 1, w & 1
    rot = lambda sg: L.slot_chunk(w, sg)
    p(f'v_lshlrev_b32 v{vL16}, 4, v0')
    p(f's_mul_i32 s13, s11, {4 * 98 * 1024}\ns_add_u32 s13, s13, {OFF_A + w * 98 * 1024}')
    load_A_weights(p, vL16, rot)
    p(f'v_lshrrev_b32 v1, 4, v0\nv_and_b32 v2, 15, v0\nv_and_b32 v3, 7, v0')
    idx_reg(p, IDX)
    p(f'v_mov_b32 v6, 0x3f80\nv_mov_b32 v7, 0x3f800000\nv_and_b32 v4, 1, v0\nv_cmp_eq_u32 vcc, 1, v4\nv_cndmask_b32 v6, v6, v7, vcc')
    p(f'v_lshrrev_b32 v4, 2, v2\nv_cmp_eq_u32 vcc, v4, v1\nv_cndmask_b32 v6, 0, v6, vcc')
    for hh in range(2):
        p(f'v_cmp_eq_u32 vcc, {hh}, v5')
        for q2 in range(2): p(f'v_cndmask_b32 v{SEL2 + 2 * hh + q2}, 0, v6, vcc')
    for q2 in range(2): p(f'v_mov_b32 v{SEL1 + q2}, v{SEL2 + 2 * b + q2}')
    p(f'v_add_u32 v4, {28 * P_ + 8 * b}, v1')
    p(f'v_and_b32 v5, 1, v1\nv_mul_u32_u24 v5, {24 - 16 - 4 * b}, v5\nv_lshrrev_b32 v7, 1, v1\nv_add_u32 v5, v5, v7\nv_add_u32 v5, {28 * P_ + 16 + 4 * b}, v5')
    emit_maddr(p, vH1, 4, 3, 6, 7); emit_maddr(p, vH2, 5, 3, 6, 7)
    p(f'v_lshlrev_b32 v6, 4, v2\nv_add_u32 v6, {LX}, v6\nv_lshl_add_u32 v{vX1}, v4, 9, v6\nv_lshl_add_u32 v{vX2}, v5, 9, v6')
    p(f'v_and_b32 v4, 1, v1\nv_lshrrev_b32 v5, 1, v1')
    p(f'v_lshlrev_b32 v7, 8, v1\nv_lshlrev_b32 v3, 3, v2\nv_add_u32 v7, v7, v3\nv_add_u32 v{vSadd}, {LT + w * 1024}, v7')
    p(f'v_lshlrev_b32 v7, 7, v4\nv_add_u32 v7, v7, v3\nv_add_u32 v{vSrd}, {LT + 2 * w * 128}, v7')
    p(f'v_lshlrev_b32 v7, 7, v1\nv_lshlrev_b32 v3, 2, v2\nv_add_u32 v7, v7, v3\nv_add_u32 v{vMadd}, {LMm + w * 512}, v7')
    p(f'v_lshlrev_b32 v7, 6, v4\nv_add_u32 v7, v7, v3\nv_add_u32 v{vMrd}, {LMm + 2 * w * 64}, v7')
    p(f's_lshl_b32 s13, s11, 10\ns_add_u32 s13, s13, {w * 256}')
    p(f'v_lshrrev_b32 v6, 2, v2\nv_lshlrev_b32 v6, 5, v6\nv_lshl_add_u32 v6, v4, 4, v6')
    p(f'v_and_b32 v7, 3, v2\nv_lshl_add_u32 v6, v7, 2, v6\nv_add_u32 v{vPt}, s13, v6')
    p(f's_add_u32 s13, s13, 128\nv_bfe_u32 v6, v2, 2, 1\nv_lshlrev_b32 v6, 4, v6\nv_lshl_add_u32 v6, v4, 3, v6\nv_bfe_u32 v7, v2, 1, 1\nv_lshl_add_u32 v6, v7, 2, v6\nv_add_u32 v6, s13, v6')
    if cfg.get('pfill', 1):
        p(f'v_and_b32 v3, 1, v2\nv_lshrrev_b32 v7, 3, v2\nv_lshl_add_u32 v3, v7, 1, v3\nv_lshl_add_u32 v6, v3, 5, v6\nv_mov_b32 v7, 0x7ffffff0')
    else:
        p(f'v_and_b32 v3, 9, v2\nv_mov_b32 v7, 0x7ffffff0\nv_cmp_eq_u32 vcc, 0, v3\nv_cndmask_b32 v6, v7, v6, vcc')
    p(f'v_cmp_eq_u32 vcc, 1, v5\nv_cndmask_b32 v{vPt}, v{vPt}, v6, vcc')
    p(f's_lshl_b32 s13, s11, 2\nv_mov_b32 v5, s13\nv_cmp_eq_u32 vcc, 0, v0\nv_cndmask_b32 v5, v7, v5, vcc')
    p(f'v_min_u32 v4, 13, v2\nv_lshlrev_b32 v4, 2, v4\nv_lshrrev_b32 v1, 4, v0\nv_lshl_add_u32 v4, v1, 7, v4\nv_mov_b32 v1, 0\nv_mov_b32 v3, 0\ns_mov_b32 s23, 0x7ffffff0')
    two = cfg.get('sm2', 0)
    if two:
        p(f'v_lshrrev_b32 v1, 4, v0\nv_lshlrev_b32 v7, 7, v1\nv_lshlrev_b32 v6, 3, v2\nv_add_u32 v7, v7, v6\nv_add_u32 v{vSrd}, {LT + (w & 1) * 512}, v7')
        p(f'v_lshlrev_b32 v7, 6, v1\nv_lshlrev_b32 v6, 2, v2\nv_add_u32 v7, v7, v6\nv_add_u32 v{vMrd}, {LMm + (w & 1) * 256}, v7')
        p(f's_lshl_b32 s13, s11, 10\ns_add_u32 s13, s13, {(w & 1) * 512}\nv_lshrrev_b32 v4, 1, v1\nv_lshlrev_b32 v4, 8, v4\nv_add_u32 v4, s13, v4\nv_and_b32 v1, 1, v1')
        p(f'v_lshrrev_b32 v6, 2, v2\nv_lshl_add_u32 v6, v6, 5, v4\nv_lshl_add_u32 v6, v1, 4, v6\nv_and_b32 v7, 3, v2\nv_lshl_add_u32 v{vPt}, v7, 2, v6')
        p(f'v_bfe_u32 v6, v2, 2, 1\nv_lshl_add_u32 v6, v6, 4, v4\nv_lshl_add_u32 v6, v1, 3, v6\nv_bfe_u32 v7, v2, 1, 1\nv_lshl_add_u32 v6, v7, 2, v6')
        p(f'v_and_b32 v7, 1, v2\nv_lshrrev_b32 v1, 3, v2\nv_lshl_add_u32 v7, v1, 1, v7\nv_lshl_add_u32 v6, v7, 5, v6\nv_add_u32 v5, 128, v6\nv_mov_b32 v1, 0\nv_mov_b32 v2, 0')
    if two and cfg.get('pc', 0):
        p(f'v_and_b32 v2, 15, v0\nv_lshrrev_b32 v1, 4, v0\nv_lshrrev_b32 v4, 1, v1\nv_and_b32 v1, 1, v1')
        p(f's_lshl_b32 s13, s11, 9\ns_add_u32 s13, s13, {(w & 1) * 256}\nv_lshlrev_b32 v6, 7, v4\nv_add_u32 v6, s13, v6')
        p(f'v_lshrrev_b32 v7, 2, v2\nv_lshl_add_u32 v6, v7, 5, v6\nv_lshl_add_u32 v6, v1, 4, v6\nv_and_b32 v7, 3, v2\nv_lshl_add_u32 v{vPt}, v7, 2, v6')
        p(f's_lshl_b32 s13, s11, 7\ns_add_u32 s13, s13, {8192 + (w & 1) * 64}\nv_lshlrev_b32 v6, 5, v4\nv_add_u32 v6, s13, v6')
        p(f'v_bfe_u32 v7, v2, 2, 1\nv_lshl_add_u32 v6, v7, 4, v6\nv_lshl_add_u32 v6, v1, 3, v6\nv_bfe_u32 v7, v2, 1, 1\nv_lshl_add_u32 v6, v7, 2, v6')
        p(f'v_and_b32 v7, 9, v2\nv_cmp_eq_u32 vcc, 0, v7\nv_mov_b32 v7, 0x7ffffff0\nv_cndmask_b32 v5, v7, v6, vcc\nv_mov_b32 v1, 0\nv_mov_b32 v2, 0')
    ax = cfg.get('ax', 0) and two
    if ax:
        p(f'v_lshlrev_b32 v7, 3, v0\nv_add_u32 v{vSadd}, {LT + w * 512}, v7')
        p(f'v_lshrrev_b32 v7, 5, v0\nv_lshlrev_b32 v7, 7, v7\nv_and_b32 v6, 15, v0\nv_lshl_add_u32 v7, v6, 3, v7\nv_bfe_u32 v6, v0, 4, 1\nv_lshl_add_u32 v7, v6, 2, v7')
        p(f'v_add_u32 v{vSrd}, {LT + (w & 1) * 256}, v7')
    p(f'v_mov_b32 v{vNI}, 0xff800000')
    p('s_mov_b32 s16, 0xff00ff00\ns_mov_b32 s17, 0xff00ff00')
    p('s_mov_b32 s18, 0\ns_mov_b32 s19, -1\ns_mov_b32 s35, 0x42800000\ns_mov_b32 s34, 0xfffffffe')
    t0, t1 = rot(0), rot(1)
    p(f's_mov_b32 s25, {OFF_MF}\ns_mov_b32 s26, {OFF_MS0}\ns_mov_b32 s22, {OFF_PF}\ns_mov_b32 s24, {OFF_XN + w * 7168}')
    def xgroups(sbuf):
        g = []
        for k in range(7):
            cur = []
            if (k & 3) == 0: cur.append(f's_add_u32 m0, {sbuf}, {LX + w * 7168 + (k >> 2) * 4096}')
            cur.append(lddma(vL16, 's24', (k & 3) * 1024))
            if k == 3: cur.append('s_add_u32 s24, s24, 4096')
            if k == 6: cur.append(f's_add_u32 s24, s24, {28672 - 4096}')
            g.append(cur)
        return g
    wait_go(p, 3 if cfg.get('prep2', 1) else 7, 4, 36)
    p('s_mov_b32 s32, 0\ns_mov_b32 s33, 28672')
    for g_ in xgroups('s32'):
        for x in g_: p(x)
    for r in range(36, 76): p(f'v_mov_b32 v{r}, 0')
    p('s_mov_b32 s30, 0\ns_waitcnt vmcnt(0) lgkmcnt(0)\ns_barrier')
    prof(p, cfg, 3)
    rstamp_cal(p, cfg, 0)
    loop = p.uid('L_Aloop')
    p(f'{loop}:')
    p(f's_add_u32 s20, s25, {t0 * 1024}\ns_add_u32 s21, s25, {t1 * 1024}')
    hint = cfg.get('hint', 1)
    if cfg.get('a_delay'): p(f's_sleep {cfg["a_delay"]}')
    if cfg.get('a_fine'): p(f's_nop {cfg["a_fine"] - 1}')
    if hint:
        p(f's_add_u32 s27, s25, {EM_OFF}')
        hint_wait(p, 6, 4, 's27', cfg, cfg.get('ah_delay', 0), w)
    chk = [mA(0) + i for i in range(8)]
    def qs(T, sg): return f'{SMF} {vr(acc(T), 4)}, {vr(mA(sg), 4)}, {W(T, sg)}, v{IDX}'
    seq = [(T, 0) for T in range(7)] + [(T, 1) for T in range(7)]
    wr = [dsw(vL16, vr(mA(0), 4), LM + t0 * 1024)]
    if w != 3: wr.append(dsw(vL16, vr(mA(1), 4), LM + t1 * 1024))
    loads = [ld(vr(mA(0), 4), vL16, 's20'), ld(vr(mA(1), 4), vL16, 's21')]
    npre = cfg.get('npre', 7); wpos = cfg.get('wpos', 2)
    pstore = st('v3', vPt, 's23', 0, 'sc1')
    if two: pstore = (pstore + '\n' + st('v2', 5, 's23', 0, 'sc1')) if w < 2 else 's_nop 0'
    sw = [pstore, f's_add_u32 s20, s26, {t0 * 1024}', f's_add_u32 s21, s26, {t1 * 1024}']
    if cfg.get('quick', 1):
        one = w == 3 and cfg.get('w3one', 1)
        if one: loads = loads[:1]
        ck = [mA(0) + 3] if one else [mA(0) + 3, mA(1) + 3]
        if cfg.get('quick', 1) == 2:
            tailA = quick_poll2(p, loads, ck, vT0, cfg.get('depth', 2), cfg.get('qspace', 24), wr[:cfg.get('ashadow', 1)], sw)
        else:
            tailA = quick_poll(p, loads, ck, vT0, cfg.get('depth', 2), cfg.get('qspace', 24), wr[:cfg.get('ashadow', 1)], sw, gap=cfg.get('agap', 0))
        rstamp(p, cfg, 0)
        rest_w = wr[cfg.get('ashadow', 1):]
        for i, a in enumerate(seq[:npre]):
            p(qs(*a))
            if rest_w and i in (0 if len(rest_w) == 2 else -1, wpos): p(rest_w.pop(0))
            if i == cfg.get('pspos', 4): p(pstore)
        assert not rest_w
    elif cfg.get('early', 1):
        ea = ['s_waitcnt vmcnt(1)', qs(*seq[0]), wr[0], 's_waitcnt vmcnt(0)', qs(*seq[1]), qs(*seq[2])] + wr[1:] + [qs(*seq[3]), qs(*seq[4])]
        tailA = fast_poll(p, loads, chk, vT0, 1, 0, [qs(*seq[5])], [f'v_mov_b32 v{r}, 0' for r in range(36, 60)], sw, early=ea)
        rstamp(p, cfg, 0)
        for a in seq[6:npre]: p(qs(*a))
    else:
        tailA = fast_poll(p, loads, chk, vT0, cfg.get('depth', 2), cfg.get('space', 2), [qs(*seq[0]), wr[0]],
                          [f'v_mov_b32 v{r}, 0' for r in range(36, 40)], sw)
        rstamp(p, cfg, 0)
        for i, a in enumerate(seq[1:npre]):
            p(qs(*a))
            if i == wpos - 1 and len(wr) > 1: p(wr[1])
    p('s_waitcnt lgkmcnt(0)\ns_barrier')
    rstamp(p, cfg, 1)
    def hreads(blk):
        r = []
        va, st_ = (vH1, 512) if blk == 0 else (vH2, 256)
        vx = vX1 if blk == 0 else vX2
        for p3 in range(2): r.append(dsr(vr(Hh(0) + 4 * p3, 4), va, LM + p3 * st_))
        for tile in range(2):
            for p3 in range(2): r.append(dsr(vr(Hh(1 + tile) + 4 * p3, 4), vx, p3 * st_ * 4 + tile * 256))
        return r
    if w == 3 and cfg.get('quick', 1) and cfg.get('w3one', 1):
        assert npre == 7
        mr = [dsr(vr(mA(sg), 4), vL16, LM + rot(sg) * 1024) for sg in range(1, 7)]
        for x in mr: p(x)
        p('s_waitcnt lgkmcnt(5)')
        for a in seq[npre:]: p(qs(*a))
    else:
        mr = [dsr(vr(mA(sg), 4), vL16, LM + rot(sg) * 1024) for sg in range(2, 7)]
        p(mr[0]); p(mr[1])
        mi = 2
        for a in seq[npre:]:
            p(qs(*a))
            if mi < 5: p(mr[mi]); mi += 1
        for x in mr[mi:]: p(x)
    fine = cfg.get('finew', 1) and not (cfg.get('rprof') and 1 in cfg.get('stamps', range(6)))
    if not fine: p('s_waitcnt lgkmcnt(0)')
    def cvt_pair(T):
        a = acc(T); return [cvt(a, a), cvt(a + 1, a + 2), cvt(a + 2, a + 4), cvt(a + 3, a + 6)]
    def tr_pair(T): return f'{MF32} {vr(acc(T + 1), 4)}, {vr(acc(T), 4)}, {vr(SEL2, 4)}, 0'
    def cvt_D(src, dst): return [cvt(dst, src), cvt(dst + 1, src + 2)]
    A2 = [acc(0), acc(4)]
    def sm(blk, t): return f'{SMF} {vr(Sa(t), 4)}, {vr(A2[blk], 4)}, {vr(Hh(t), 8)}, v{IDX}'
    fill = {k: [] for k in range(36)}
    if not cfg.get('xskip'):
        x0, xs = cfg.get('x0', 0), cfg.get('xs', 4)
        for i, g_ in enumerate(xgroups('s33')): fill[x0 + xs * i + (w if xs >= 4 else w % xs)] += g_
    hr = hreads(0)
    h0 = 5 if fine else 1
    for i in range(6): fill[h0 + i].append(hr[i])
    c0, c2, c4 = cvt_pair(0), cvt_pair(2), cvt_pair(4)
    tailv = cfg.get('tailv', 1)
    fill[9] += c0[:1]; fill[10] += c0[1:2]; fill[14] += c0[2:3]; fill[15] += c0[3:]
    fill[17] += [tr_pair(0)]
    fill[19] += c2[:1]; fill[20] += c2[1:2]
    fill[22] += cvt_D(acc(1), A2[0])[:1]; fill[23] += cvt_D(acc(1), A2[0])[1:]
    if tailv == 0:
        fill[24] += c2[2:3]; fill[25] += c2[3:]
        fill[27] += [tr_pair(2)]
        fill[29] += c4[:1]; fill[30] += c4[1:2]
        fill[32] += cvt_D(acc(3), A2[0] + 2)[:1]; fill[33] += cvt_D(acc(3), A2[0] + 2)[1:]
    else:
        fill[24] += c2[2:3]; fill[25] += c2[3:]
        fill[26] += ['s_nop 0', tr_pair(2)]
        fill[27] += c4[:1]; fill[28] += c4[1:2]
        N = 's_nop 0'
        fill[29] += [N]
        fill[30] += [N] + cvt_D(acc(3), A2[0] + 2)[:1]; fill[31] += [N] + cvt_D(acc(3), A2[0] + 2)[1:]
        fill[32] += [N] + c4[2:3]; fill[33] += c4[3:]
    k = 0
    for T in range(7):
        for sg in range(2, 7):
            if fine and T == 0: p(f's_waitcnt lgkmcnt({6 - sg})')
            p(qs(T, sg))
            for x in fill[k]: p(x)
            k += 1
    eflag = []
    epos = 9
    h2 = hreads(1)
    a6 = acc(6)
    MFs = f'{MF16} {vr(acc(1), 4)}, {vr(a6, 2)}, {vr(SEL1, 2)}, 0'
    if tailv == 0:
        p(c4[2]); p(c4[3])
        p('s_waitcnt lgkmcnt(0)')
        p(sm(0, 0)); p(tr_pair(4)); p(h2[0]); p(h2[1])
        p(cvt(a6, a6)); p(cvt(a6 + 1, a6 + 2))
        p(sm(0, 1)); p(h2[2])
        p(MFs)
        p(h2[3])
        p(sm(0, 2)); p(h2[4]); p(h2[5])
        for x in cvt_D(acc(5), A2[1]): p(x)
        for x in cvt_D(acc(1), A2[1] + 2): p(x)
    else:
        p('s_waitcnt lgkmcnt(0)\ns_nop 0')
        p(sm(0, 0)); p(h2[0]); p(h2[1]); p('s_nop 0')
        p(tr_pair(4)); p('s_nop 0')
        p(cvt(a6, a6)); p(cvt(a6 + 1, a6 + 2))
        p(MFs)
        p('s_nop 0\ns_nop 0')
        p(sm(0, 1)); p(h2[2]); p(h2[3]); p(cvt_D(acc(5), A2[1])[0])
        p(sm(0, 2)); p(h2[4]); p(h2[5]); p(cvt_D(acc(5), A2[1])[1])
        for x in cvt_D(acc(1), A2[1] + 2): p(x)
    lk = (lambda n: 0) if (cfg.get('rprof') and 3 in cfg.get('stamps', range(6))) else (lambda n: n)
    p('s_waitcnt lgkmcnt(4)'); p(sm(1, 0))
    p('s_waitcnt lgkmcnt(2)'); p(sm(1, 1))
    p('s_waitcnt lgkmcnt(0)'); p(sm(1, 2))
    rstamp(p, cfg, 2)
    if epos == -1:
        for x in eflag: p(x)
    m_, t0_, t1_ = Sa(0), Sa(1), Sa(2)
    if ax:
        for t_, r in enumerate((m_, t0_, t1_)):
            p(f'v_pk_add_f32 v[{r}:{r + 1}], v[{r}:{r + 1}], v[{r + 2}:{r + 3}]'); p(dsw(vSadd, vr(r, 2), t_ * 2048, 2))
    else:
        p(f'v_pk_add_f32 v[{m_}:{m_ + 1}], v[{m_}:{m_ + 1}], v[{m_ + 2}:{m_ + 3}]')
        p(f'v_add_f32 v36, v{t0_}, v{t0_ + 2}\nv_add_f32 v38, v{t0_ + 1}, v{t0_ + 3}')
        p(f'ds_write2_b32 v{vMadd}, v{m_}, v{m_ + 1} offset0:0 offset1:16')
        p(f'v_add_f32 v37, v{t1_}, v{t1_ + 2}\nv_add_f32 v39, v{t1_ + 1}, v{t1_ + 3}')
        p(f'ds_write2_b64 v{vSadd}, v[36:37], v[38:39] offset0:0 offset1:16')
    p('s_waitcnt lgkmcnt(0)\ns_barrier')
    rstamp(p, cfg, 3)
    real = p
    if two and w >= 2: p = lambda t: None
    if ax:
        p(f'ds_read2st64_b32 v[84:85], v{vSrd} offset0:0 offset1:2\nds_read2st64_b32 v[86:87], v{vSrd} offset0:4 offset1:6')
        for wv in range(4): p(f'ds_read2st64_b32 {vr(76 + 2 * wv, 2)}, v{vSrd} offset0:{8 + 2 * wv} offset1:{16 + 2 * wv}')
    else:
        p(f'ds_read2st64_b32 v[84:85], v{vMrd} offset0:0 offset1:2\nds_read2st64_b32 v[86:87], v{vMrd} offset0:4 offset1:6')
        for wv in range(4): p(dsr(vr(76 + 2 * wv, 2), vSrd, wv * 1024, 2))
    if epos == 0:
        for x in eflag: p(x)
    p(f's_waitcnt lgkmcnt({lk(4)})')
    p('v_pk_add_f32 v[84:85], v[84:85], v[86:87]\nv_add_f32 v84, v84, v85')
    s0, s1, s2 = 84, 76, 77
    e0, e1, e2 = 85, 78, 79
    p(f'v_exp_f32 v{e0}, v{s0}')
    p(f's_waitcnt lgkmcnt({lk(2)})')
    p('v_pk_add_f32 v[76:77], v[76:77], v[78:79]')
    p(f'v_cndmask_b32 v{e0}, v{e0}, 0, s[16:17]')
    p('s_waitcnt lgkmcnt(0)')
    p('v_pk_add_f32 v[80:81], v[80:81], v[82:83]\nv_pk_add_f32 v[76:77], v[76:77], v[80:81]')
    rstamp(real, cfg, 4)
    if epos == 1:
        for x in eflag: p(x)
    lab = real.uid('L_sm')
    p(f'v_max3_f32 v{vT0}, abs(v{s0}), abs(v{s1}), abs(v{s2})')
    p(f'v_cmp_nge_f32 vcc, s35, v{vT0}')
    p(f'v_exp_f32 v{e1}, v{s1}\nv_exp_f32 v{e2}, v{s2}')
    p(f's_cbranch_vccnz {lab}_max\n{lab}:')
    p(f'v_add_f32 v{vT0}, v{e0}, v{e1}\nv_add_f32 v{vT0}, v{vT0}, v{e2}')
    p(f'v_mov_b32_dpp v{vT1}, v{e0} quad_perm:[1,0,3,2] {DPP}')
    if two:
        p(f'v_mov_b32 v86, v{e0}')
        for sh in (8, 4, 2, 1): p(f'v_add_f32_dpp v{vT0}, v{vT0}, v{vT0} row_ror:{sh} {DPP}')
        p(f'v_rcp_f32 v{vT0}, v{vT0}')
        p(f'v_mul_f32 v{e1}, v{e1}, v{vT0}\nv_mul_f32 v{e2}, v{e2}, v{vT0}')
        p(f'v_cvt_pk_bf16_f32 v3, v{e1}, v{e2}\nv_min_u32 v3, s34, v3')
        p(st('v3', vPt, 's22'))
        p(f'v_mul_f32 v86, v86, v{vT0}\nv_mul_f32 v{vT1}, v{vT1}, v{vT0}')
        p(f'v_cvt_pk_bf16_f32 v2, v86, v{vT1}\nv_min_u32 v2, s34, v2')
        p(st('v2', 5, 's22'))
        p = real
        rstamp(p, cfg, 5)
        p(f's_add_u32 s23, s22, {OFF_PS - OFF_PF}')
    else:
        p(f'v_cndmask_b32 v{e1}, v{e1}, v{e0}, s[18:19]')
        p(f'v_add_f32_dpp v{vT0}, v{vT0}, v{vT0} row_ror:8 {DPP}')
        p(f'v_cndmask_b32 v{e2}, v{e2}, v{vT1}, s[18:19]')
        for sh in (4, 2, 1): p(f'v_add_f32_dpp v{vT0}, v{vT0}, v{vT0} row_ror:{sh} {DPP}')
        p(f'v_rcp_f32 v{vT0}, v{vT0}')
        p(f'v_mul_f32 v{e1}, v{e1}, v{vT0}\nv_mul_f32 v{e2}, v{e2}, v{vT0}')
        p(f'v_cvt_pk_bf16_f32 v{e1}, v{e1}, v{e2}\nv_min_u32 v{e1}, s34, v{e1}')
        p(st(f'v{e1}', vPt, 's22'))
        rstamp(p, cfg, 5)
        p(f's_add_u32 s23, s22, {OFF_PS - OFF_PF}\nv_mov_b32 v3, v{e1}')
    if two and w >= 2 and cfg.get('a_delay'): p(f's_sleep {cfg.get("a_delay2", 4)}')
    if cfg.get('pspos', 4) == -1: p(pstore)
    for r in range(36, 76): p(f'v_mov_b32 v{r}, 0')
    if cfg.get('pspos', 4) == -2: p(pstore)
    p(f's_sub_u32 s36, s33, s32\nv_add_u32 v{vX1}, s36, v{vX1}\nv_add_u32 v{vX2}, s36, v{vX2}\ns_mov_b32 s36, s32\ns_mov_b32 s32, s33\ns_mov_b32 s33, s36')
    p(f's_add_u32 s25, s25, 8192\ns_add_u32 s26, s25, {OFF_MS - OFF_MF}\ns_add_u32 s22, s22, {PSLOT}')
    rstamp_flush(p, cfg, w, 84)
    if cfg.get('sprof') and w == 0:
        p('s_memtime s[88:89]\ns_memrealtime s[90:91]\ns_lshl_b32 s36, s30, 3\ns_add_u32 s36, s36, 131072\nv_mov_b32 v84, s36\ns_waitcnt lgkmcnt(0)\nv_mov_b32 v86, s88\nv_mov_b32 v87, s90\nds_write_b64 v84, v[86:87]')
    p(f's_add_u32 s30, s30, 1\ns_cmp_lt_u32 s30, {NSTEP}\ns_cbranch_scc1 {loop}')
    p(pstore)
    if cfg.get('sprof') and w == 0:
        p(f's_waitcnt vmcnt(0) lgkmcnt(0)\nv_lshlrev_b32 v2, 3, v0\nv_add_u32 v3, 131072, v2\nds_read_b64 v[8:9], v3\ns_lshl_b32 s36, s11, 9\ns_add_u32 s36, s36, {OFF_PROF + 131072}\ns_waitcnt lgkmcnt(0)')
        p(st('v[8:9]', 2, 's36', n=2))
    rstamp_dump(p, cfg, w)
    p('s_branch L_exit')
    tailA()
    if two and w >= 2: return
    p(f'{lab}_max:')
    p(f'v_cndmask_b32 v{s0}, v{s0}, v{vNI}, s[16:17]')
    p(f'v_max3_f32 v{vT0}, v{s0}, v{s1}, v{s2}')
    for sh in (8, 4, 2, 1): p(f'v_max_f32_dpp v{vT0}, v{vT0}, v{vT0} row_ror:{sh} {DPP}')
    for s_ in (s0, s1, s2): p(f'v_sub_f32 v{s_}, v{s_}, v{vT0}')
    for e_, s_ in ((e0, s0), (e1, s1), (e2, s2)): p(f'v_exp_f32 v{e_}, v{s_}')
    p(f's_branch {lab}')

def y_phase(p, mA, Ya, Ww, W, IDX, vLW, rot, extra, Yop, mid=None, transpose=False, dense=0, pre_mid=()):
    def wread(sg):
        return [dsr(vr(Ww(2 * sg + nt) + 4 * q_, 4), vLW, ((nt * 7 + rot(sg)) * 2 + q_) * 1024) for nt in range(2) for q_ in range(2)]
    def fin(hh, nt):
        a = Ya(hh, nt)
        return [f'v_pk_add_f32 v[{a}:{a + 1}], v[{a}:{a + 1}], v[{a + 2}:{a + 3}]', cvt(Yop(nt) + ph[hh], a)]
    ph = (0, 2, 1, 3) if transpose else (0, 1, 2, 3)
    vi = iter(extra)
    cnt = [0]
    def after():
        cnt[0] += 1
        if dense and cnt[0] % dense == 0:
            x = next(vi, None)
            if x: p(x)
    for sg in range(7):
        if sg >= 2: p('s_waitcnt lgkmcnt(4)' if sg < 6 else 's_waitcnt lgkmcnt(0)')
        for nt in range(2):
            p(f'{SMF} {vr(Ya(3, nt), 4)}, {vr(mA(sg), 4)}, {vr(Ww(2 * sg + nt), 8)}, v{IDX}'); after()
        wrd = wread(sg + 2) if sg + 2 < 7 else []
        if sg == 0 and mid: wrd = []
        for hh in range(3):
            for nt in range(2):
                p(f'{SMF} {vr(Ya(hh, nt), 4)}, {vr(mA(sg), 4)}, {W(hh, nt, sg)}, v{IDX}')
                if wrd: p(wrd.pop(0))
                after()
                if not dense and (hh, nt) in ((0, 1), (2, 1)) and not (sg == 0 and mid):
                    x = next(vi, None)
                    if x: p(x)
        if sg == 0 and mid:
            for x in list(pre_mid) + mid + wread(2): p(x)
    for x in vi: p(x)
    for hh in (3, 0, 1, 2):
        for nt in range(2): p(fin(hh, nt)[0])
    for hh in (3, 0, 1, 2):
        for nt in range(2): p(fin(hh, nt)[1])
    if transpose:
        for nt in range(2):
            for a, b in ((0, 2), (1, 3)): p(f'{SW32} v{Yop(nt) + ph[a]}, v{Yop(nt) + ph[b]}')
        for nt in range(2):
            for a, b in ((0, 1), (2, 3)): p(f'{SW16} v{Yop(nt) + ph[a]}, v{Yop(nt) + ph[b]}')

def gen_B(p, w, cfg):
    LM, LO, LW = 0, 7168, 12288
    mA = lambda sg: 8 + 4 * sg
    Ya = lambda hh, nt: 36 + 8 * hh + 4 * nt
    Yop = lambda nt: 68 + 4 * nt
    Vi = lambda u, nt: 84 + 16 * u + 8 * nt
    Pt = lambda u: 116 + 4 * u
    Pm = 124
    Oa = lambda nt: 128 + 4 * nt
    Ww = lambda i: 136 + 8 * (i & 3)
    IDX, vL16, vPt, vPm, vOadd, vOrd, vL8, vLW = range(168, 176)
    vT0, vM, vF, vZ = 6, 5, 7, 4
    vEw, vEr, vEm = 76, 77, 78
    hint = cfg.get('hint', 1)
    lk = (lambda n: 0) if (cfg.get('rprof') and 4 in cfg.get('stamps', range(6))) else (lambda n: n)
    rot = lambda sg: L.slot_chunk(w, sg)
    def W(hh, nt, sg):
        i = (hh * 2 + nt) * 7 + sg
        return ar(8 * i, 8) if i < 32 else vr(176 + 8 * (i - 32), 8)
    p(f'v_lshlrev_b32 v{vL16}, 4, v0')
    p(f's_mul_i32 s13, s11, {4 * 112 * 1024}\ns_add_u32 s13, s13, {OFF_B + w * 112 * 1024}\ns_mov_b32 s15, {LW + w * 28672}')
    if cfg.get('b_hold'): p(f's_sleep {cfg["b_hold"]}')
    def announce():
        lab0 = p.uid('L_go3')
        p(f's_cmp_lg_u32 s11, 0\ns_cbranch_scc1 {lab0}\ns_mov_b32 s14, {OFF_GO3}\ns_mov_b64 exec, 1\nv_mov_b32 v1, 0\nv_mov_b32 v2, 1')
        p(st('v2', 1, 's14', 0, 'sc1') + f'\ns_mov_b64 exec, -1\n{lab0}:')
    load_B_weights(p, vL16, rot, 's15', (cfg.get('go3', 3), announce) if w == 0 else None)
    p(f'v_add_u32 v{vLW}, {LW + w * 28672}, v{vL16}')
    idx_reg(p, IDX)
    p(f'v_lshrrev_b32 v1, 4, v0\nv_and_b32 v2, 15, v0')
    p(f'v_lshrrev_b32 v4, 2, v2\nv_lshlrev_b32 v4, 8, v4\nv_add_u32 v4, {w * 4096}, v4\nv_and_b32 v6, 3, v0')
    p(f'v_lshl_add_u32 v{vPm}, v6, 3, v4\nv_lshl_add_u32 v{vPm}, v1, 10, v{vPm}\nv_add_u32 v{vPm}, 128, v{vPm}')
    p(f'v_lshl_add_u32 v4, v6, 4, v4\nv_lshrrev_b32 v6, 1, v1\nv_lshl_add_u32 v4, v6, 10, v4\nv_and_b32 v6, 1, v1\nv_lshl_add_u32 v{vPt}, v6, 6, v4')
    p(f'v_mul_u32_u24 v4, 320, v1\nv_lshlrev_b32 v6, 2, v2\nv_add_u32 v4, v4, v6\nv_add_u32 v{vOadd}, {LO + w * 1280}, v4')
    p(f'v_lshlrev_b32 v4, 1, v1\nv_bfe_u32 v6, v0, 2, 1\nv_add_u32 v4, v4, v6\nv_mul_u32_u24 v4, 160, v4\nv_bfe_u32 v6, v0, 3, 1\nv_lshlrev_b32 v6, 5, v6\nv_and_b32 v7, 3, v0\nv_lshlrev_b32 v7, 3, v7')
    p(f'v_add3_u32 v4, v4, v6, v7\nv_add_u32 v{vOrd}, {LO + (w & 1) * 64}, v4')
    p(f's_lshl_b32 s13, s11, 2\ns_add_u32 s13, s13, {128 * w}\nv_mov_b32 v{vEw}, s13\nv_mov_b32 v7, 0x7ffffff0\nv_cmp_eq_u32 vcc, 0, v0\nv_cndmask_b32 v{vEw}, v7, v{vEw}, vcc')
    p(f'v_lshlrev_b32 v{vEr}, 2, v2\nv_min_u32 v4, 13, v2\nv_lshlrev_b32 v4, 2, v4\nv_lshl_add_u32 v{vEm}, v1, 7, v4')
    p(f'v_lshlrev_b32 v{vL8}, 2, v0\nv_add_u32 v{vL8}, {(w & 1) * 256}, v{vL8}')
    if cfg.get('pc', 0):
        p(f'v_lshlrev_b32 v{vPm}, 3, v0\nv_add_u32 v{vPm}, {8192 + w * 512}, v{vPm}')
        p(f'v_lshrrev_b32 v4, 2, v2\nv_lshlrev_b32 v4, 7, v4\nv_add_u32 v4, {w * 2048}, v4\nv_and_b32 v6, 3, v0\nv_lshl_add_u32 v4, v6, 4, v4')
        p(f'v_lshrrev_b32 v6, 1, v1\nv_lshl_add_u32 v4, v6, 9, v4\nv_and_b32 v6, 1, v1\nv_lshl_add_u32 v{vPt}, v6, 6, v4')
    bx = cfg.get('bx', 0)
    if bx:
        p(f'v_mul_u32_u24 v4, 136, v1\nv_lshl_add_u32 v4, v2, 3, v4\nv_add_u32 v{vOadd}, {LO + w * 1088}, v4')
        p(f'v_mul_u32_u24 v4, 136, v1\nv_bfe_u32 v6, v0, 3, 1\nv_lshl_add_u32 v4, v6, 6, v4\nv_and_b32 v6, 3, v0\nv_lshl_add_u32 v4, v6, 4, v4')
        p(f'v_bfe_u32 v6, v0, 2, 1\nv_lshl_add_u32 v4, v6, 2, v4\nv_add_u32 v{vOrd}, {LO + (w & 1) * 544}, v4')
        for k in range(3): p(f'v_add_u32 v{81 + k}, {1088 * (k + 1)}, v{vOrd}')
    one = cfg.get('b1', 0)
    if one:
        p(f'v_bfe_u32 v4, v0, 3, 2\nv_lshlrev_b32 v4, 1, v4\nv_bfe_u32 v6, v0, 1, 1\nv_add_u32 v4, v4, v6\nv_mul_u32_u24 v4, 160, v4')
        p(f'v_lshrrev_b32 v6, 5, v0\nv_lshl_add_u32 v4, v6, 6, v4\nv_bfe_u32 v6, v0, 2, 1\nv_lshl_add_u32 v4, v6, 5, v4\nv_and_b32 v6, 1, v0\nv_lshl_add_u32 v4, v6, 4, v4')
        p(f'v_add_u32 v{vOrd}, {LO}, v4\nv_lshlrev_b32 v{vL8}, 3, v0\nv_mov_b32 v80, 0\nv_mov_b32 v81, 0')
    p(f's_mov_b32 s34, 0xfffffffe\nv_mov_b32 v{vZ}, 0\nv_mov_b32 v{vM}, 0')
    t0, t1 = rot(0), rot(1)
    p(f's_mov_b32 s25, {OFF_MF}\ns_mov_b32 s26, {OFF_MS0}\ns_mov_b32 s27, {OFF_PF}')
    p(f's_mul_i32 s13, s11, 32768\ns_add_u32 s24, s13, {OFF_V + w * 8192}')
    p(f's_lshl_b32 s13, s11, 9\ns_add_u32 s28, s13, {OFF_MF + 8192}\ns_mov_b32 s29, 0x7ffffff0')
    p(f's_lshl_b32 s13, s11, 6\ns_add_u32 s33, s13, {OFF_VF + 4 * w}')
    for r in list(range(36, 68)) + list(range(128, 136)): p(f'v_mov_b32 v{r}, 0')
    wait_go(p, 3 if cfg.get('prep2', 1) else 7, 4, 1)
    if w == 0:
        lab0 = p.uid('L_go2')
        p(f's_cmp_lg_u32 s11, 0\ns_cbranch_scc1 {lab0}\ns_mov_b32 s13, {OFF_GO2}\ns_mov_b64 exec, 1')
        p(st(f'v{vZ}', vZ, 's13', 0, 'sc1') + f'\ns_mov_b64 exec, -1\n{lab0}:')
    slow_poll(p, [ld(f'v{vF}', vZ, 's33', n=1)], [vF], vT0, sleep=4)
    p('s_add_u32 s33, s33, 1024')
    p('s_mov_b32 s30, 0\ns_waitcnt vmcnt(0) lgkmcnt(0)\ns_barrier')
    prof(p, cfg, 3)
    rstamp_cal(p, cfg, 0)
    vl = []
    for k in range(8):
        vl.append(ld(vr(84 + 4 * k, 4), vL16, 's24', (k & 3) * 1024) + (f'\ns_add_u32 s24, s24, {4096 if k == 3 else 14 * 32768 - 4096}' if (k & 3) == 3 else ''))
    if cfg.get('nov'): vl = vl[:8 - cfg['nov']]
    mstore = [st(f'v{vM}', vL8, 's29', 0, 'sc1')] if w < 2 else []
    if one: mstore = [st('v[80:81]', vL8, 's29', 0, 'sc1', n=2)] if w == cfg.get('b1w', 0) else []
    loop = p.uid('L_Bloop')
    p(f'{loop}:')
    p(f's_add_u32 s20, s25, {t0 * 1024}\ns_add_u32 s21, s25, {t1 * 1024}\ns_mov_b32 s22, s27')
    for sg in range(2):
        for nt in range(2):
            for q_ in range(2): p(dsr(vr(Ww(2 * sg + nt) + 4 * q_, 4), vLW, ((nt * 7 + rot(sg)) * 2 + q_) * 1024))
    if cfg.get('b_delay'): p(f's_sleep {cfg["b_delay"]}')
    vfirst = cfg.get('vfirst', 0)
    if cfg.get('bmhint', 1) and hint:
        p(f's_add_u32 s23, s25, {EM_OFF}')
        hint_wait(p, vF, vEm, 's23', cfg, cfg.get('bm_delay', 32), w)
    chk = [mA(0) + i for i in range(8)] + [vF]
    tailM = fast_poll(p, [ld(vr(mA(0), 4), vL16, 's20'), ld(vr(mA(1), 4), vL16, 's21'), ld(f'v{vF}', vZ, 's33', n=1)], chk, vT0,
              cfg.get('bdepth', 1), cfg.get('space', 2), [], [],
              mstore + [f's_add_u32 s20, s26, {t0 * 1024}', f's_add_u32 s21, s26, {t1 * 1024}'], behind=vl if vfirst else None)
    rstamp(p, cfg, 0)
    p('s_mov_b32 s39, s31\ns_waitcnt lgkmcnt(0)')
    p(dsw(vL16, vr(mA(0), 4), LM + t0 * 1024))
    if w != 3: p(dsw(vL16, vr(mA(1), 4), LM + t1 * 1024))
    npre_v = 8 if not cfg.get('vspread') else cfg.get('vpre', 0)
    if not vfirst:
        for x in vl[:npre_v]: p(x)
    dense = cfg.get('vdense', 0)
    if not dense:
        for x in mstore: p(x)
    mid = ['s_waitcnt lgkmcnt(0)', 's_barrier'] + [dsr(vr(mA(sg), 4), vL16, LM + rot(sg) * 1024) for sg in range(2, 7)]
    y_phase(p, mA, Ya, Ww, W, IDX, vLW, rot, ([] if vfirst else vl[npre_v:]), Yop, mid, True, dense, mstore if dense else ())
    rstamp(p, cfg, 1)
    if cfg.get('p_delay'): p(f's_sleep {cfg["p_delay"]}')
    if cfg.get('p_fine'): p(f's_nop {cfg["p_fine"] - 1}')
    p(f's_add_u32 s23, s25, {8192 + EP_OFF}\ns_add_u32 s32, s25, {8192 + EM_OFF}')
    if hint: hint_wait(p, vF, vEr, 's23', cfg, cfg.get('bh_delay', 0), w)
    rstamp(p, cfg, 2)
    loads = [ld(vr(Pt(0), 4), vPt, 's22'), ld(vr(Pt(1), 4), vPt, 's22', 1024 if cfg.get('pc', 0) else 2048), ld(vr(Pm, 2), vPm, 's22', n=2)]
    om = []
    for u in range(2):
        for nt in range(2): om.append(f'{SMF} {vr(Oa(nt), 4)}, {vr(Pt(u), 4)}, {vr(Vi(u, nt), 8)}, v{IDX}')
    for nt in range(2): om.append(f'{SMF32} {vr(Oa(nt), 4)}, {vr(Pm, 2)}, {vr(Yop(nt), 4)}, v{IDX}')
    undo = [f'v_mov_b32 v{r}, 0' for r in range(128, 136)]
    sw = [f's_add_u32 s22, s27, {OFF_PS - OFF_PF}']
    eflag = [st(f'v{vZ}', vEw, 's32')] if hint else []
    epos = cfg.get('b_epos', 0)
    o0, o1 = Oa(0), Oa(1)
    if cfg.get('quick', 1):
        if epos == -2:
            for x in eflag: p(x)
        if cfg.get('quick', 1) == 2:
            tailP = quick_poll2(p, loads, [119, 123, 125], vT0, cfg.get('pdepth', 2), cfg.get('pspace', 24), [], sw)
        else:
            tailP = quick_poll(p, loads, [119, 123, 125], vT0, cfg.get('pdepth', 2), cfg.get('pspace', 24), [], sw, gap=cfg.get('pgap', 0))
        rstamp(p, cfg, 3)
        if epos in (0, -1):
            for x in eflag: p(x)
        if cfg.get('oord', 1):
            for i in (4, 5, 0, 2, 1, 3): p(om[i])
        else:
            for x in om: p(x)
    elif cfg.get('early', 1):
        if epos == -2:
            for x in eflag: p(x)
        ea = ['s_waitcnt vmcnt(2)', om[0], om[1], 's_waitcnt vmcnt(1)', om[2], om[3], 's_waitcnt vmcnt(0)'] + (eflag if epos == -1 else []) + [om[4], om[5]]
        ci = [f'v_max3_u32 v{vT0}, v116, v117, v118', f'v_max_u32 v{vT0}, v{vT0}, v119'] + \
             [f'v_max3_u32 v{vT0}, v{vT0}, v{r}, v{r + 1}' for r in (120, 122, 124)] + [f'v_cmp_eq_u32 vcc, -1, v{vT0}']
        tailP = fast_poll(p, loads, None, vT0, 1, 0, [], undo, sw, early=ea, ci=ci)
        rstamp(p, cfg, 3)
        if epos == 0:
            for x in eflag: p(x)
    else:
        tailP = fast_poll(p, loads, list(range(116, 126)), vT0, cfg.get('pdepth', 2), cfg.get('space', 2), om[:2], undo, sw)
        rstamp(p, cfg, 3)
        if epos == 0:
            for x in eflag: p(x)
        for x in om[2:]: p(x)
    p(f'v_pk_add_f32 v[{o0}:{o0 + 1}], v[{o0}:{o0 + 1}], v[{o0 + 2}:{o0 + 3}]')
    p(dsw(vOadd, vr(o0, 2), 0, 2) if bx else f'ds_write2_b32 v{vOadd}, v{o0}, v{o0 + 1} offset0:0 offset1:40')
    p(f'v_pk_add_f32 v[{o1}:{o1 + 1}], v[{o1}:{o1 + 1}], v[{o1 + 2}:{o1 + 3}]')
    p(dsw(vOadd, vr(o1, 2), 544, 2) if bx else f'ds_write2_b32 v{vOadd}, v{o1}, v{o1 + 1} offset0:16 offset1:56')
    if epos == 1:
        for x in eflag: p(x)
    p('s_waitcnt lgkmcnt(0)\ns_barrier')
    rstamp(p, cfg, 4)
    if one:
        if w == cfg.get('b1w', 0):
            for wv in range(4): p(dsr(vr(36 + 4 * wv, 4), vOrd, wv * 1280, 4))
            p(f's_waitcnt lgkmcnt({lk(2)})\nv_pk_add_f32 v[36:37], v[36:37], v[40:41]\nv_pk_add_f32 v[38:39], v[38:39], v[42:43]\ns_waitcnt lgkmcnt(0)')
            p('v_pk_add_f32 v[44:45], v[44:45], v[48:49]\nv_pk_add_f32 v[46:47], v[46:47], v[50:51]\nv_pk_add_f32 v[36:37], v[36:37], v[44:45]\nv_pk_add_f32 v[38:39], v[38:39], v[46:47]')
            p('v_cvt_pk_bf16_f32 v80, v36, v37\nv_cvt_pk_bf16_f32 v81, v38, v39\nv_min_u32 v80, s34, v80\nv_min_u32 v81, s34, v81')
            p(st('v[80:81]', vL8, 's28', n=2))
    elif w < 2:
        for wv in range(4):
            p(f'ds_read2_b32 {vr(36 + 2 * wv, 2)}, v{vOrd if wv == 0 else 80 + wv} offset0:0 offset1:2' if bx else dsr(vr(36 + 2 * wv, 2), vOrd, wv * 1280, 2))
        p(f's_waitcnt lgkmcnt({lk(2)})\nv_pk_add_f32 v[36:37], v[36:37], v[38:39]\ns_waitcnt lgkmcnt(0)\nv_pk_add_f32 v[40:41], v[40:41], v[42:43]')
        p('v_pk_add_f32 v[36:37], v[36:37], v[40:41]')
        p(f'v_cvt_pk_bf16_f32 v{vM}, v36, v37\nv_min_u32 v{vM}, s34, v{vM}')
        p(st(f'v{vM}', vL8, 's28'))
    w2d = cfg.get('b_idle', 0)
    if w2d and ((one and w != cfg.get('b1w', 0)) or (not one and w >= 2)): p(f's_sleep {w2d}')
    rstamp(p, cfg, 5)
    p(f's_add_u32 s29, s28, {OFF_MS - OFF_MF}\ns_add_u32 s28, s28, 8192')
    if not cfg.get('rprof'): p(f's_cmp_eq_u32 s30, {NSTEP - 1}\ns_cbranch_scc1 {loop}_x')
    for r in list(range(36, 68)) + list(range(128, 136)): p(f'v_mov_b32 v{r}, 0')
    p(f's_add_u32 s25, s25, 8192\ns_add_u32 s26, s25, {OFF_MS - OFF_MF}\ns_add_u32 s27, s27, {PSLOT}\ns_add_u32 s33, s33, 1024')
    rstamp_flush(p, cfg, w)
    p(f's_add_u32 s30, s30, 1\ns_cmp_lt_u32 s30, {NSTEP}\ns_cbranch_scc1 {loop}')
    p(f'{loop}_x:')
    for x in mstore: p(x)
    if cfg.get('tprof'): prof(p, cfg, 18, 2)
    rstamp_dump(p, cfg, w)
    p('s_branch L_exit')
    tailM(); tailP()

def gen_pref(p, cfg):
    ahead = cfg.get('ahead', 2)
    if cfg.get('pf_go2', 1): wait_word(p, WS, OFF_GO3, 4, 0)
    p('s_lshl_b32 s11, s11, 2\ns_add_u32 s11, s11, s12')
    if cfg.get('ctouch', 1) >= 2: code_touch(p, 'L_A0', 'L_TB', 's11', 20, False)
    p('v_lshlrev_b32 v1, 7, v0')
    p(f's_mul_i32 s13, s11, {28 * 128}\ns_add_u32 s13, s13, {OFF_XN}\nv_add_u32 v2, s13, v1\nv_mov_b32 v3, 28672')
    p(f's_mul_i32 s13, s11, {1280 if cfg.get("pc", 0) else 2048}\ns_add_u32 s13, s13, {OFF_PF - 28 * 128}\nv_add_u32 v4, s13, v1\nv_mov_b32 v5, {PSLOT}')
    p('v_cmp_lt_u32 vcc, 27, v0\nv_cndmask_b32 v2, v2, v4, vcc\nv_cndmask_b32 v3, v3, v5, vcc')
    p(f's_lshl_b32 s13, s11, 10\ns_add_u32 s13, s13, {OFF_MF + 8192 - 38 * 128}\nv_add_u32 v4, s13, v1\nv_mov_b32 v5, 8192')
    p('v_cmp_lt_u32 vcc, 37, v0\nv_cndmask_b32 v2, v2, v4, vcc\nv_cndmask_b32 v3, v3, v5, vcc')
    p(f's_lshl_b32 s13, s11, 7\ns_add_u32 s13, s13, {OFF_VF + 1024 - 46 * 128}\nv_add_u32 v4, s13, v1\nv_mov_b32 v5, 1024')
    p('v_cmp_lt_u32 vcc, 45, v0\nv_cndmask_b32 v2, v2, v4, vcc\nv_cndmask_b32 v3, v3, v5, vcc')
    p(f'v_mov_b32 v6, 0\ns_mov_b32 s20, {OFF_MS}\ns_mov_b32 s30, 0')
    nv = cfg.get('prefv', 0)
    p(f'v_lshrrev_b32 v9, 3, v0\nv_min_u32 v9, 6, v9\nv_lshlrev_b32 v9, 13, v9\nv_and_b32 v10, 7, v0\nv_lshl_add_u32 v9, v10, 7, v9')
    p(f's_mul_i32 s13, s11, {7 * 8192}\ns_add_u32 s24, s13, {OFF_V + (8 - nv) * 1024}')
    loop = p.uid('L_pf')
    p(f'{loop}:')
    p(f's_cmp_le_u32 s30, {ahead}\ns_cbranch_scc1 {loop}_go')
    p(f's_add_u32 s20, s20, 8192\ns_sub_u32 s21, s20, {OFF_MS - OFF_MF}\ns_mov_b32 s31, 0')
    p(f'{loop}_poll:')
    p(f's_sleep {cfg.get("pf_sleep", 8)}\ns_mov_b64 exec, 1\n' + ld('v7', 6, 's21', n=1))
    p(f's_add_u32 s31, s31, 1\ns_cmp_ge_u32 s31, 16\ns_cselect_b32 s21, s20, s21\ns_cmp_gt_u32 s31, {TMO}\ns_cbranch_scc1 {FAIL}\ns_waitcnt vmcnt(0)')
    p(f'v_cmp_eq_u32 vcc, -1, v7\ns_mov_b64 exec, -1\ns_cbranch_vccnz {loop}_poll')
    p(f'{loop}_go:')
    p('s_mov_b32 exec_hi, 0x7fff\n' + ld('v8', 2, '0', n=1) + '\nv_add_u32 v2, v2, v3\ns_mov_b64 exec, -1')
    for k in range(nv): p(ld(f'v{11 + k}', 9, 's24', k * 1024, n=1))
    p(f's_add_u32 s24, s24, {14 * 32768}')
    p(f's_add_u32 s30, s30, 1\ns_cmp_lt_u32 s30, {NSTEP}\ns_cbranch_scc1 {loop}')
    p('s_branch L_exit')
```

```python
import sys, os, json
sys.path.insert(0, os.path.dirname(os.path.abspath(__file__)))
from asm import Prog
from common import *
import prep, prep2, rroles, troles

DEFAULT = dict(pc=1, sm2=1, prep2=0, ctouch=0, bfirst=0, t_sleep=2, quick=2, go3=6, qspace=32, pspace=32, pspos=-2, dbg_sleep=2, ffn_wait=0, flK='nt', flX='nt', flN='nt', a_delay=10, b_delay=2, p_delay=2, hint=0, early=0, vspread=1, vdense=2, vpre=0, xs=3)

def gen(cfg=None):
    c = dict(DEFAULT); c.update(cfg or {}); cfg = c
    p = Prog()
    BMASK[0] = 0xffff0000 if cfg.get('prep2') else ((1 << cfg.get('nbcnt', 1)) - 1) << 16
    p('''s_cmp_ge_u32 s2, 256
s_cbranch_scc1 L_end''')
    if cfg.get('padto'): p('s_memrealtime s[100:101]')
    p('''s_load_dwordx16 s[40:55], s[0:1], 0
s_load_dwordx8 s[56:63], s[0:1], 64
s_load_dwordx4 s[4:7], s[0:1], 96
s_load_dwordx2 s[8:9], s[0:1], 112
s_getreg_b32 s10, hwreg(HW_REG_XCC_ID, 0, 3)
v_lshrrev_b32 v1, 6, v0
v_and_b32 v0, 63, v0
s_mov_b32 s99, s2
s_waitcnt lgkmcnt(0)
v_readfirstlane_b32 s12, v1''')
    if cfg.get('xcc_mix'): p('s_lshr_b32 s10, s2, 5')
    if cfg.get('xcc_skew'): p('s_lshr_b32 s10, s10, 1')
    srd(p, 64, 8, WS_END); srd(p, 68, 4, 2048 * 896); srd(p, 72, 6, 256); srd(p, 76, 40, 2048 * 896)
    prof(p, cfg, 0)
    cnt_zero(p)
    if cfg.get('ctouch', 1):
        p('s_cmp_lg_u32 s12, 1\ns_cbranch_scc1 L_noct\ns_lshr_b32 s14, s2, 3')
        code_touch(p, KNAME, 'L_last', 's14', 246, True)
        p('L_noct:')
    p(f'''s_and_b32 s13, s2, 7
s_lshr_b32 s14, s2, 3
s_cmp_lt_u32 s14, 28
s_cbranch_scc1 L_isgemm
s_lshl_b32 s13, s13, 2
s_add_u32 s13, s13, s14
s_sub_u32 s13, s13, 28
s_branch L_ln
''')
    NPAD = 13
    if cfg.get('warm', 1):
        p('L_walk:\ns_lshr_b32 s3, s2, 3\ns_and_b32 s3, s3, 15')
        for i in range(NPAD): p(f's_cmp_eq_u32 s3, {i}\ns_cbranch_scc1 L_pad{i}')
        p('s_setpc_b64 s[94:95]')
    p('L_isgemm:\ns_mov_b32 s35, s13\ns_mov_b32 s38, s14\ns_mul_i32 s13, s13, 28\ns_add_u32 s13, s13, s14')
    if cfg.get('prep2', 1):
        prep2.gen(p, cfg)
    else:
        p(f'''s_cmp_ge_u32 s13, 112
s_cselect_b32 s16, 112, 0
s_sub_u32 s13, s13, s16
s_mul_i32 s14, s13, 147
s_lshr_b32 s14, s14, 10
s_mul_i32 s15, s14, 7
s_sub_u32 s15, s13, s15
s_cmp_lg_u32 s16, 0
s_cbranch_scc{0 if cfg.get('bfirst', 1) else 1} L_gemmB''')
        prep.gen_gemm(p, False, cfg)
        p('s_branch L_prepdone\nL_gemmB:')
        prep.gen_gemm(p, True, cfg)
        p('s_branch L_prepdone')
    p('L_ln:')
    prep.gen_ln(p, cfg)
    pads = []
    def pad():
        if cfg.get('warm', 1):
            pads.append(f'L_pad{len(pads)}'); p(f'{pads[-1]}:\ns_setpc_b64 s[94:95]')
    p('s_branch L_prepdone'); pad()
    p('L_prepdone:')
    prof(p, cfg, 7)
    p('s_waitcnt vmcnt(0) lgkmcnt(0)')
    prof(p, cfg, 8)
    p(f'''s_barrier
s_cmp_lg_u32 s12, 0
s_cbranch_scc1 L_role_w
s_mov_b64 exec, 1
v_cmp_lt_u32 vcc, 0xffff, v255
s_cbranch_vccz L_czw
L_czok:
s_lshl_b32 s23, s23, 7
s_add_u32 s23, s23, {OFF_CNT}
v_mov_b32 v4, 0
v_mov_b32 v5, 1
buffer_atomic_add v5, v4, {WS}, s23 offen sc0
s_add_u32 s23, s23, 8192
v_readfirstlane_b32 s11, v255
s_and_b32 s11, s11, 0xffff
s_lshl_b32 s13, s10, 5
s_add_u32 s13, s13, s11
s_lshr_b32 s14, s2, 3
s_and_b32 s14, s14, 16
s_add_u32 s13, s13, s14
s_cmp_lt_u32 s11, 16
s_cbranch_scc0 L_overflow
L_role_ok:
v_readfirstlane_b32 s14, v255
s_lshr_b32 s14, s14, 15
s_and_b32 s14, s14, 0xe0
s_xor_b32 s13, s13, s14
v_mov_b32 v2, s13
ds_write_b32 v4, v2
s_waitcnt vmcnt(0) lgkmcnt(0)
v_cmp_ne_u32 vcc, s24, v5
s_cbranch_vccnz L_notlast
buffer_store_dword v5, v4, {WS}, s23 offen sc1
L_notlast:
s_mov_b64 exec, -1
L_role_w:
s_barrier
v_mov_b32 v1, 0
ds_read_b32 v2, v1
s_waitcnt lgkmcnt(0)
v_readfirstlane_b32 s13, v2
s_barrier
s_and_b32 s11, s13, 31
s_lshr_b32 s10, s13, 5
s_and_b32 s10, s10, 7''')
    if cfg.get('prof') or cfg.get('rprof'): p('s_mov_b32 s99, s13\nv_mov_b32 v6, 163584 + 40\nv_mov_b32 v7, s2\nds_write_b32 v6, v7')
    prof(p, cfg, 1)
    if cfg.get('only_prep'): p('s_branch L_exit')
    fast_s, slow_s = cfg.get('dbg_sleep', 8), cfg.get('dbg_slow', 48)
    r0, f0, sp = cfg.get('map', (2, 6, 1))
    p(f'''s_cmp_eq_u32 s10, {sp}
s_cbranch_scc1 L_exit
s_sub_u32 s13, s10, {f0}
s_cmp_lt_u32 s13, 2
s_cbranch_scc1 L_FFN
s_sub_u32 s37, s10, {r0}
s_cmp_ge_u32 s11, 30
s_cbranch_scc1 L_spare
s_cmp_ge_u32 s11, 16
s_cbranch_scc1 L_colrole
s_cmp_lg_u32 s10, 0
s_cbranch_scc1 L_TAw''')
    wait_go(p, 4, fast_s, head='s11')
    prof(p, cfg, 2)
    for w in range(3): p(f's_cmp_eq_u32 s12, {w}\ns_cbranch_scc1 L_A{w}')
    p('s_branch L_A3'); pad()
    p('L_colrole:\ns_sub_u32 s11, s11, 16')
    wait_go(p, 2, fast_s)
    prof(p, cfg, 2)
    p('s_cmp_lg_u32 s10, 0\ns_cbranch_scc1 L_TB')
    for w in range(3): p(f's_cmp_eq_u32 s12, {w}\ns_cbranch_scc1 L_B{w}')
    p('s_branch L_B3')
    p('L_TAw:')
    wait_go(p, 7, slow_s)
    prof(p, cfg, 2)
    p('s_branch L_TA')
    p('L_spare:\ns_cmp_lg_u32 s10, 0\ns_cbranch_scc1 L_exit\ns_sub_u32 s11, s11, 30')
    wait_go(p, 7, slow_s)
    rroles.gen_pref(p, cfg)
    p('L_exit:\ns_mov_b64 exec, -1\ns_waitcnt vmcnt(0) lgkmcnt(0)')
    prof(p, cfg, 5)
    if cfg.get('padto'):
        p(f'L_padt:\ns_sleep 1\ns_memrealtime s[96:97]\ns_waitcnt lgkmcnt(0)\ns_sub_u32 s96, s96, s100\ns_cmp_lt_u32 s96, {cfg["padto"]}\ns_cbranch_scc1 L_padt')
    prof_dump(p, cfg)
    prof_dbgout(p, cfg)
    p('s_waitcnt vmcnt(0)\nL_end:\ns_endpgm')
    p(f'''L_czw:
s_mov_b32 s31, 0
L_czl:
v_mov_b32 v252, 0
v_mov_b32 v253, 0
buffer_atomic_add v253, v252, {DBG}, 0 offen sc0
s_add_u32 s31, s31, 1
s_cmp_gt_u32 s31, {TMO}
s_cbranch_scc1 L_exit
s_waitcnt vmcnt(0)
v_cmp_lt_u32 vcc, 0xffff, v253
s_cbranch_vccz L_czl
v_and_b32 v253, 0xffff0000, v253
v_or_b32 v255, v255, v253
s_branch L_czok
L_overflow:
v_mov_b32 v1, 8
v_mov_b32 v3, 1
buffer_atomic_add v3, v1, {DBG}, 0 offen sc0
s_mov_b64 exec, 0xffff
v_lshlrev_b32 v1, 4, v0
s_mov_b32 s31, 0
L_ovf:
{ld('v2', 1, '0', n=1, srd=DBG)}
s_add_u32 s31, s31, 1
s_cmp_gt_u32 s31, {TMO}
s_cbranch_scc1 L_exit
s_waitcnt vmcnt(0)
v_and_b32 v2, 0xffff, v2
s_mov_b32 s14, 0''')
    for x in range(16): p(f'v_readlane_b32 s15, v2, {x}\ns_add_u32 s14, s14, s15')
    p('''s_cmp_lt_u32 s14, 256
s_cbranch_scc1 L_ovf
v_readfirstlane_b32 s15, v3
s_mov_b64 exec, 1
s_mov_b32 s13, 255''')
    for x in range(16):
        p(f'''v_readlane_b32 s14, v2, {x}
s_min_u32 s14, s14, 16
s_add_u32 s16, s14, s15
s_add_u32 s17, s16, {16 * x}
s_cmp_lt_u32 s16, 16
s_cselect_b32 s13, s17, s13
s_cbranch_scc1 L_role_ok
s_sub_u32 s15, s16, 16''')
    p('s_branch L_role_ok')
    for w in range(4):
        pad(); p(f'L_A{w}:'); rroles.gen_A(p, w, cfg)
    for w in range(4):
        pad(); p(f'L_B{w}:'); rroles.gen_B(p, w, cfg)
    pad(); p('L_TB:'); troles.gen_TB(p, cfg)
    pad(); p('L_TA:'); troles.gen_TA(p, cfg)
    pad(); p('L_FFN:\ns_lshl_b32 s13, s13, 5\ns_add_u32 s11, s11, s13')
    wait_go(p, 7, slow_s)
    prof(p, cfg, 2)
    troles.gen_FFN(p, cfg)
    assert len(pads) in (0, NPAD)
    p('L_last:\ns_endpgm')
    body = p.finish(cfg.get('verbose'))
    hdr = open(os.path.join(os.path.dirname(os.path.abspath(__file__)), 'header.txt')).read()
    return hdr + f'''.amdgcn_target "amdgcn-amd-amdhsa--gfx950"
.text
.globl {KNAME}
.p2align 8
.type {KNAME},@function
{KNAME}:
''' + body + f'''.section .rodata,"a"
.p2align 6
.amdhsa_kernel {KNAME}
  .amdhsa_next_free_vgpr 512
  .amdhsa_next_free_sgpr 102
  .amdhsa_accum_offset 256
  .amdhsa_group_segment_fixed_size 0
  .amdhsa_kernarg_size 120
  .amdhsa_user_sgpr_count 2
  .amdhsa_user_sgpr_kernarg_segment_ptr 1
  .amdhsa_system_sgpr_workgroup_id_x 1
.end_amdhsa_kernel
'''

if __name__ == '__main__':
    cfg = json.loads(sys.argv[2]) if len(sys.argv) > 2 else {}
    cfg['verbose'] = 1
    s = gen(cfg)
    open(sys.argv[1], 'w').write(s)
    print(len(s), 'bytes')
```

```python
import sys, os, json
sys.path.insert(0, os.path.dirname(os.path.abspath(__file__)))
from asm import Prog
from common import *
import prep, prep2, rroles, troles

DEFAULT = dict(relx=0, rx=3, pc=1, sm2=1, prep2=0, ctouch=0, bfirst=0, t_sleep=2, quick=2, go3=6, qspace=32, pspace=32, pspos=-2, dbg_sleep=2, ffn_wait=0, flK='nt', flX='nt', flN='nt', a_delay=10, b_delay=2, p_delay=2, hint=0, early=0, vspread=1, vdense=2, vpre=0, xs=3)

def gen(cfg=None):
    c = dict(DEFAULT); c.update(cfg or {}); cfg = c
    p = Prog()
    BMASK[0] = 0xffff0000 if cfg.get('prep2') else ((1 << cfg.get('nbcnt', 1)) - 1) << 16
    p('''s_cmp_ge_u32 s2, 256
s_cbranch_scc1 L_end''')
    if cfg.get('padto'): p('s_memrealtime s[100:101]')
    p('''s_load_dwordx16 s[40:55], s[0:1], 0
s_load_dwordx8 s[56:63], s[0:1], 64
s_load_dwordx4 s[4:7], s[0:1], 96
s_load_dwordx2 s[8:9], s[0:1], 112
s_getreg_b32 s10, hwreg(HW_REG_XCC_ID, 0, 3)
v_lshrrev_b32 v1, 6, v0
v_and_b32 v0, 63, v0
s_mov_b32 s99, s2
s_waitcnt lgkmcnt(0)
v_readfirstlane_b32 s12, v1''')
    if cfg.get('xcc_mix'): p('s_lshr_b32 s10, s2, 5')
    if cfg.get('xcc_skew'): p('s_lshr_b32 s10, s10, 1')
    srd(p, 64, 8, WS_END); srd(p, 68, 4, 2048 * 896); srd(p, 72, 6, 256); srd(p, 76, 40, 2048 * 896)
    prof(p, cfg, 0)
    cnt_zero(p)
    if cfg.get('ctouch', 1):
        p('s_cmp_lg_u32 s12, 1\ns_cbranch_scc1 L_noct\ns_lshr_b32 s14, s2, 3')
        code_touch(p, KNAME, 'L_last', 's14', 246, True)
        p('L_noct:')
    p(f'''s_and_b32 s13, s2, 7
s_lshr_b32 s14, s2, 3
s_cmp_lt_u32 s14, 28
s_cbranch_scc1 L_isgemm
s_lshl_b32 s13, s13, 2
s_add_u32 s13, s13, s14
s_sub_u32 s13, s13, 28
s_branch L_ln
''')
    NPAD = 13
    if cfg.get('warm', 1):
        p('L_walk:\ns_lshr_b32 s3, s2, 3\ns_and_b32 s3, s3, 15')
        for i in range(NPAD): p(f's_cmp_eq_u32 s3, {i}\ns_cbranch_scc1 L_pad{i}')
        p('s_setpc_b64 s[94:95]')
    p('L_isgemm:\ns_mov_b32 s35, s13\ns_mov_b32 s38, s14\ns_mul_i32 s13, s13, 28\ns_add_u32 s13, s13, s14')
    if cfg.get('prep2', 1):
        prep2.gen(p, cfg)
    else:
        p(f'''s_cmp_ge_u32 s13, 112
s_cselect_b32 s16, 112, 0
s_sub_u32 s13, s13, s16
s_mul_i32 s14, s13, 147
s_lshr_b32 s14, s14, 10
s_mul_i32 s15, s14, 7
s_sub_u32 s15, s13, s15
s_cmp_lg_u32 s16, 0
s_cbranch_scc{0 if cfg.get('bfirst', 1) else 1} L_gemmB''')
        prep.gen_gemm(p, False, cfg)
        p('s_branch L_prepdone\nL_gemmB:')
        prep.gen_gemm(p, True, cfg)
        p('s_branch L_prepdone')
    p('L_ln:')
    prep.gen_ln(p, cfg)
    pads = []
    def pad():
        if cfg.get('warm', 1):
            pads.append(f'L_pad{len(pads)}'); p(f'{pads[-1]}:\ns_setpc_b64 s[94:95]')
    p('s_branch L_prepdone'); pad()
    p('L_prepdone:')
    prof(p, cfg, 7)
    p('s_waitcnt vmcnt(0) lgkmcnt(0)')
    prof(p, cfg, 8)
    p(f'''s_barrier
s_cmp_lg_u32 s12, 0
s_cbranch_scc1 L_role_w
s_mov_b64 exec, 1
v_cmp_lt_u32 vcc, 0xffff, v255
s_cbranch_vccz L_czw
L_czok:
s_lshl_b32 s23, s23, 7
s_add_u32 s23, s23, {OFF_CNT}
v_mov_b32 v4, 0
v_mov_b32 v5, 1
buffer_atomic_add v5, v4, {WS}, s23 offen sc0
s_add_u32 s23, s23, 8192
v_readfirstlane_b32 s11, v255
s_and_b32 s11, s11, 0xffff
s_lshl_b32 s13, s10, 5
s_add_u32 s13, s13, s11
s_lshr_b32 s14, s2, 3
s_and_b32 s14, s14, 16
s_add_u32 s13, s13, s14
s_cmp_lt_u32 s11, 16
s_cbranch_scc0 L_overflow
L_role_ok:
v_readfirstlane_b32 s14, v255
s_lshr_b32 s14, s14, 15
s_and_b32 s14, s14, {0xe0 if cfg.get('relx', 1) else 0}
s_xor_b32 s13, s13, s14
s_xor_b32 s13, s13, {32 * cfg.get('rx', 0)}
v_mov_b32 v2, s13
ds_write_b32 v4, v2
s_waitcnt vmcnt(0) lgkmcnt(0)
v_cmp_ne_u32 vcc, s24, v5
s_cbranch_vccnz L_notlast
buffer_store_dword v5, v4, {WS}, s23 offen sc1
L_notlast:
s_mov_b64 exec, -1
L_role_w:
s_barrier
v_mov_b32 v1, 0
ds_read_b32 v2, v1
s_waitcnt lgkmcnt(0)
v_readfirstlane_b32 s13, v2
s_barrier
s_and_b32 s11, s13, 31
s_lshr_b32 s10, s13, 5
s_and_b32 s10, s10, 7''')
    if cfg.get('prof') or cfg.get('rprof'): p('s_mov_b32 s99, s13\nv_mov_b32 v6, 163584 + 40\nv_mov_b32 v7, s2\nds_write_b32 v6, v7')
    prof(p, cfg, 1)
    if cfg.get('only_prep'): p('s_branch L_exit')
    fast_s, slow_s = cfg.get('dbg_sleep', 8), cfg.get('dbg_slow', 48)
    r0, f0, sp = cfg.get('map', (2, 6, 1))
    p(f'''s_cmp_eq_u32 s10, {sp}
s_cbranch_scc1 L_exit
s_sub_u32 s13, s10, {f0}
s_cmp_lt_u32 s13, 2
s_cbranch_scc1 L_FFN
s_sub_u32 s37, s10, {r0}
s_lshr_b32 s14, s37, 1
s_xor_b32 s37, s37, s14
s_cmp_ge_u32 s11, 30
s_cbranch_scc1 L_spare
s_cmp_ge_u32 s11, 16
s_cbranch_scc1 L_colrole
s_cmp_lg_u32 s10, 0
s_cbranch_scc1 L_TAw''')
    wait_go(p, 4, fast_s, head='s11')
    prof(p, cfg, 2)
    for w in range(3): p(f's_cmp_eq_u32 s12, {w}\ns_cbranch_scc1 L_A{w}')
    p('s_branch L_A3'); pad()
    p('L_colrole:\ns_sub_u32 s11, s11, 16')
    wait_go(p, 2, fast_s)
    prof(p, cfg, 2)
    p('s_cmp_lg_u32 s10, 0\ns_cbranch_scc1 L_TB')
    for w in range(3): p(f's_cmp_eq_u32 s12, {w}\ns_cbranch_scc1 L_B{w}')
    p('s_branch L_B3')
    p('L_TAw:')
    wait_go(p, 7, slow_s)
    prof(p, cfg, 2)
    p('s_branch L_TA')
    p('L_spare:\ns_cmp_lg_u32 s10, 0\ns_cbranch_scc1 L_exit\ns_sub_u32 s11, s11, 30')
    wait_go(p, 7, slow_s)
    rroles.gen_pref(p, cfg)
    p('L_exit:\ns_mov_b64 exec, -1\ns_waitcnt vmcnt(0) lgkmcnt(0)')
    prof(p, cfg, 5)
    if cfg.get('padto'):
        p(f'L_padt:\ns_sleep 1\ns_memrealtime s[96:97]\ns_waitcnt lgkmcnt(0)\ns_sub_u32 s96, s96, s100\ns_cmp_lt_u32 s96, {cfg["padto"]}\ns_cbranch_scc1 L_padt')
    prof_dump(p, cfg)
    prof_dbgout(p, cfg)
    p('s_waitcnt vmcnt(0)\nL_end:\ns_endpgm')
    p(f'''L_czw:
s_mov_b32 s31, 0
L_czl:
v_mov_b32 v252, 0
v_mov_b32 v253, 0
buffer_atomic_add v253, v252, {DBG}, 0 offen sc0
s_add_u32 s31, s31, 1
s_cmp_gt_u32 s31, {TMO}
s_cbranch_scc1 L_exit
s_waitcnt vmcnt(0)
v_cmp_lt_u32 vcc, 0xffff, v253
s_cbranch_vccz L_czl
v_and_b32 v253, 0xffff0000, v253
v_or_b32 v255, v255, v253
s_branch L_czok
L_overflow:
v_mov_b32 v1, 8
v_mov_b32 v3, 1
buffer_atomic_add v3, v1, {DBG}, 0 offen sc0
s_mov_b64 exec, 0xffff
v_lshlrev_b32 v1, 4, v0
s_mov_b32 s31, 0
L_ovf:
{ld('v2', 1, '0', n=1, srd=DBG)}
s_add_u32 s31, s31, 1
s_cmp_gt_u32 s31, {TMO}
s_cbranch_scc1 L_exit
s_waitcnt vmcnt(0)
v_and_b32 v2, 0xffff, v2
s_mov_b32 s14, 0''')
    for x in range(16): p(f'v_readlane_b32 s15, v2, {x}\ns_add_u32 s14, s14, s15')
    p('''s_cmp_lt_u32 s14, 256
s_cbranch_scc1 L_ovf
v_readfirstlane_b32 s15, v3
s_mov_b64 exec, 1
s_mov_b32 s13, 255''')
    for x in range(16):
        p(f'''v_readlane_b32 s14, v2, {x}
s_min_u32 s14, s14, 16
s_add_u32 s16, s14, s15
s_add_u32 s17, s16, {16 * x}
s_cmp_lt_u32 s16, 16
s_cselect_b32 s13, s17, s13
s_cbranch_scc1 L_role_ok
s_sub_u32 s15, s16, 16''')
    p('s_branch L_role_ok')
    for w in range(4):
        pad(); p(f'L_A{w}:'); rroles.gen_A(p, w, cfg)
    for w in range(4):
        pad(); p(f'L_B{w}:'); rroles.gen_B(p, w, cfg)
    pad(); p('L_TB:'); troles.gen_TB(p, cfg)
    pad(); p('L_TA:'); troles.gen_TA(p, cfg)
    pad(); p('L_FFN:\ns_lshl_b32 s13, s13, 5\ns_add_u32 s11, s11, s13')
    wait_go(p, 7, slow_s)
    prof(p, cfg, 2)
    troles.gen_FFN(p, cfg)
    assert len(pads) in (0, NPAD)
    p('L_last:\ns_endpgm')
    body = p.finish(cfg.get('verbose'))
    hdr = open(os.path.join(os.path.dirname(os.path.abspath(__file__)), 'header.txt')).read()
    return hdr + f'''.amdgcn_target "amdgcn-amd-amdhsa--gfx950"
.text
.globl {KNAME}
.p2align 8
.type {KNAME},@function
{KNAME}:
''' + body + f'''.section .rodata,"a"
.p2align 6
.amdhsa_kernel {KNAME}
  .amdhsa_next_free_vgpr 512
  .amdhsa_next_free_sgpr 102
  .amdhsa_accum_offset 256
  .amdhsa_group_segment_fixed_size 0
  .amdhsa_kernarg_size 120
  .amdhsa_user_sgpr_count 2
  .amdhsa_user_sgpr_kernarg_segment_ptr 1
  .amdhsa_system_sgpr_workgroup_id_x 1
.end_amdhsa_kernel
'''

if __name__ == '__main__':
    cfg = json.loads(sys.argv[2]) if len(sys.argv) > 2 else {}
    cfg['verbose'] = 1
    s = gen(cfg)
    open(sys.argv[1], 'w').write(s)
    print(len(s), 'bytes')
```

```python
from common import *
import layout as L

def fast_poll(p, loads, chk, tmp, depth, space, spec, undo, switch, early=None, ci=None, behind=None):
    lab = p.uid('L_fp')
    assert not early or depth == 1
    p('s_mov_b32 s31, 0')
    for d in range(depth - 1):
        for l in loads: p(l)
        if space: p(f's_sleep {space}')
    for l in loads: p(l)
    if behind:
        assert depth == 1 and not early
        for l in behind: p(l)
        p(f's_waitcnt vmcnt({len(behind)})\ns_branch {lab}_c')
    p(f'{lab}_w:')
    ci = ci or chk_instrs(chk, tmp)
    if early:
        for x in early:
            p(x)
            if x.startswith('v_smf') and ci: p(ci.pop(0))
    else:
        p(f's_waitcnt vmcnt({len(loads) * (depth - 1)})')
    if behind: p(f'{lab}_c:')
    for x in ci: p(x)
    for x in spec: p(x)
    p(f's_cbranch_vccnz {lab}')
    def tail():
        p(f'{lab}:')
        p(f's_add_u32 s31, s31, 1\ns_cmp_ge_u32 s31, 48\ns_cbranch_scc1 {lab}_sw')
        p(f'{lab}_r:')
        for l in loads: p(l)
        for l in undo: p(l)
        p(f's_branch {lab}_w')
        p(f'{lab}_sw:')
        p(f's_cmp_gt_u32 s31, {TMO}\ns_cbranch_scc1 {FAIL}\ns_cmp_lg_u32 s31, 48\ns_cbranch_scc1 {lab}_r')
        p('s_waitcnt vmcnt(0)')
        for x in switch: p(x)
        for d in range(depth - 1):
            for l in loads: p(l)
        p(f's_branch {lab}_r')
    return tail

def quick_poll(p, loads, chk, tmp, depth, space, shadow, switch, unroll=4, gap=0):
    lab = p.uid('L_qp')
    p('s_mov_b32 s31, 0')
    for d in range(depth - 1):
        for l in loads: p(l)
        for q in range(0, space, 16): p(f's_nop {min(16, space - q) - 1}')
    p(f'{lab}:')
    for u in range(unroll):
        for l in loads: p(l)
        p(f's_waitcnt vmcnt({len(loads) * (depth - 1)})')
        for x in chk_instrs(chk, tmp): p(x)
        for x in shadow: p(x)
        p(f's_cbranch_vccz {lab}_go')
        if gap: p(f's_nop {gap - 1}')
    p(f's_add_u32 s31, s31, 1\ns_cmp_lt_u32 s31, 16\ns_cbranch_scc1 {lab}')
    p(f's_cmp_gt_u32 s31, {TMO}\ns_cbranch_scc1 {FAIL}\ns_cmp_lg_u32 s31, 16\ns_cbranch_scc1 {lab}')
    p('s_waitcnt vmcnt(0)')
    for x in switch: p(x)
    for d in range(depth - 1):
        for l in loads: p(l)
    p(f's_branch {lab}\n{lab}_go:')
    return lambda: None

def quick_poll2(p, loads, chk, tmp, depth, space, shadow, switch):
    lab = p.uid('L_q2')
    p('s_mov_b32 s31, 0')
    for d in range(depth - 1):
        for l in loads: p(l)
        for q in range(0, space, 16): p(f's_nop {min(16, space - q) - 1}')
    for l in loads: p(l)
    p(f'{lab}_w:\ns_waitcnt vmcnt({len(loads) * (depth - 1)})')
    for x in chk_instrs(chk, tmp): p(x)
    for x in shadow: p(x)
    p(f's_cbranch_vccnz {lab}')
    def tail():
        p(f'{lab}:')
        for l in loads: p(l)
        p(f's_add_u32 s31, s31, 1\ns_cmp_lt_u32 s31, 64\ns_cbranch_scc1 {lab}_w')
        p(f's_cmp_gt_u32 s31, {TMO}\ns_cbranch_scc1 {FAIL}\ns_cmp_lg_u32 s31, 64\ns_cbranch_scc1 {lab}_w')
        p('s_waitcnt vmcnt(0)')
        for x in switch: p(x)
        for d in range(depth):
            for l in loads: p(l)
        p(f's_branch {lab}_w')
    return tail

def hint_wait(p, reg, va, so, cfg, delay, w):
    lab = p.uid('L_hw')
    if w == cfg.get('hwave', 3):
        D = cfg.get('hdepth', 4)
        l = ld(f'v{reg}', va, so, n=1)
        p('s_mov_b32 s38, 0')
        for d in range(D - 1): p(l + f'\ns_nop {cfg.get("hgap", 7)}')
        p(f'{lab}:')
        for u in range(3):
            p(f'{l}\ns_waitcnt vmcnt({D - 1})\nv_cmp_eq_u32 vcc, -1, v{reg}\ns_cbranch_vccz {lab}_go')
        p(f's_add_u32 s38, s38, 1\ns_cmp_lt_u32 s38, 64\ns_cbranch_scc1 {lab}')
        p(f'{lab}_go:')
        while delay > 0:
            q = min(delay, 16); p(f's_nop {q - 1}'); delay -= q
    p('s_barrier')

def load_A_weights(p, vL16, rot):
    def Wh(i, q): return ar(8 * i + 4 * q, 4) if i < 32 else vr(120 + 8 * (i - 32) + 4 * q, 4)
    for T in range(7):
        for sg in range(7):
            i = T * 7 + sg; o = (T * 7 + rot(sg)) * 2048
            p(f's_add_u32 s14, s13, {o}')
            p(ld(Wh(i, 0), vL16, 's14')); p(ld(Wh(i, 1), vL16, 's14', 1024))

def load_B_weights(p, vL16, rot, lds_base, note=None):
    def Wh(i, q): return ar(8 * i + 4 * q, 4) if i < 32 else vr(176 + 8 * (i - 32) + 4 * q, 4)
    for hn in range(6):
        for sg in range(7):
            i = hn * 7 + sg; o = (hn * 7 + rot(sg)) * 2048
            p(f's_add_u32 s14, s13, {o}')
            p(ld(Wh(i, 0), vL16, 's14')); p(ld(Wh(i, 1), vL16, 's14', 1024))
    for k in range(7):
        if note and k == note[0]: note[1]()
        p(f's_add_u32 m0, {lds_base}, {k * 4096}\ns_add_u32 s14, s13, {84 * 1024 + k * 4096}')
        for j in range(4): p(lddma(vL16, 's14', j * 1024))

def idx_reg(p, IDX):
    p(f'v_bfe_u32 v5, v0, 1, 1\nv_mov_b32 v6, 0x4444\nv_mov_b32 v7, 0xeeee\nv_cmp_eq_u32 vcc, 1, v5\nv_cndmask_b32 v{IDX}, v6, v7, vcc')

def gen_A(p, w, cfg):
    LM, LT, LMm, LX = 0, 7168, 11264, 13312
    mA = lambda sg: 8 + 4 * sg
    acc = lambda T: 36 + 4 * T
    Sa = lambda t: 64 + 4 * t
    Hh = lambda t: 76 + 8 * t
    SEL2, SEL1, IDX = 100, 104, 106
    vL16, vH1, vH2, vSadd, vSrd, vPt, vX1, vT0, vT1, vMadd, vX2, vMrd, vNI = range(107, 120)
    def W(T, sg):
        i = T * 7 + sg
        return ar(8 * i, 8) if i < 32 else vr(120 + 8 * (i - 32), 8)
    P_, b = w >> 1, w & 1
    rot = lambda sg: L.slot_chunk(w, sg)
    p(f'v_lshlrev_b32 v{vL16}, 4, v0')
    p(f's_mul_i32 s13, s11, {4 * 98 * 1024}\ns_add_u32 s13, s13, {OFF_A + w * 98 * 1024}')
    load_A_weights(p, vL16, rot)
    p(f'v_lshrrev_b32 v1, 4, v0\nv_and_b32 v2, 15, v0\nv_and_b32 v3, 7, v0')
    idx_reg(p, IDX)
    p(f'v_mov_b32 v6, 0x3f80\nv_mov_b32 v7, 0x3f800000\nv_and_b32 v4, 1, v0\nv_cmp_eq_u32 vcc, 1, v4\nv_cndmask_b32 v6, v6, v7, vcc')
    p(f'v_lshrrev_b32 v4, 2, v2\nv_cmp_eq_u32 vcc, v4, v1\nv_cndmask_b32 v6, 0, v6, vcc')
    for hh in range(2):
        p(f'v_cmp_eq_u32 vcc, {hh}, v5')
        for q2 in range(2): p(f'v_cndmask_b32 v{SEL2 + 2 * hh + q2}, 0, v6, vcc')
    for q2 in range(2): p(f'v_mov_b32 v{SEL1 + q2}, v{SEL2 + 2 * b + q2}')
    p(f'v_add_u32 v4, {28 * P_ + 8 * b}, v1')
    p(f'v_and_b32 v5, 1, v1\nv_mul_u32_u24 v5, {24 - 16 - 4 * b}, v5\nv_lshrrev_b32 v7, 1, v1\nv_add_u32 v5, v5, v7\nv_add_u32 v5, {28 * P_ + 16 + 4 * b}, v5')
    emit_maddr(p, vH1, 4, 3, 6, 7); emit_maddr(p, vH2, 5, 3, 6, 7)
    p(f'v_lshlrev_b32 v6, 4, v2\nv_add_u32 v6, {LX}, v6\nv_lshl_add_u32 v{vX1}, v4, 9, v6\nv_lshl_add_u32 v{vX2}, v5, 9, v6')
    p(f'v_and_b32 v4, 1, v1\nv_lshrrev_b32 v5, 1, v1')
    p(f'v_lshlrev_b32 v7, 8, v1\nv_lshlrev_b32 v3, 3, v2\nv_add_u32 v7, v7, v3\nv_add_u32 v{vSadd}, {LT + w * 1024}, v7')
    p(f'v_lshlrev_b32 v7, 7, v4\nv_add_u32 v7, v7, v3\nv_add_u32 v{vSrd}, {LT + 2 * w * 128}, v7')
    p(f'v_lshlrev_b32 v7, 7, v1\nv_lshlrev_b32 v3, 2, v2\nv_add_u32 v7, v7, v3\nv_add_u32 v{vMadd}, {LMm + w * 512}, v7')
    p(f'v_lshlrev_b32 v7, 6, v4\nv_add_u32 v7, v7, v3\nv_add_u32 v{vMrd}, {LMm + 2 * w * 64}, v7')
    p(f's_lshl_b32 s13, s11, 10\ns_add_u32 s13, s13, {w * 256}')
    p(f'v_lshrrev_b32 v6, 2, v2\nv_lshlrev_b32 v6, 5, v6\nv_lshl_add_u32 v6, v4, 4, v6')
    p(f'v_and_b32 v7, 3, v2\nv_lshl_add_u32 v6, v7, 2, v6\nv_add_u32 v{vPt}, s13, v6')
    p(f's_add_u32 s13, s13, 128\nv_bfe_u32 v6, v2, 2, 1\nv_lshlrev_b32 v6, 4, v6\nv_lshl_add_u32 v6, v4, 3, v6\nv_bfe_u32 v7, v2, 1, 1\nv_lshl_add_u32 v6, v7, 2, v6\nv_add_u32 v6, s13, v6')
    if cfg.get('pfill', 1):
        p(f'v_and_b32 v3, 1, v2\nv_lshrrev_b32 v7, 3, v2\nv_lshl_add_u32 v3, v7, 1, v3\nv_lshl_add_u32 v6, v3, 5, v6\nv_mov_b32 v7, 0x7ffffff0')
    else:
        p(f'v_and_b32 v3, 9, v2\nv_mov_b32 v7, 0x7ffffff0\nv_cmp_eq_u32 vcc, 0, v3\nv_cndmask_b32 v6, v7, v6, vcc')
    p(f'v_cmp_eq_u32 vcc, 1, v5\nv_cndmask_b32 v{vPt}, v{vPt}, v6, vcc')
    p(f's_lshl_b32 s13, s11, 2\nv_mov_b32 v5, s13\nv_cmp_eq_u32 vcc, 0, v0\nv_cndmask_b32 v5, v7, v5, vcc')
    p(f'v_min_u32 v4, 13, v2\nv_lshlrev_b32 v4, 2, v4\nv_lshrrev_b32 v1, 4, v0\nv_lshl_add_u32 v4, v1, 7, v4\nv_mov_b32 v1, 0\nv_mov_b32 v3, 0\ns_mov_b32 s23, 0x7ffffff0')
    two = cfg.get('sm2', 0)
    if two:
        p(f'v_lshrrev_b32 v1, 4, v0\nv_lshlrev_b32 v7, 7, v1\nv_lshlrev_b32 v6, 3, v2\nv_add_u32 v7, v7, v6\nv_add_u32 v{vSrd}, {LT + (w & 1) * 512}, v7')
        p(f'v_lshlrev_b32 v7, 6, v1\nv_lshlrev_b32 v6, 2, v2\nv_add_u32 v7, v7, v6\nv_add_u32 v{vMrd}, {LMm + (w & 1) * 256}, v7')
        p(f's_lshl_b32 s13, s11, 10\ns_add_u32 s13, s13, {(w & 1) * 512}\nv_lshrrev_b32 v4, 1, v1\nv_lshlrev_b32 v4, 8, v4\nv_add_u32 v4, s13, v4\nv_and_b32 v1, 1, v1')
        p(f'v_lshrrev_b32 v6, 2, v2\nv_lshl_add_u32 v6, v6, 5, v4\nv_lshl_add_u32 v6, v1, 4, v6\nv_and_b32 v7, 3, v2\nv_lshl_add_u32 v{vPt}, v7, 2, v6')
        p(f'v_bfe_u32 v6, v2, 2, 1\nv_lshl_add_u32 v6, v6, 4, v4\nv_lshl_add_u32 v6, v1, 3, v6\nv_bfe_u32 v7, v2, 1, 1\nv_lshl_add_u32 v6, v7, 2, v6')
        p(f'v_and_b32 v7, 1, v2\nv_lshrrev_b32 v1, 3, v2\nv_lshl_add_u32 v7, v1, 1, v7\nv_lshl_add_u32 v6, v7, 5, v6\nv_add_u32 v5, 128, v6\nv_mov_b32 v1, 0\nv_mov_b32 v2, 0')
    if two and cfg.get('pc', 0):
        p(f'v_and_b32 v2, 15, v0\nv_lshrrev_b32 v1, 4, v0\nv_lshrrev_b32 v4, 1, v1\nv_and_b32 v1, 1, v1')
        p(f's_lshl_b32 s13, s11, 9\ns_add_u32 s13, s13, {(w & 1) * 256}\nv_lshlrev_b32 v6, 7, v4\nv_add_u32 v6, s13, v6')
        p(f'v_lshrrev_b32 v7, 2, v2\nv_lshl_add_u32 v6, v7, 5, v6\nv_lshl_add_u32 v6, v1, 4, v6\nv_and_b32 v7, 3, v2\nv_lshl_add_u32 v{vPt}, v7, 2, v6')
        p(f's_lshl_b32 s13, s11, 7\ns_add_u32 s13, s13, {8192 + (w & 1) * 64}\nv_lshlrev_b32 v6, 5, v4\nv_add_u32 v6, s13, v6')
        p(f'v_bfe_u32 v7, v2, 2, 1\nv_lshl_add_u32 v6, v7, 4, v6\nv_lshl_add_u32 v6, v1, 3, v6\nv_bfe_u32 v7, v2, 1, 1\nv_lshl_add_u32 v6, v7, 2, v6')
        p(f'v_and_b32 v7, 9, v2\nv_cmp_eq_u32 vcc, 0, v7\nv_mov_b32 v7, 0x7ffffff0\nv_cndmask_b32 v5, v7, v6, vcc\nv_mov_b32 v1, 0\nv_mov_b32 v2, 0')
    ax = cfg.get('ax', 0) and two
    if ax:
        p(f'v_lshlrev_b32 v7, 3, v0\nv_add_u32 v{vSadd}, {LT + w * 512}, v7')
        p(f'v_lshrrev_b32 v7, 5, v0\nv_lshlrev_b32 v7, 7, v7\nv_and_b32 v6, 15, v0\nv_lshl_add_u32 v7, v6, 3, v7\nv_bfe_u32 v6, v0, 4, 1\nv_lshl_add_u32 v7, v6, 2, v7')
        p(f'v_add_u32 v{vSrd}, {LT + (w & 1) * 256}, v7')
    p(f'v_mov_b32 v{vNI}, 0xff800000')
    p('s_mov_b32 s16, 0xff00ff00\ns_mov_b32 s17, 0xff00ff00')
    p('s_mov_b32 s18, 0\ns_mov_b32 s19, -1\ns_mov_b32 s35, 0x42800000\ns_mov_b32 s34, 0xfffffffe')
    t0, t1 = rot(0), rot(1)
    p(f's_mov_b32 s25, {OFF_MF}\ns_mov_b32 s26, {OFF_MS0}\ns_mov_b32 s22, {OFF_PF}\ns_mov_b32 s24, {OFF_XN + w * 7168}')
    def xgroups(sbuf):
        g = []
        for k in range(7):
            cur = []
            if (k & 3) == 0: cur.append(f's_add_u32 m0, {sbuf}, {LX + w * 7168 + (k >> 2) * 4096}')
            cur.append(lddma(vL16, 's24', (k & 3) * 1024))
            if k == 3: cur.append('s_add_u32 s24, s24, 4096')
            if k == 6: cur.append(f's_add_u32 s24, s24, {28672 - 4096}')
            g.append(cur)
        return g
    wait_go(p, 3 if cfg.get('prep2', 1) else 7, 4, 36)
    p('s_mov_b32 s32, 0\ns_mov_b32 s33, 28672')
    for g_ in xgroups('s32'):
        for x in g_: p(x)
    for r in range(36, 76): p(f'v_mov_b32 v{r}, 0')
    p('s_mov_b32 s30, 0\ns_waitcnt vmcnt(0) lgkmcnt(0)\ns_barrier')
    prof(p, cfg, 3)
    rstamp_cal(p, cfg, 0)
    if cfg.get('padstart'):
        lp = p.uid('L_ps')
        p(f'{lp}:\ns_memrealtime s[96:97]\ns_waitcnt lgkmcnt(0)\ns_sub_u32 s96, s96, s100\ns_cmp_lt_u32 s96, {cfg["padstart"]}\ns_cbranch_scc1 {lp}')
    loop = p.uid('L_Aloop')
    p(f'{loop}:')
    p(f's_add_u32 s20, s25, {t0 * 1024}\ns_add_u32 s21, s25, {t1 * 1024}')
    hint = cfg.get('hint', 1)
    if cfg.get('a_delay'): p(f's_sleep {cfg["a_delay"]}')
    if cfg.get('a_fine'): p(f's_nop {cfg["a_fine"] - 1}')
    if hint:
        p(f's_add_u32 s27, s25, {EM_OFF}')
        hint_wait(p, 6, 4, 's27', cfg, cfg.get('ah_delay', 0), w)
    chk = [mA(0) + i for i in range(8)]
    def qs(T, sg): return f'{SMF} {vr(acc(T), 4)}, {vr(mA(sg), 4)}, {W(T, sg)}, v{IDX}'
    seq = [(T, 0) for T in range(7)] + [(T, 1) for T in range(7)]
    wr = [dsw(vL16, vr(mA(0), 4), LM + t0 * 1024)]
    if w != 3: wr.append(dsw(vL16, vr(mA(1), 4), LM + t1 * 1024))
    loads = [ld(vr(mA(0), 4), vL16, 's20'), ld(vr(mA(1), 4), vL16, 's21')]
    npre = cfg.get('npre', 7); wpos = cfg.get('wpos', 2)
    pstore = st('v3', vPt, 's23', 0, 'sc1')
    if two: pstore = (pstore + '\n' + st('v2', 5, 's23', 0, 'sc1')) if w < 2 else 's_nop 0'
    sw = [pstore, f's_add_u32 s20, s26, {t0 * 1024}', f's_add_u32 s21, s26, {t1 * 1024}']
    if cfg.get('quick', 1):
        one = w == 3 and cfg.get('w3one', 1)
        if one: loads = loads[:1]
        ck = [mA(0) + 3] if one else [mA(0) + 3, mA(1) + 3]
        if cfg.get('quick', 1) == 2:
            tailA = quick_poll2(p, loads, ck, vT0, cfg.get('depth', 2), cfg.get('qspace', 24), wr[:cfg.get('ashadow', 1)], sw)
        else:
            tailA = quick_poll(p, loads, ck, vT0, cfg.get('depth', 2), cfg.get('qspace', 24), wr[:cfg.get('ashadow', 1)], sw, gap=cfg.get('agap', 0))
        rstamp(p, cfg, 0)
        rest_w = wr[cfg.get('ashadow', 1):]
        for i, a in enumerate(seq[:npre]):
            p(qs(*a))
            if rest_w and i in (0 if len(rest_w) == 2 else -1, wpos): p(rest_w.pop(0))
            if i == cfg.get('pspos', 4): p(pstore)
        assert not rest_w
    elif cfg.get('early', 1):
        ea = ['s_waitcnt vmcnt(1)', qs(*seq[0]), wr[0], 's_waitcnt vmcnt(0)', qs(*seq[1]), qs(*seq[2])] + wr[1:] + [qs(*seq[3]), qs(*seq[4])]
        tailA = fast_poll(p, loads, chk, vT0, 1, 0, [qs(*seq[5])], [f'v_mov_b32 v{r}, 0' for r in range(36, 60)], sw, early=ea)
        rstamp(p, cfg, 0)
        for a in seq[6:npre]: p(qs(*a))
    else:
        tailA = fast_poll(p, loads, chk, vT0, cfg.get('depth', 2), cfg.get('space', 2), [qs(*seq[0]), wr[0]],
                          [f'v_mov_b32 v{r}, 0' for r in range(36, 40)], sw)
        rstamp(p, cfg, 0)
        for i, a in enumerate(seq[1:npre]):
            p(qs(*a))
            if i == wpos - 1 and len(wr) > 1: p(wr[1])
    p('s_waitcnt lgkmcnt(0)\ns_barrier')
    rstamp(p, cfg, 1)
    def hreads(blk):
        r = []
        va, st_ = (vH1, 512) if blk == 0 else (vH2, 256)
        vx = vX1 if blk == 0 else vX2
        for p3 in range(2): r.append(dsr(vr(Hh(0) + 4 * p3, 4), va, LM + p3 * st_))
        for tile in range(2):
            for p3 in range(2): r.append(dsr(vr(Hh(1 + tile) + 4 * p3, 4), vx, p3 * st_ * 4 + tile * 256))
        return r
    if w == 3 and cfg.get('quick', 1) and cfg.get('w3one', 1):
        assert npre == 7
        mr = [dsr(vr(mA(sg), 4), vL16, LM + rot(sg) * 1024) for sg in range(1, 7)]
        for x in mr: p(x)
        p('s_waitcnt lgkmcnt(5)')
        for a in seq[npre:]: p(qs(*a))
    else:
        mr = [dsr(vr(mA(sg), 4), vL16, LM + rot(sg) * 1024) for sg in range(2, 7)]
        p(mr[0]); p(mr[1])
        mi = 2
        for a in seq[npre:]:
            p(qs(*a))
            if mi < 5: p(mr[mi]); mi += 1
        for x in mr[mi:]: p(x)
    fine = cfg.get('finew', 1) and not (cfg.get('rprof') and 1 in cfg.get('stamps', range(6)))
    if not fine: p('s_waitcnt lgkmcnt(0)')
    def cvt_pair(T):
        a = acc(T); return [cvt(a, a), cvt(a + 1, a + 2), cvt(a + 2, a + 4), cvt(a + 3, a + 6)]
    def tr_pair(T): return f'{MF32} {vr(acc(T + 1), 4)}, {vr(acc(T), 4)}, {vr(SEL2, 4)}, 0'
    def cvt_D(src, dst): return [cvt(dst, src), cvt(dst + 1, src + 2)]
    A2 = [acc(0), acc(4)]
    def sm(blk, t): return f'{SMF} {vr(Sa(t), 4)}, {vr(A2[blk], 4)}, {vr(Hh(t), 8)}, v{IDX}'
    fill = {k: [] for k in range(36)}
    if not cfg.get('xskip'):
        x0, xs = cfg.get('x0', 0), cfg.get('xs', 4)
        for i, g_ in enumerate(xgroups('s33')): fill[x0 + xs * i + (w if xs >= 4 else w % xs)] += g_
    hr = hreads(0)
    h0 = 5 if fine else 1
    for i in range(6): fill[h0 + i].append(hr[i])
    c0, c2, c4 = cvt_pair(0), cvt_pair(2), cvt_pair(4)
    tailv = cfg.get('tailv', 1)
    fill[9] += c0[:1]; fill[10] += c0[1:2]; fill[14] += c0[2:3]; fill[15] += c0[3:]
    fill[17] += [tr_pair(0)]
    fill[19] += c2[:1]; fill[20] += c2[1:2]
    fill[22] += cvt_D(acc(1), A2[0])[:1]; fill[23] += cvt_D(acc(1), A2[0])[1:]
    if tailv == 0:
        fill[24] += c2[2:3]; fill[25] += c2[3:]
        fill[27] += [tr_pair(2)]
        fill[29] += c4[:1]; fill[30] += c4[1:2]
        fill[32] += cvt_D(acc(3), A2[0] + 2)[:1]; fill[33] += cvt_D(acc(3), A2[0] + 2)[1:]
    else:
        fill[24] += c2[2:3]; fill[25] += c2[3:]
        fill[26] += ['s_nop 0', tr_pair(2)]
        fill[27] += c4[:1]; fill[28] += c4[1:2]
        N = 's_nop 0'
        fill[29] += [N]
        fill[30] += [N] + cvt_D(acc(3), A2[0] + 2)[:1]; fill[31] += [N] + cvt_D(acc(3), A2[0] + 2)[1:]
        fill[32] += [N] + c4[2:3]; fill[33] += c4[3:]
    k = 0
    for T in range(7):
        for sg in range(2, 7):
            if fine and T == 0: p(f's_waitcnt lgkmcnt({6 - sg})')
            p(qs(T, sg))
            for x in fill[k]: p(x)
            k += 1
    eflag = []
    epos = 9
    h2 = hreads(1)
    a6 = acc(6)
    MFs = f'{MF16} {vr(acc(1), 4)}, {vr(a6, 2)}, {vr(SEL1, 2)}, 0'
    if tailv == 0:
        p(c4[2]); p(c4[3])
        p('s_waitcnt lgkmcnt(0)')
        p(sm(0, 0)); p(tr_pair(4)); p(h2[0]); p(h2[1])
        p(cvt(a6, a6)); p(cvt(a6 + 1, a6 + 2))
        p(sm(0, 1)); p(h2[2])
        p(MFs)
        p(h2[3])
        p(sm(0, 2)); p(h2[4]); p(h2[5])
        for x in cvt_D(acc(5), A2[1]): p(x)
        for x in cvt_D(acc(1), A2[1] + 2): p(x)
    else:
        p('s_waitcnt lgkmcnt(0)\ns_nop 0')
        p(sm(0, 0)); p(h2[0]); p(h2[1]); p('s_nop 0')
        p(tr_pair(4)); p('s_nop 0')
        p(cvt(a6, a6)); p(cvt(a6 + 1, a6 + 2))
        p(MFs)
        p('s_nop 0\ns_nop 0')
        p(sm(0, 1)); p(h2[2]); p(h2[3]); p(cvt_D(acc(5), A2[1])[0])
        p(sm(0, 2)); p(h2[4]); p(h2[5]); p(cvt_D(acc(5), A2[1])[1])
        for x in cvt_D(acc(1), A2[1] + 2): p(x)
    lk = (lambda n: 0) if (cfg.get('rprof') and 3 in cfg.get('stamps', range(6))) else (lambda n: n)
    p('s_waitcnt lgkmcnt(4)'); p(sm(1, 0))
    p('s_waitcnt lgkmcnt(2)'); p(sm(1, 1))
    p('s_waitcnt lgkmcnt(0)'); p(sm(1, 2))
    rstamp(p, cfg, 2)
    if epos == -1:
        for x in eflag: p(x)
    m_, t0_, t1_ = Sa(0), Sa(1), Sa(2)
    if ax:
        for t_, r in enumerate((m_, t0_, t1_)):
            p(f'v_pk_add_f32 v[{r}:{r + 1}], v[{r}:{r + 1}], v[{r + 2}:{r + 3}]'); p(dsw(vSadd, vr(r, 2), t_ * 2048, 2))
    else:
        p(f'v_pk_add_f32 v[{m_}:{m_ + 1}], v[{m_}:{m_ + 1}], v[{m_ + 2}:{m_ + 3}]')
        p(f'v_add_f32 v36, v{t0_}, v{t0_ + 2}\nv_add_f32 v38, v{t0_ + 1}, v{t0_ + 3}')
        p(f'ds_write2_b32 v{vMadd}, v{m_}, v{m_ + 1} offset0:0 offset1:16')
        p(f'v_add_f32 v37, v{t1_}, v{t1_ + 2}\nv_add_f32 v39, v{t1_ + 1}, v{t1_ + 3}')
        p(f'ds_write2_b64 v{vSadd}, v[36:37], v[38:39] offset0:0 offset1:16')
    p('s_waitcnt lgkmcnt(0)\ns_barrier')
    rstamp(p, cfg, 3)
    real = p
    if two and w >= 2: p = lambda t: None
    if ax:
        p(f'ds_read2st64_b32 v[84:85], v{vSrd} offset0:0 offset1:2\nds_read2st64_b32 v[86:87], v{vSrd} offset0:4 offset1:6')
        for wv in range(4): p(f'ds_read2st64_b32 {vr(76 + 2 * wv, 2)}, v{vSrd} offset0:{8 + 2 * wv} offset1:{16 + 2 * wv}')
    else:
        p(f'ds_read2st64_b32 v[84:85], v{vMrd} offset0:0 offset1:2\nds_read2st64_b32 v[86:87], v{vMrd} offset0:4 offset1:6')
        for wv in range(4): p(dsr(vr(76 + 2 * wv, 2), vSrd, wv * 1024, 2))
    if epos == 0:
        for x in eflag: p(x)
    p(f's_waitcnt lgkmcnt({lk(4)})')
    p('v_pk_add_f32 v[84:85], v[84:85], v[86:87]\nv_add_f32 v84, v84, v85')
    s0, s1, s2 = 84, 76, 77
    e0, e1, e2 = 85, 78, 79
    p(f'v_exp_f32 v{e0}, v{s0}')
    p(f's_waitcnt lgkmcnt({lk(2)})')
    p('v_pk_add_f32 v[76:77], v[76:77], v[78:79]')
    p(f'v_cndmask_b32 v{e0}, v{e0}, 0, s[16:17]')
    p('s_waitcnt lgkmcnt(0)')
    p('v_pk_add_f32 v[80:81], v[80:81], v[82:83]\nv_pk_add_f32 v[76:77], v[76:77], v[80:81]')
    rstamp(real, cfg, 4)
    if epos == 1:
        for x in eflag: p(x)
    lab = real.uid('L_sm')
    p(f'v_max3_f32 v{vT0}, abs(v{s0}), abs(v{s1}), abs(v{s2})')
    p(f'v_cmp_nge_f32 vcc, s35, v{vT0}')
    p(f'v_exp_f32 v{e1}, v{s1}\nv_exp_f32 v{e2}, v{s2}')
    p(f's_cbranch_vccnz {lab}_max\n{lab}:')
    p(f'v_add_f32 v{vT0}, v{e0}, v{e1}\nv_add_f32 v{vT0}, v{vT0}, v{e2}')
    p(f'v_mov_b32_dpp v{vT1}, v{e0} quad_perm:[1,0,3,2] {DPP}')
    if two:
        p(f'v_mov_b32 v86, v{e0}')
        for sh in (8, 4, 2, 1): p(f'v_add_f32_dpp v{vT0}, v{vT0}, v{vT0} row_ror:{sh} {DPP}')
        p(f'v_rcp_f32 v{vT0}, v{vT0}')
        p(f'v_mul_f32 v{e1}, v{e1}, v{vT0}\nv_mul_f32 v{e2}, v{e2}, v{vT0}')
        p(f'v_cvt_pk_bf16_f32 v3, v{e1}, v{e2}\nv_min_u32 v3, s34, v3')
        p(st('v3', vPt, 's22'))
        p(f'v_mul_f32 v86, v86, v{vT0}\nv_mul_f32 v{vT1}, v{vT1}, v{vT0}')
        p(f'v_cvt_pk_bf16_f32 v2, v86, v{vT1}\nv_min_u32 v2, s34, v2')
        p(st('v2', 5, 's22'))
        p = real
        rstamp(p, cfg, 5)
        p(f's_add_u32 s23, s22, {OFF_PS - OFF_PF}')
    else:
        p(f'v_cndmask_b32 v{e1}, v{e1}, v{e0}, s[18:19]')
        p(f'v_add_f32_dpp v{vT0}, v{vT0}, v{vT0} row_ror:8 {DPP}')
        p(f'v_cndmask_b32 v{e2}, v{e2}, v{vT1}, s[18:19]')
        for sh in (4, 2, 1): p(f'v_add_f32_dpp v{vT0}, v{vT0}, v{vT0} row_ror:{sh} {DPP}')
        p(f'v_rcp_f32 v{vT0}, v{vT0}')
        p(f'v_mul_f32 v{e1}, v{e1}, v{vT0}\nv_mul_f32 v{e2}, v{e2}, v{vT0}')
        p(f'v_cvt_pk_bf16_f32 v{e1}, v{e1}, v{e2}\nv_min_u32 v{e1}, s34, v{e1}')
        p(st(f'v{e1}', vPt, 's22'))
        rstamp(p, cfg, 5)
        p(f's_add_u32 s23, s22, {OFF_PS - OFF_PF}\nv_mov_b32 v3, v{e1}')
    if two and w >= 2 and cfg.get('a_delay'): p(f's_sleep {cfg.get("a_delay2", 4)}')
    if cfg.get('pspos', 4) == -1: p(pstore)
    for r in range(36, 76): p(f'v_mov_b32 v{r}, 0')
    if cfg.get('pspos', 4) == -2: p(pstore)
    p(f's_sub_u32 s36, s33, s32\nv_add_u32 v{vX1}, s36, v{vX1}\nv_add_u32 v{vX2}, s36, v{vX2}\ns_mov_b32 s36, s32\ns_mov_b32 s32, s33\ns_mov_b32 s33, s36')
    p(f's_add_u32 s25, s25, 8192\ns_add_u32 s26, s25, {OFF_MS - OFF_MF}\ns_add_u32 s22, s22, {PSLOT}')
    rstamp_flush(p, cfg, w, 84)
    if cfg.get('sprof') and w == 0:
        p('s_memtime s[88:89]\ns_memrealtime s[90:91]\ns_lshl_b32 s36, s30, 3\ns_add_u32 s36, s36, 131072\nv_mov_b32 v84, s36\ns_waitcnt lgkmcnt(0)\nv_mov_b32 v86, s88\nv_mov_b32 v87, s90\nds_write_b64 v84, v[86:87]')
    p(f's_add_u32 s30, s30, 1\ns_cmp_lt_u32 s30, {NSTEP}\ns_cbranch_scc1 {loop}')
    p(pstore)
    if cfg.get('sprof') and w == 0:
        p(f's_waitcnt vmcnt(0) lgkmcnt(0)\nv_lshlrev_b32 v2, 3, v0\nv_add_u32 v3, 131072, v2\nds_read_b64 v[8:9], v3\ns_lshl_b32 s36, s11, 9\ns_add_u32 s36, s36, {OFF_PROF + 131072}\ns_waitcnt lgkmcnt(0)')
        p(st('v[8:9]', 2, 's36', n=2))
    rstamp_dump(p, cfg, w)
    p('s_branch L_exit')
    tailA()
    if two and w >= 2: return
    p(f'{lab}_max:')
    p(f'v_cndmask_b32 v{s0}, v{s0}, v{vNI}, s[16:17]')
    p(f'v_max3_f32 v{vT0}, v{s0}, v{s1}, v{s2}')
    for sh in (8, 4, 2, 1): p(f'v_max_f32_dpp v{vT0}, v{vT0}, v{vT0} row_ror:{sh} {DPP}')
    for s_ in (s0, s1, s2): p(f'v_sub_f32 v{s_}, v{s_}, v{vT0}')
    for e_, s_ in ((e0, s0), (e1, s1), (e2, s2)): p(f'v_exp_f32 v{e_}, v{s_}')
    p(f's_branch {lab}')

def y_phase(p, mA, Ya, Ww, W, IDX, vLW, rot, extra, Yop, mid=None, transpose=False, dense=0, pre_mid=()):
    def wread(sg):
        return [dsr(vr(Ww(2 * sg + nt) + 4 * q_, 4), vLW, ((nt * 7 + rot(sg)) * 2 + q_) * 1024) for nt in range(2) for q_ in range(2)]
    def fin(hh, nt):
        a = Ya(hh, nt)
        return [f'v_pk_add_f32 v[{a}:{a + 1}], v[{a}:{a + 1}], v[{a + 2}:{a + 3}]', cvt(Yop(nt) + ph[hh], a)]
    ph = (0, 2, 1, 3) if transpose else (0, 1, 2, 3)
    vi = iter(extra)
    cnt = [0]
    def after():
        cnt[0] += 1
        if dense and cnt[0] % dense == 0:
            x = next(vi, None)
            if x: p(x)
    for sg in range(7):
        if sg >= 2: p('s_waitcnt lgkmcnt(4)' if sg < 6 else 's_waitcnt lgkmcnt(0)')
        for nt in range(2):
            p(f'{SMF} {vr(Ya(3, nt), 4)}, {vr(mA(sg), 4)}, {vr(Ww(2 * sg + nt), 8)}, v{IDX}'); after()
        wrd = wread(sg + 2) if sg + 2 < 7 else []
        if sg == 0 and mid: wrd = []
        for hh in range(3):
            for nt in range(2):
                p(f'{SMF} {vr(Ya(hh, nt), 4)}, {vr(mA(sg), 4)}, {W(hh, nt, sg)}, v{IDX}')
                if wrd: p(wrd.pop(0))
                after()
                if not dense and (hh, nt) in ((0, 1), (2, 1)) and not (sg == 0 and mid):
                    x = next(vi, None)
                    if x: p(x)
        if sg == 0 and mid:
            for x in list(pre_mid) + mid + wread(2): p(x)
    for x in vi: p(x)
    for hh in (3, 0, 1, 2):
        for nt in range(2): p(fin(hh, nt)[0])
    for hh in (3, 0, 1, 2):
        for nt in range(2): p(fin(hh, nt)[1])
    if transpose:
        for nt in range(2):
            for a, b in ((0, 2), (1, 3)): p(f'{SW32} v{Yop(nt) + ph[a]}, v{Yop(nt) + ph[b]}')
        for nt in range(2):
            for a, b in ((0, 1), (2, 3)): p(f'{SW16} v{Yop(nt) + ph[a]}, v{Yop(nt) + ph[b]}')

def gen_B(p, w, cfg):
    LM, LO, LW = 0, 7168, 12288
    mA = lambda sg: 8 + 4 * sg
    Ya = lambda hh, nt: 36 + 8 * hh + 4 * nt
    Yop = lambda nt: 68 + 4 * nt
    Vi = lambda u, nt: 84 + 16 * u + 8 * nt
    Pt = lambda u: 116 + 4 * u
    Pm = 124
    Oa = lambda nt: 128 + 4 * nt
    Ww = lambda i: 136 + 8 * (i & 3)
    IDX, vL16, vPt, vPm, vOadd, vOrd, vL8, vLW = range(168, 176)
    vT0, vM, vF, vZ = 6, 5, 7, 4
    vEw, vEr, vEm = 76, 77, 78
    hint = cfg.get('hint', 1)
    lk = (lambda n: 0) if (cfg.get('rprof') and 4 in cfg.get('stamps', range(6))) else (lambda n: n)
    rot = lambda sg: L.slot_chunk(w, sg)
    def W(hh, nt, sg):
        i = (hh * 2 + nt) * 7 + sg
        return ar(8 * i, 8) if i < 32 else vr(176 + 8 * (i - 32), 8)
    p(f'v_lshlrev_b32 v{vL16}, 4, v0')
    p(f's_mul_i32 s13, s11, {4 * 112 * 1024}\ns_add_u32 s13, s13, {OFF_B + w * 112 * 1024}\ns_mov_b32 s15, {LW + w * 28672}')
    if cfg.get('b_hold'): p(f's_sleep {cfg["b_hold"]}')
    def announce():
        lab0 = p.uid('L_go3')
        p(f's_cmp_lg_u32 s11, 0\ns_cbranch_scc1 {lab0}\ns_mov_b32 s14, {OFF_GO3}\ns_mov_b64 exec, 1\nv_mov_b32 v1, 0\nv_mov_b32 v2, 1')
        p(st('v2', 1, 's14', 0, 'sc1') + f'\ns_mov_b64 exec, -1\n{lab0}:')
    load_B_weights(p, vL16, rot, 's15', (cfg.get('go3', 3), announce) if w == 0 else None)
    p(f'v_add_u32 v{vLW}, {LW + w * 28672}, v{vL16}')
    idx_reg(p, IDX)
    p(f'v_lshrrev_b32 v1, 4, v0\nv_and_b32 v2, 15, v0')
    p(f'v_lshrrev_b32 v4, 2, v2\nv_lshlrev_b32 v4, 8, v4\nv_add_u32 v4, {w * 4096}, v4\nv_and_b32 v6, 3, v0')
    p(f'v_lshl_add_u32 v{vPm}, v6, 3, v4\nv_lshl_add_u32 v{vPm}, v1, 10, v{vPm}\nv_add_u32 v{vPm}, 128, v{vPm}')
    p(f'v_lshl_add_u32 v4, v6, 4, v4\nv_lshrrev_b32 v6, 1, v1\nv_lshl_add_u32 v4, v6, 10, v4\nv_and_b32 v6, 1, v1\nv_lshl_add_u32 v{vPt}, v6, 6, v4')
    p(f'v_mul_u32_u24 v4, 320, v1\nv_lshlrev_b32 v6, 2, v2\nv_add_u32 v4, v4, v6\nv_add_u32 v{vOadd}, {LO + w * 1280}, v4')
    p(f'v_lshlrev_b32 v4, 1, v1\nv_bfe_u32 v6, v0, 2, 1\nv_add_u32 v4, v4, v6\nv_mul_u32_u24 v4, 160, v4\nv_bfe_u32 v6, v0, 3, 1\nv_lshlrev_b32 v6, 5, v6\nv_and_b32 v7, 3, v0\nv_lshlrev_b32 v7, 3, v7')
    p(f'v_add3_u32 v4, v4, v6, v7\nv_add_u32 v{vOrd}, {LO + (w & 1) * 64}, v4')
    p(f's_lshl_b32 s13, s11, 2\ns_add_u32 s13, s13, {128 * w}\nv_mov_b32 v{vEw}, s13\nv_mov_b32 v7, 0x7ffffff0\nv_cmp_eq_u32 vcc, 0, v0\nv_cndmask_b32 v{vEw}, v7, v{vEw}, vcc')
    p(f'v_lshlrev_b32 v{vEr}, 2, v2\nv_min_u32 v4, 13, v2\nv_lshlrev_b32 v4, 2, v4\nv_lshl_add_u32 v{vEm}, v1, 7, v4')
    p(f'v_lshlrev_b32 v{vL8}, 2, v0\nv_add_u32 v{vL8}, {(w & 1) * 256}, v{vL8}')
    if cfg.get('pc', 0):
        p(f'v_lshlrev_b32 v{vPm}, 3, v0\nv_add_u32 v{vPm}, {8192 + w * 512}, v{vPm}')
        p(f'v_lshrrev_b32 v4, 2, v2\nv_lshlrev_b32 v4, 7, v4\nv_add_u32 v4, {w * 2048}, v4\nv_and_b32 v6, 3, v0\nv_lshl_add_u32 v4, v6, 4, v4')
        p(f'v_lshrrev_b32 v6, 1, v1\nv_lshl_add_u32 v4, v6, 9, v4\nv_and_b32 v6, 1, v1\nv_lshl_add_u32 v{vPt}, v6, 6, v4')
    bx = cfg.get('bx', 0)
    if bx:
        p(f'v_mul_u32_u24 v4, 136, v1\nv_lshl_add_u32 v4, v2, 3, v4\nv_add_u32 v{vOadd}, {LO + w * 1088}, v4')
        p(f'v_mul_u32_u24 v4, 136, v1\nv_bfe_u32 v6, v0, 3, 1\nv_lshl_add_u32 v4, v6, 6, v4\nv_and_b32 v6, 3, v0\nv_lshl_add_u32 v4, v6, 4, v4')
        p(f'v_bfe_u32 v6, v0, 2, 1\nv_lshl_add_u32 v4, v6, 2, v4\nv_add_u32 v{vOrd}, {LO + (w & 1) * 544}, v4')
        for k in range(3): p(f'v_add_u32 v{81 + k}, {1088 * (k + 1)}, v{vOrd}')
    one = cfg.get('b1', 0)
    if one:
        p(f'v_bfe_u32 v4, v0, 3, 2\nv_lshlrev_b32 v4, 1, v4\nv_bfe_u32 v6, v0, 1, 1\nv_add_u32 v4, v4, v6\nv_mul_u32_u24 v4, 160, v4')
        p(f'v_lshrrev_b32 v6, 5, v0\nv_lshl_add_u32 v4, v6, 6, v4\nv_bfe_u32 v6, v0, 2, 1\nv_lshl_add_u32 v4, v6, 5, v4\nv_and_b32 v6, 1, v0\nv_lshl_add_u32 v4, v6, 4, v4')
        p(f'v_add_u32 v{vOrd}, {LO}, v4\nv_lshlrev_b32 v{vL8}, 3, v0\nv_mov_b32 v80, 0\nv_mov_b32 v81, 0')
    p(f's_mov_b32 s34, 0xfffffffe\nv_mov_b32 v{vZ}, 0\nv_mov_b32 v{vM}, 0')
    t0, t1 = rot(0), rot(1)
    p(f's_mov_b32 s25, {OFF_MF}\ns_mov_b32 s26, {OFF_MS0}\ns_mov_b32 s27, {OFF_PF}')
    p(f's_mul_i32 s13, s11, 32768\ns_add_u32 s24, s13, {OFF_V + w * 8192}')
    p(f's_lshl_b32 s13, s11, 9\ns_add_u32 s28, s13, {OFF_MF + 8192}\ns_mov_b32 s29, 0x7ffffff0')
    p(f's_lshl_b32 s13, s11, 6\ns_add_u32 s33, s13, {OFF_VF + 4 * w}')
    for r in list(range(36, 68)) + list(range(128, 136)): p(f'v_mov_b32 v{r}, 0')
    wait_go(p, 3 if cfg.get('prep2', 1) else 7, 4, 1)
    if w == 0:
        lab0 = p.uid('L_go2')
        p(f's_cmp_lg_u32 s11, 0\ns_cbranch_scc1 {lab0}\ns_mov_b32 s13, {OFF_GO2}\ns_mov_b64 exec, 1')
        p(st(f'v{vZ}', vZ, 's13', 0, 'sc1') + f'\ns_mov_b64 exec, -1\n{lab0}:')
    slow_poll(p, [ld(f'v{vF}', vZ, 's33', n=1)], [vF], vT0, sleep=4)
    p('s_add_u32 s33, s33, 1024')
    p('s_mov_b32 s30, 0\ns_waitcnt vmcnt(0) lgkmcnt(0)\ns_barrier')
    prof(p, cfg, 3)
    rstamp_cal(p, cfg, 0)
    if cfg.get('padstart'):
        lp = p.uid('L_ps')
        p(f'{lp}:\ns_memrealtime s[96:97]\ns_waitcnt lgkmcnt(0)\ns_sub_u32 s96, s96, s100\ns_cmp_lt_u32 s96, {cfg["padstart"]}\ns_cbranch_scc1 {lp}')
    vl = []
    for k in range(8):
        vl.append(ld(vr(84 + 4 * k, 4), vL16, 's24', (k & 3) * 1024) + (f'\ns_add_u32 s24, s24, {4096 if k == 3 else 14 * 32768 - 4096}' if (k & 3) == 3 else ''))
    if cfg.get('nov'): vl = vl[:8 - cfg['nov']]
    mstore = [st(f'v{vM}', vL8, 's29', 0, 'sc1')] if w < 2 else []
    if one: mstore = [st('v[80:81]', vL8, 's29', 0, 'sc1', n=2)] if w == cfg.get('b1w', 0) else []
    loop = p.uid('L_Bloop')
    p(f'{loop}:')
    p(f's_add_u32 s20, s25, {t0 * 1024}\ns_add_u32 s21, s25, {t1 * 1024}\ns_mov_b32 s22, s27')
    for sg in range(2):
        for nt in range(2):
            for q_ in range(2): p(dsr(vr(Ww(2 * sg + nt) + 4 * q_, 4), vLW, ((nt * 7 + rot(sg)) * 2 + q_) * 1024))
    if cfg.get('b_delay'): p(f's_sleep {cfg["b_delay"]}')
    vfirst = cfg.get('vfirst', 0)
    if cfg.get('bmhint', 1) and hint:
        p(f's_add_u32 s23, s25, {EM_OFF}')
        hint_wait(p, vF, vEm, 's23', cfg, cfg.get('bm_delay', 32), w)
    chk = [mA(0) + i for i in range(8)] + [vF]
    tailM = fast_poll(p, [ld(vr(mA(0), 4), vL16, 's20'), ld(vr(mA(1), 4), vL16, 's21'), ld(f'v{vF}', vZ, 's33', n=1)], chk, vT0,
              cfg.get('bdepth', 1), cfg.get('space', 2), [], [],
              mstore + [f's_add_u32 s20, s26, {t0 * 1024}', f's_add_u32 s21, s26, {t1 * 1024}'], behind=vl if vfirst else None)
    rstamp(p, cfg, 0)
    p('s_mov_b32 s39, s31\ns_waitcnt lgkmcnt(0)')
    p(dsw(vL16, vr(mA(0), 4), LM + t0 * 1024))
    if w != 3: p(dsw(vL16, vr(mA(1), 4), LM + t1 * 1024))
    npre_v = 8 if not cfg.get('vspread') else cfg.get('vpre', 0)
    if not vfirst:
        for x in vl[:npre_v]: p(x)
    dense = cfg.get('vdense', 0)
    if not dense:
        for x in mstore: p(x)
    mid = ['s_waitcnt lgkmcnt(0)', 's_barrier'] + [dsr(vr(mA(sg), 4), vL16, LM + rot(sg) * 1024) for sg in range(2, 7)]
    y_phase(p, mA, Ya, Ww, W, IDX, vLW, rot, ([] if vfirst else vl[npre_v:]), Yop, mid, True, dense, mstore if dense else ())
    rstamp(p, cfg, 1)
    if cfg.get('p_delay'): p(f's_sleep {cfg["p_delay"]}')
    if cfg.get('p_fine'): p(f's_nop {cfg["p_fine"] - 1}')
    p(f's_add_u32 s23, s25, {8192 + EP_OFF}\ns_add_u32 s32, s25, {8192 + EM_OFF}')
    if hint: hint_wait(p, vF, vEr, 's23', cfg, cfg.get('bh_delay', 0), w)
    rstamp(p, cfg, 2)
    loads = [ld(vr(Pt(0), 4), vPt, 's22'), ld(vr(Pt(1), 4), vPt, 's22', 1024 if cfg.get('pc', 0) else 2048), ld(vr(Pm, 2), vPm, 's22', n=2)]
    om = []
    for u in range(2):
        for nt in range(2): om.append(f'{SMF} {vr(Oa(nt), 4)}, {vr(Pt(u), 4)}, {vr(Vi(u, nt), 8)}, v{IDX}')
    for nt in range(2): om.append(f'{SMF32} {vr(Oa(nt), 4)}, {vr(Pm, 2)}, {vr(Yop(nt), 4)}, v{IDX}')
    undo = [f'v_mov_b32 v{r}, 0' for r in range(128, 136)]
    sw = [f's_add_u32 s22, s27, {OFF_PS - OFF_PF}']
    eflag = [st(f'v{vZ}', vEw, 's32')] if hint else []
    epos = cfg.get('b_epos', 0)
    o0, o1 = Oa(0), Oa(1)
    if cfg.get('quick', 1):
        if epos == -2:
            for x in eflag: p(x)
        if cfg.get('quick', 1) == 2:
            tailP = quick_poll2(p, loads, [119, 123, 125], vT0, cfg.get('pdepth', 2), cfg.get('pspace', 24), [], sw)
        else:
            tailP = quick_poll(p, loads, [119, 123, 125], vT0, cfg.get('pdepth', 2), cfg.get('pspace', 24), [], sw, gap=cfg.get('pgap', 0))
        rstamp(p, cfg, 3)
        if epos in (0, -1):
            for x in eflag: p(x)
        if cfg.get('oord', 1):
            for i in (4, 5, 0, 2, 1, 3): p(om[i])
        else:
            for x in om: p(x)
    elif cfg.get('early', 1):
        if epos == -2:
            for x in eflag: p(x)
        ea = ['s_waitcnt vmcnt(2)', om[0], om[1], 's_waitcnt vmcnt(1)', om[2], om[3], 's_waitcnt vmcnt(0)'] + (eflag if epos == -1 else []) + [om[4], om[5]]
        ci = [f'v_max3_u32 v{vT0}, v116, v117, v118', f'v_max_u32 v{vT0}, v{vT0}, v119'] + \
             [f'v_max3_u32 v{vT0}, v{vT0}, v{r}, v{r + 1}' for r in (120, 122, 124)] + [f'v_cmp_eq_u32 vcc, -1, v{vT0}']
        tailP = fast_poll(p, loads, None, vT0, 1, 0, [], undo, sw, early=ea, ci=ci)
        rstamp(p, cfg, 3)
        if epos == 0:
            for x in eflag: p(x)
    else:
        tailP = fast_poll(p, loads, list(range(116, 126)), vT0, cfg.get('pdepth', 2), cfg.get('space', 2), om[:2], undo, sw)
        rstamp(p, cfg, 3)
        if epos == 0:
            for x in eflag: p(x)
        for x in om[2:]: p(x)
    p(f'v_pk_add_f32 v[{o0}:{o0 + 1}], v[{o0}:{o0 + 1}], v[{o0 + 2}:{o0 + 3}]')
    p(dsw(vOadd, vr(o0, 2), 0, 2) if bx else f'ds_write2_b32 v{vOadd}, v{o0}, v{o0 + 1} offset0:0 offset1:40')
    p(f'v_pk_add_f32 v[{o1}:{o1 + 1}], v[{o1}:{o1 + 1}], v[{o1 + 2}:{o1 + 3}]')
    p(dsw(vOadd, vr(o1, 2), 544, 2) if bx else f'ds_write2_b32 v{vOadd}, v{o1}, v{o1 + 1} offset0:16 offset1:56')
    if epos == 1:
        for x in eflag: p(x)
    p('s_waitcnt lgkmcnt(0)\ns_barrier')
    rstamp(p, cfg, 4)
    if one:
        if w == cfg.get('b1w', 0):
            for wv in range(4): p(dsr(vr(36 + 4 * wv, 4), vOrd, wv * 1280, 4))
            p(f's_waitcnt lgkmcnt({lk(2)})\nv_pk_add_f32 v[36:37], v[36:37], v[40:41]\nv_pk_add_f32 v[38:39], v[38:39], v[42:43]\ns_waitcnt lgkmcnt(0)')
            p('v_pk_add_f32 v[44:45], v[44:45], v[48:49]\nv_pk_add_f32 v[46:47], v[46:47], v[50:51]\nv_pk_add_f32 v[36:37], v[36:37], v[44:45]\nv_pk_add_f32 v[38:39], v[38:39], v[46:47]')
            p('v_cvt_pk_bf16_f32 v80, v36, v37\nv_cvt_pk_bf16_f32 v81, v38, v39\nv_min_u32 v80, s34, v80\nv_min_u32 v81, s34, v81')
            p(st('v[80:81]', vL8, 's28', n=2))
    elif w < 2:
        for wv in range(4):
            p(f'ds_read2_b32 {vr(36 + 2 * wv, 2)}, v{vOrd if wv == 0 else 80 + wv} offset0:0 offset1:2' if bx else dsr(vr(36 + 2 * wv, 2), vOrd, wv * 1280, 2))
        p(f's_waitcnt lgkmcnt({lk(2)})\nv_pk_add_f32 v[36:37], v[36:37], v[38:39]\ns_waitcnt lgkmcnt(0)\nv_pk_add_f32 v[40:41], v[40:41], v[42:43]')
        p('v_pk_add_f32 v[36:37], v[36:37], v[40:41]')
        p(f'v_cvt_pk_bf16_f32 v{vM}, v36, v37\nv_min_u32 v{vM}, s34, v{vM}')
        p(st(f'v{vM}', vL8, 's28'))
    w2d = cfg.get('b_idle', 0)
    if w2d and ((one and w != cfg.get('b1w', 0)) or (not one and w >= 2)): p(f's_sleep {w2d}')
    rstamp(p, cfg, 5)
    p(f's_add_u32 s29, s28, {OFF_MS - OFF_MF}\ns_add_u32 s28, s28, 8192')
    if not cfg.get('rprof'): p(f's_cmp_eq_u32 s30, {NSTEP - 1}\ns_cbranch_scc1 {loop}_x')
    for r in list(range(36, 68)) + list(range(128, 136)): p(f'v_mov_b32 v{r}, 0')
    p(f's_add_u32 s25, s25, 8192\ns_add_u32 s26, s25, {OFF_MS - OFF_MF}\ns_add_u32 s27, s27, {PSLOT}\ns_add_u32 s33, s33, 1024')
    rstamp_flush(p, cfg, w)
    p(f's_add_u32 s30, s30, 1\ns_cmp_lt_u32 s30, {NSTEP}\ns_cbranch_scc1 {loop}')
    p(f'{loop}_x:')
    for x in mstore: p(x)
    if cfg.get('tprof'): prof(p, cfg, 18, 2)
    rstamp_dump(p, cfg, w)
    p('s_branch L_exit')
    tailM(); tailP()

def gen_pref(p, cfg):
    ahead = cfg.get('ahead', 2)
    if cfg.get('pf_go2', 1): wait_word(p, WS, OFF_GO3, 4, 0)
    p('s_lshl_b32 s11, s11, 2\ns_add_u32 s11, s11, s12')
    if cfg.get('ctouch', 1) >= 2: code_touch(p, 'L_A0', 'L_TB', 's11', 20, False)
    p('v_lshlrev_b32 v1, 7, v0')
    p(f's_mul_i32 s13, s11, {28 * 128}\ns_add_u32 s13, s13, {OFF_XN}\nv_add_u32 v2, s13, v1\nv_mov_b32 v3, 28672')
    p(f's_mul_i32 s13, s11, {1280 if cfg.get("pc", 0) else 2048}\ns_add_u32 s13, s13, {OFF_PF - 28 * 128}\nv_add_u32 v4, s13, v1\nv_mov_b32 v5, {PSLOT}')
    p('v_cmp_lt_u32 vcc, 27, v0\nv_cndmask_b32 v2, v2, v4, vcc\nv_cndmask_b32 v3, v3, v5, vcc')
    p(f's_lshl_b32 s13, s11, 10\ns_add_u32 s13, s13, {OFF_MF + 8192 - 38 * 128}\nv_add_u32 v4, s13, v1\nv_mov_b32 v5, 8192')
    p('v_cmp_lt_u32 vcc, 37, v0\nv_cndmask_b32 v2, v2, v4, vcc\nv_cndmask_b32 v3, v3, v5, vcc')
    p(f's_lshl_b32 s13, s11, 7\ns_add_u32 s13, s13, {OFF_VF + 1024 - 46 * 128}\nv_add_u32 v4, s13, v1\nv_mov_b32 v5, 1024')
    p('v_cmp_lt_u32 vcc, 45, v0\nv_cndmask_b32 v2, v2, v4, vcc\nv_cndmask_b32 v3, v3, v5, vcc')
    p(f'v_mov_b32 v6, 0\ns_mov_b32 s20, {OFF_MS}\ns_mov_b32 s30, 0')
    nv = cfg.get('prefv', 0)
    p(f'v_lshrrev_b32 v9, 3, v0\nv_min_u32 v9, 6, v9\nv_lshlrev_b32 v9, 13, v9\nv_and_b32 v10, 7, v0\nv_lshl_add_u32 v9, v10, 7, v9')
    p(f's_mul_i32 s13, s11, {7 * 8192}\ns_add_u32 s24, s13, {OFF_V + (8 - nv) * 1024}')
    loop = p.uid('L_pf')
    p(f'{loop}:')
    p(f's_cmp_le_u32 s30, {ahead}\ns_cbranch_scc1 {loop}_go')
    p(f's_add_u32 s20, s20, 8192\ns_sub_u32 s21, s20, {OFF_MS - OFF_MF}\ns_mov_b32 s31, 0')
    p(f'{loop}_poll:')
    p(f's_sleep {cfg.get("pf_sleep", 8)}\ns_mov_b64 exec, 1\n' + ld('v7', 6, 's21', n=1))
    p(f's_add_u32 s31, s31, 1\ns_cmp_ge_u32 s31, 16\ns_cselect_b32 s21, s20, s21\ns_cmp_gt_u32 s31, {TMO}\ns_cbranch_scc1 {FAIL}\ns_waitcnt vmcnt(0)')
    p(f'v_cmp_eq_u32 vcc, -1, v7\ns_mov_b64 exec, -1\ns_cbranch_vccnz {loop}_poll')
    p(f'{loop}_go:')
    p('s_mov_b32 exec_hi, 0x7fff\n' + ld('v8', 2, '0', n=1) + '\nv_add_u32 v2, v2, v3\ns_mov_b64 exec, -1')
    for k in range(nv): p(ld(f'v{11 + k}', 9, 's24', k * 1024, n=1))
    p(f's_add_u32 s24, s24, {14 * 32768}')
    p(f's_add_u32 s30, s30, 1\ns_cmp_lt_u32 s30, {NSTEP}\ns_cbranch_scc1 {loop}')
    p('s_branch L_exit')
```

```python
import sys, os, json
sys.path.insert(0, os.path.dirname(os.path.abspath(__file__)))
from asm import Prog
from common import *
import prep, prep2, rroles, troles

DEFAULT = dict(relx=0, rx=3, pc=1, sm2=1, prep2=0, ctouch=0, bfirst=0, t_sleep=2, quick=2, go3=6, qspace=32, pspace=32, pspos=-2, dbg_sleep=2, ffn_wait=0, flK='nt', flX='nt', flN='nt', a_delay=10, b_delay=2, p_delay=2, hint=0, early=0, vspread=1, vdense=2, vpre=0, xs=3)

def gen(cfg=None):
    c = dict(DEFAULT); c.update(cfg or {}); cfg = c
    p = Prog()
    BMASK[0] = 0xffff0000 if cfg.get('prep2') else ((1 << cfg.get('nbcnt', 1)) - 1) << 16
    p('''s_cmp_ge_u32 s2, 256
s_cbranch_scc1 L_end''')
    if cfg.get('padto') or cfg.get('padstart') or cfg.get('padgo') or cfg.get('pad0'): p('s_memrealtime s[100:101]')
    p('''s_load_dwordx16 s[40:55], s[0:1], 0
s_load_dwordx8 s[56:63], s[0:1], 64
s_load_dwordx4 s[4:7], s[0:1], 96
s_load_dwordx2 s[8:9], s[0:1], 112
s_getreg_b32 s10, hwreg(HW_REG_XCC_ID, 0, 3)
v_lshrrev_b32 v1, 6, v0
v_and_b32 v0, 63, v0
s_mov_b32 s99, s2
s_waitcnt lgkmcnt(0)
v_readfirstlane_b32 s12, v1''')
    if cfg.get('xcc_mix'): p('s_lshr_b32 s10, s2, 5')
    if cfg.get('xcc_skew'): p('s_lshr_b32 s10, s10, 1')
    srd(p, 64, 8, WS_END); srd(p, 68, 4, 2048 * 896); srd(p, 72, 6, 256); srd(p, 76, 40, 2048 * 896)
    prof(p, cfg, 0)
    if cfg.get('pad0'):
        p(f'L_p0:\ns_memrealtime s[96:97]\ns_waitcnt lgkmcnt(0)\ns_sub_u32 s96, s96, s100\ns_cmp_lt_u32 s96, {cfg["pad0"]}\ns_cbranch_scc1 L_p0')
    cnt_zero(p)
    if cfg.get('ctouch', 1):
        p('s_cmp_lg_u32 s12, 1\ns_cbranch_scc1 L_noct\ns_lshr_b32 s14, s2, 3')
        code_touch(p, KNAME, 'L_last', 's14', 246, True)
        p('L_noct:')
    p(f'''s_and_b32 s13, s2, 7
s_lshr_b32 s14, s2, 3
s_cmp_lt_u32 s14, 28
s_cbranch_scc1 L_isgemm
s_lshl_b32 s13, s13, 2
s_add_u32 s13, s13, s14
s_sub_u32 s13, s13, 28
s_branch L_ln
''')
    NPAD = 13
    if cfg.get('warm', 1):
        p('L_walk:\ns_lshr_b32 s3, s2, 3\ns_and_b32 s3, s3, 15')
        for i in range(NPAD): p(f's_cmp_eq_u32 s3, {i}\ns_cbranch_scc1 L_pad{i}')
        p('s_setpc_b64 s[94:95]')
    p('L_isgemm:\ns_mov_b32 s35, s13\ns_mov_b32 s38, s14\ns_mul_i32 s13, s13, 28\ns_add_u32 s13, s13, s14')
    if cfg.get('prep2', 1):
        prep2.gen(p, cfg)
    else:
        p(f'''s_cmp_ge_u32 s13, 112
s_cselect_b32 s16, 112, 0
s_sub_u32 s13, s13, s16
s_mul_i32 s14, s13, 147
s_lshr_b32 s14, s14, 10
s_mul_i32 s15, s14, 7
s_sub_u32 s15, s13, s15
s_cmp_lg_u32 s16, 0
s_cbranch_scc{0 if cfg.get('bfirst', 1) else 1} L_gemmB''')
        prep.gen_gemm(p, False, cfg)
        p('s_branch L_prepdone\nL_gemmB:')
        prep.gen_gemm(p, True, cfg)
        p('s_branch L_prepdone')
    p('L_ln:')
    prep.gen_ln(p, cfg)
    pads = []
    def pad():
        if cfg.get('warm', 1):
            pads.append(f'L_pad{len(pads)}'); p(f'{pads[-1]}:\ns_setpc_b64 s[94:95]')
    p('s_branch L_prepdone'); pad()
    p('L_prepdone:')
    prof(p, cfg, 7)
    p('s_waitcnt vmcnt(0) lgkmcnt(0)')
    prof(p, cfg, 8)
    p(f'''s_barrier
s_cmp_lg_u32 s12, 0
s_cbranch_scc1 L_role_w
s_mov_b64 exec, 1
v_cmp_lt_u32 vcc, 0xffff, v255
s_cbranch_vccz L_czw
L_czok:
s_lshl_b32 s23, s23, 7
s_add_u32 s23, s23, {OFF_CNT}
v_mov_b32 v4, 0
v_mov_b32 v5, 1
buffer_atomic_add v5, v4, {WS}, s23 offen sc0
s_add_u32 s23, s23, 8192
v_readfirstlane_b32 s11, v255
s_and_b32 s11, s11, 0xffff
s_lshl_b32 s13, s10, 5
s_add_u32 s13, s13, s11
s_lshr_b32 s14, s2, 3
s_and_b32 s14, s14, 16
s_add_u32 s13, s13, s14
s_cmp_lt_u32 s11, 16
s_cbranch_scc0 L_overflow
L_role_ok:
v_readfirstlane_b32 s14, v255
s_lshr_b32 s14, s14, 15
s_and_b32 s14, s14, {0xe0 if cfg.get('relx', 1) else 0}
s_xor_b32 s13, s13, s14
s_xor_b32 s13, s13, {32 * cfg.get('rx', 0)}
v_mov_b32 v2, s13
ds_write_b32 v4, v2
s_waitcnt vmcnt(0) lgkmcnt(0)
v_cmp_ne_u32 vcc, s24, v5
s_cbranch_vccnz L_notlast
buffer_store_dword v5, v4, {WS}, s23 offen sc1
L_notlast:
s_mov_b64 exec, -1
L_role_w:
s_barrier
v_mov_b32 v1, 0
ds_read_b32 v2, v1
s_waitcnt lgkmcnt(0)
v_readfirstlane_b32 s13, v2
s_barrier
s_and_b32 s11, s13, 31
s_lshr_b32 s10, s13, 5
s_and_b32 s10, s10, 7''')
    if cfg.get('prof') or cfg.get('rprof'): p('s_mov_b32 s99, s13\nv_mov_b32 v6, 163584 + 40\nv_mov_b32 v7, s2\nds_write_b32 v6, v7')
    prof(p, cfg, 1)
    if cfg.get('only_prep'): p('s_branch L_exit')
    if cfg.get('padgo'):
        p(f'L_pg:\ns_memrealtime s[96:97]\ns_waitcnt lgkmcnt(0)\ns_sub_u32 s96, s96, s100\ns_cmp_lt_u32 s96, {cfg["padgo"]}\ns_cbranch_scc1 L_pg')
    fast_s, slow_s = cfg.get('dbg_sleep', 8), cfg.get('dbg_slow', 48)
    r0, f0, sp = cfg.get('map', (2, 6, 1))
    p(f'''s_cmp_eq_u32 s10, {sp}
s_cbranch_scc1 L_exit
s_sub_u32 s13, s10, {f0}
s_cmp_lt_u32 s13, 2
s_cbranch_scc1 L_FFN
s_sub_u32 s37, s10, {r0}
s_lshr_b32 s14, s37, 1
s_xor_b32 s37, s37, s14
s_cmp_ge_u32 s11, 30
s_cbranch_scc1 L_spare
s_cmp_ge_u32 s11, 16
s_cbranch_scc1 L_colrole
s_cmp_lg_u32 s10, 0
s_cbranch_scc1 L_TAw''')
    wait_go(p, 4, fast_s, head='s11')
    prof(p, cfg, 2)
    for w in range(3): p(f's_cmp_eq_u32 s12, {w}\ns_cbranch_scc1 L_A{w}')
    p('s_branch L_A3'); pad()
    p('L_colrole:\ns_sub_u32 s11, s11, 16')
    wait_go(p, 2, fast_s)
    prof(p, cfg, 2)
    p('s_cmp_lg_u32 s10, 0\ns_cbranch_scc1 L_TB')
    for w in range(3): p(f's_cmp_eq_u32 s12, {w}\ns_cbranch_scc1 L_B{w}')
    p('s_branch L_B3')
    p('L_TAw:')
    wait_go(p, 7, slow_s)
    prof(p, cfg, 2)
    p('s_branch L_TA')
    p('L_spare:\ns_cmp_lg_u32 s10, 0\ns_cbranch_scc1 L_exit\ns_sub_u32 s11, s11, 30')
    wait_go(p, 7, slow_s)
    rroles.gen_pref(p, cfg)
    p('L_exit:\ns_mov_b64 exec, -1\ns_waitcnt vmcnt(0) lgkmcnt(0)')
    prof(p, cfg, 5)
    if cfg.get('padto'):
        if 'padx' in cfg: p(f's_getreg_b32 s96, hwreg(HW_REG_XCC_ID, 0, 3)\ns_cmp_lg_u32 s96, {cfg["padx"]}\ns_cbranch_scc1 L_nopad')
        if 'padid' in cfg: p(f's_lshr_b32 s96, s2, 5\ns_cmp_lg_u32 s96, {cfg["padid"]}\ns_cbranch_scc1 L_nopad')
        p(f'L_padt:\ns_sleep 1\ns_memrealtime s[96:97]\ns_waitcnt lgkmcnt(0)\ns_sub_u32 s96, s96, s100\ns_cmp_lt_u32 s96, {cfg["padto"]}\ns_cbranch_scc1 L_padt\nL_nopad:')
    prof_dump(p, cfg)
    prof_dbgout(p, cfg)
    p('s_waitcnt vmcnt(0)\nL_end:\ns_endpgm')
    p(f'''L_czw:
s_mov_b32 s31, 0
L_czl:
v_mov_b32 v252, 0
v_mov_b32 v253, 0
buffer_atomic_add v253, v252, {DBG}, 0 offen sc0
s_add_u32 s31, s31, 1
s_cmp_gt_u32 s31, {TMO}
s_cbranch_scc1 L_exit
s_waitcnt vmcnt(0)
v_cmp_lt_u32 vcc, 0xffff, v253
s_cbranch_vccz L_czl
v_and_b32 v253, 0xffff0000, v253
v_or_b32 v255, v255, v253
s_branch L_czok
L_overflow:
v_mov_b32 v1, 8
v_mov_b32 v3, 1
buffer_atomic_add v3, v1, {DBG}, 0 offen sc0
s_mov_b64 exec, 0xffff
v_lshlrev_b32 v1, 4, v0
s_mov_b32 s31, 0
L_ovf:
{ld('v2', 1, '0', n=1, srd=DBG)}
s_add_u32 s31, s31, 1
s_cmp_gt_u32 s31, {TMO}
s_cbranch_scc1 L_exit
s_waitcnt vmcnt(0)
v_and_b32 v2, 0xffff, v2
s_mov_b32 s14, 0''')
    for x in range(16): p(f'v_readlane_b32 s15, v2, {x}\ns_add_u32 s14, s14, s15')
    p('''s_cmp_lt_u32 s14, 256
s_cbranch_scc1 L_ovf
v_readfirstlane_b32 s15, v3
s_mov_b64 exec, 1
s_mov_b32 s13, 255''')
    for x in range(16):
        p(f'''v_readlane_b32 s14, v2, {x}
s_min_u32 s14, s14, 16
s_add_u32 s16, s14, s15
s_add_u32 s17, s16, {16 * x}
s_cmp_lt_u32 s16, 16
s_cselect_b32 s13, s17, s13
s_cbranch_scc1 L_role_ok
s_sub_u32 s15, s16, 16''')
    p('s_branch L_role_ok')
    for w in range(4):
        pad(); p(f'L_A{w}:'); rroles.gen_A(p, w, cfg)
    for w in range(4):
        pad(); p(f'L_B{w}:'); rroles.gen_B(p, w, cfg)
    pad(); p('L_TB:'); troles.gen_TB(p, cfg)
    pad(); p('L_TA:'); troles.gen_TA(p, cfg)
    pad(); p('L_FFN:\ns_lshl_b32 s13, s13, 5\ns_add_u32 s11, s11, s13')
    wait_go(p, 7, slow_s)
    prof(p, cfg, 2)
    troles.gen_FFN(p, cfg)
    assert len(pads) in (0, NPAD)
    p('L_last:\ns_endpgm')
    body = p.finish(cfg.get('verbose'))
    hdr = open(os.path.join(os.path.dirname(os.path.abspath(__file__)), 'header.txt')).read()
    return hdr + f'''.amdgcn_target "amdgcn-amd-amdhsa--gfx950"
.text
.globl {KNAME}
.p2align 8
.type {KNAME},@function
{KNAME}:
''' + body + f'''.section .rodata,"a"
.p2align 6
.amdhsa_kernel {KNAME}
  .amdhsa_next_free_vgpr 512
  .amdhsa_next_free_sgpr 102
  .amdhsa_accum_offset 256
  .amdhsa_group_segment_fixed_size 0
  .amdhsa_kernarg_size 120
  .amdhsa_user_sgpr_count 2
  .amdhsa_user_sgpr_kernarg_segment_ptr 1
  .amdhsa_system_sgpr_workgroup_id_x 1
.end_amdhsa_kernel
'''

if __name__ == '__main__':
    cfg = json.loads(sys.argv[2]) if len(sys.argv) > 2 else {}
    cfg['verbose'] = 1
    s = gen(cfg)
    open(sys.argv[1], 'w').write(s)
    print(len(s), 'bytes')
```
